```python
import torch

def _softmax(x, axis=-1):
    return torch.softmax(x, dim=axis)
def _gelu(x):
    return torch.nn.functional.gelu(x, approximate="tanh")
def _silu(x):
    return torch.nn.functional.silu(x)
def _sigmoid(x):
    return torch.sigmoid(x)
def _layernorm(x, axis=-1, eps=1e-5):
    m = x.mean(dim=axis, keepdim=True)
    v = x.var(dim=axis, keepdim=True, unbiased=False)
    return (x - m) / torch.sqrt(v + eps)
def _scatter_add(tgt, idx, src, axis=0):
    return tgt.clone().index_add_(axis, idx, src)
def _segment_sum(src, seg, n):
    out = torch.zeros((n,) + src.shape[1:], dtype=src.dtype)
    return out.index_add_(0, seg, src)
def _pad(x, pw):
    flat = tuple(v for pair in reversed(pw) for v in pair)
    return torch.nn.functional.pad(x, flat)

kernel_name = 'sequential_preLN__ssm_conv_s4d__geglu_ffn__prompt'

def setup_inputs():

    _w = (lambda a: (lambda t: t.to(torch.bfloat16) if t.is_floating_point() else t)(torch.as_tensor(a)))
    def _A_setup():
        Bsz, L, D, N = 1, 2048, 576, 128
        return {
            "u": _w((lambda *s: torch.randn(*s, dtype=torch.bfloat16) * 0.05)(Bsz, L, D)),
            "log_A_real": _w((lambda *s: torch.randn(*s, dtype=torch.bfloat16) * 6.4)(D, N) * 0.5),
            "A_imag": _w((lambda *s: torch.randn(*s, dtype=torch.bfloat16) * 0.05)(D, N) * 3.14),
            "C_real": _w((lambda *s: torch.randn(*s, dtype=torch.bfloat16) * 0.05)(D, N) / N ** 0.5),
            "C_imag": _w((lambda *s: torch.randn(*s, dtype=torch.bfloat16) * 0.05)(D, N) / N ** 0.5),
            "log_dt": _w((lambda *s: torch.randn(*s, dtype=torch.bfloat16) * 0.05)(D) * 0.5 - 4.0),
            "D_skip": _w((lambda *s: torch.randn(*s, dtype=torch.bfloat16) * 0.05)(D)),
        }
    _A_in = _A_setup()

    def _B_setup():
        B, S, D, F = 1, 2048, 576, 4608
        return {
            "x": _w((lambda *s: torch.randn(*s, dtype=torch.bfloat16) * 0.05)(B, S, D)),
            "w_gate": _w((lambda *s: torch.randn(*s, dtype=torch.bfloat16) * 0.05)(D, F)),
            "w_up": _w((lambda *s: torch.randn(*s, dtype=torch.bfloat16) * 0.05)(D, F)),
            "w_down": _w((lambda *s: torch.randn(*s, dtype=torch.bfloat16) * 0.05)(F, D)),
        }
    _B_in = _B_setup()

    return {
        "A_u": _A_in["u"],
        "A_log_A_real": _A_in["log_A_real"],
        "A_A_imag": _A_in["A_imag"],
        "A_C_real": _A_in["C_real"],
        "A_C_imag": _A_in["C_imag"],
        "A_log_dt": _A_in["log_dt"],
        "A_D_skip": _A_in["D_skip"],
        "B_x": _B_in["x"],
        "B_w_gate": _B_in["w_gate"],
        "B_w_up": _B_in["w_up"],
        "B_w_down": _B_in["w_down"],
    }

def reference(A_u, A_log_A_real, A_A_imag, A_C_real, A_C_imag, A_log_dt, A_D_skip, B_x, B_w_gate, B_w_up, B_w_down):
    def _A_ref(u, log_A_real, A_imag, C_real, C_imag, log_dt, D_skip):
        L = u.shape[1]
        dt = torch.exp(log_dt)
        A = -torch.exp(log_A_real) + 1j * A_imag
        C = (C_real + 1j * C_imag) * dt[:, None]
        pos = (lambda x, dt: x.to(dt))(torch.arange(L), log_dt.dtype)
        P = torch.exp((A * dt[:, None])[:, :, None] * pos[None, None, :])
        K = 2.0 * torch.einsum("dn,dnl->dl", C, P).real
        L2 = 2 * L
        u_t = (lambda x, *d: x.permute(*d))(u, 0, 2, 1)
        Kf = (lambda x, *a, **k: torch.fft.rfft(x.float(), *a, **k))(K, L2)
        Uf = (lambda x, *a, **k: torch.fft.rfft(x.float(), *a, **k))(u_t, L2)
        y = (lambda x, *a, **k: torch.fft.irfft(x, *a, **k).to(torch.bfloat16))(Uf * Kf[None, :, :], L2)[:, :, :L]
        y = (lambda x, *d: x.permute(*d))(y, 0, 2, 1)
        return y + u * D_skip[None, None, :]

    def _B_ref(x, w_gate, w_up, w_down):
        return (_gelu(x @ w_gate) * (x @ w_up)) @ w_down

    x = A_u
    h = x + _A_ref(_layernorm(x, axis=-1), A_log_A_real, A_A_imag, A_C_real, A_C_imag, A_log_dt, A_D_skip)
    h2 = h + _B_ref(_layernorm(h, axis=-1), B_w_gate, B_w_up, B_w_down)
    return h2
```

```python
HDR = '.amdgcn_target "amdgcn-amd-amdhsa--gfx950"\n.text\n'

class K:
    def __init__(self, name):
        self.name = name; self.lines = []
    def __call__(self, s):
        for l in s.strip("\n").split("\n"):
            l = l.strip()
            self.lines.append(l if l.endswith(":") and " " not in l else "    " + l)
    def label(self, l): self.lines.append(l + ":")
    def text(self):
        return (f".globl {self.name}\n.p2align 8\n.type {self.name},@function\n{self.name}:\n" + "\n".join(self.lines) + "\n")

def desc(name, vgpr, sgpr, acc):
    return f""".p2align 6
.amdhsa_kernel {name}
  .amdhsa_next_free_vgpr {vgpr}
  .amdhsa_next_free_sgpr {sgpr}
  .amdhsa_accum_offset {acc}
  .amdhsa_group_segment_fixed_size 0
  .amdhsa_kernarg_size 112
  .amdhsa_user_sgpr_count 2
  .amdhsa_user_sgpr_kernarg_segment_ptr 1
  .amdhsa_system_sgpr_workgroup_id_x 1
  .amdhsa_float_denorm_mode_32 3
  .amdhsa_float_denorm_mode_16_64 3
.end_amdhsa_kernel
"""

def build_file(fn, kernels, launches, header=""):
    s = header
    s += "".join(f"; @launch kernel={k} grid=({g},1,1) block=({b},1,1) lds={l}\n" for k, g, b, l in launches)
    s += HDR
    for k, *_ in kernels: s += k.text()
    s += '.section .rodata,"a"\n.p2align 6\nLkd_start:\n'
    for k, v, sg, a in kernels: s += desc(k.name, v, sg, a)
    open(fn, "w").write(s)
```

```python
from asmlib import K
from gen_k3 import WS_XT, WS_UT, WS_KG, WS_SC, WS_CS, WS_END, f2u
import math
NA, NB, NC = 128, 144, 576
LOG2E = math.log2(math.e)
K1_LDS = 40960

def srd(k, s, base_lo, base_hi, size):
    k(f"s_mov_b32 s{s}, s{base_lo}\ns_mov_b32 s{s+1}, s{base_hi}\ns_mov_b32 s{s+2}, {size}\ns_mov_b32 s{s+3}, 0x20000")

def bf16r(k, dst, src):
    k(f"v_cvt_pk_bf16_f32 v{dst}, v{src}, v{src}")
    k(f"v_and_b32 v{dst}, 0xffff0000, v{dst}")

def role_A(k, name):
    PITCH = 1216
    k(f"""
    s_load_dwordx2 s[4:5], s[0:1], 0           ; x
    s_load_dwordx2 s[6:7], s[0:1], 104         ; ws
    s_and_b32 s16, s2, 7
    s_lshl_b32 s16, s16, 4
    s_lshr_b32 s17, s2, 3
    s_add_u32 s16, s16, s17                    ; rb
    v_and_b32 v1, 63, v0                       ; lane
    v_lshrrev_b32 v2, 6, v0                    ; wave
    v_lshrrev_b32 v3, 4, v1                    ; r (0..3)
    v_and_b32 v4, 15, v1                       ; c
    v_lshl_add_u32 v5, v2, 2, v3
    v_mul_u32_u24 v6, 1152, v5
    v_lshl_add_u32 v6, v4, 4, v6               ; row*1152 + c*16
    s_mul_i32 s17, s16, {16*1152}
    s_waitcnt lgkmcnt(0)
    """)
    srd(k, 8, 4, 5, 2048*1152); srd(k, 12, 6, 7, WS_END)
    X = 16
    k(f"""
    v_cmp_gt_u32 vcc, 8, v4
    v_add_u32 v7, 1024, v6
    v_mov_b32 v8, 0x7fffffff
    s_nop 0
    v_cndmask_b32 v7, v8, v7, vcc
    """)
    for i in range(4):
        k(f"buffer_load_dwordx4 v[{X+4*i}:{X+4*i+3}], v6, s[8:11], s17 offen offset:{256*i}")
    k(f"buffer_load_dwordx4 v[{X+16}:{X+19}], v7, s[8:11], s17 offen")
    F = 40
    k("v_mov_b32 v9, 0x3f803f80\nv_mov_b32 v10, 0\nv_mov_b32 v11, 0\ns_waitcnt vmcnt(0)")
    for i in range(20):
        k(f"v_dot2_f32_bf16 v{10+(i&1)}, v{X+i}, v9, v{10+(i&1)}")
    for i in range(20):
        k(f"v_lshlrev_b32 v{F+2*i}, 16, v{X+i}")
        k(f"v_and_b32 v{F+2*i+1}, 0xffff0000, v{X+i}")
    k("v_add_f32 v10, v10, v11")
    def reduce16(reg):
        k(f"""
        s_nop 1
        v_add_f32_dpp v{reg}, v{reg}, v{reg} quad_perm:[1,0,3,2] row_mask:0xf bank_mask:0xf
        s_nop 1
        v_add_f32_dpp v{reg}, v{reg}, v{reg} quad_perm:[2,3,0,1] row_mask:0xf bank_mask:0xf
        s_nop 1
        v_add_f32_dpp v{reg}, v{reg}, v{reg} row_half_mirror row_mask:0xf bank_mask:0xf
        s_nop 1
        v_add_f32_dpp v{reg}, v{reg}, v{reg} row_mirror row_mask:0xf bank_mask:0xf
        """)
    reduce16(10)
    k(f"v_mul_f32 v10, {f2u(1.0/576):#x}, v10        ; mean")
    k("v_mov_b32 v11, 0\nv_mov_b32 v12, 0\nv_mov_b32 v15, 0")
    for i in range(32):
        t = 13 + (i & 1)
        k(f"v_sub_f32 v{t}, v{F+i}, v10")
        k(f"v_fmac_f32 v{11+(i&1)}, v{t}, v{t}")
    for i in range(32, 40):
        t = 13 + (i & 1)
        k(f"v_sub_f32 v{t}, v{F+i}, v10")
        k(f"v_fmac_f32 v15, v{t}, v{t}")
    k("""
    v_add_f32 v11, v11, v12
    v_cndmask_b32 v15, 0, v15, vcc
    v_add_f32 v11, v11, v15
    """)
    reduce16(11)
    k(f"""
    v_mul_f32 v11, {f2u(1.0/576):#x}, v11        ; var
    v_cvt_pk_bf16_f32 v12, v10, v11
    v_lshlrev_b32 v10, 16, v12                   ; m (bf16)
    v_and_b32 v11, 0xffff0000, v12
    v_add_f32 v11, {f2u(1e-5):#x}, v11
    """)
    bf16r(k, 11, 11)
    k("v_sqrt_f32 v11, v11\ns_nop 0")
    bf16r(k, 11, 11)
    k("v_rcp_f32 v11, v11\ns_nop 0")
    U = 80
    for i in range(20):
        a, b = F+2*i, F+2*i+1
        k(f"""
        v_sub_f32 v{a}, v{a}, v10
        v_sub_f32 v{b}, v{b}, v10
        v_cvt_pk_bf16_f32 v13, v{a}, v{b}
        v_lshlrev_b32 v{a}, 16, v13
        v_and_b32 v{b}, 0xffff0000, v13
        v_mul_f32 v{a}, v{a}, v11
        v_mul_f32 v{b}, v{b}, v11
        v_cvt_pk_bf16_f32 v13, v{a}, v{b}
        v_lshlrev_b32 v{a}, 16, v13
        v_and_b32 v{b}, 0xffff0000, v13
        v_cvt_pk_f16_f32 v{U+i}, v{a}, v{b}
        """)
    UOFF = 16*PITCH
    k(f"""
    v_mul_u32_u24 v6, {PITCH}, v5
    v_lshl_add_u32 v6, v4, 4, v6
    """)
    for i in range(4):
        k(f"ds_write_b128 v6, v[{X+4*i}:{X+4*i+3}] offset:{256*i}")
        k(f"ds_write_b128 v6, v[{U+4*i}:{U+4*i+3}] offset:{UOFF+256*i}")
    k("s_and_saveexec_b64 s[20:21], vcc")
    k(f"ds_write_b128 v6, v[{X+16}:{X+19}] offset:1024")
    k(f"ds_write_b128 v6, v[{U+16}:{U+19}] offset:{UOFF+1024}")
    k("s_mov_b64 exec, s[20:21]")
    k("s_waitcnt lgkmcnt(0)\ns_barrier")
    k(f"""
    v_bfe_u32 v6, v1, 2, 2                       ; r
    v_mul_u32_u24 v6, {PITCH}, v6
    v_and_b32 v7, 3, v1
    v_lshl_add_u32 v6, v7, 3, v6                 ; + 4*(lane&3)*2
    v_lshl_add_u32 v6, v3, 5, v6                 ; + 16g*2
    v_lshl_add_u32 v6, v2, 7, v6
    v_lshl_add_u32 v7, v2, 6, v1
    v_lshlrev_b32 v8, 12, v7                     ; d*4096 (xT)
    v_mul_u32_u24 v9, 5120, v7                   ; d*5120 (uT)
    s_lshl_b32 s18, s16, 5
    s_add_u32 s18, s18, {WS_XT}
    s_lshr_b32 s19, s16, 2
    s_mul_i32 s19, s19, 160
    s_and_b32 s20, s16, 3
    s_lshl_b32 s20, s20, 5
    s_add_u32 s19, s19, s20
    s_add_u32 s19, s19, {WS_UT}
    v_readfirstlane_b32 s21, v2
    """)
    for it in range(3):
        if it == 2:
            k(f"s_cmp_lg_u32 s21, 0\ns_cbranch_scc1 L{name}_end")
        for arr in range(2):
            R = 16 + 16*arr + 32*(it & 1)
            for lq in range(4):
                k(f"ds_read_b64_tr_b16 v[{R+2*lq}:{R+2*lq+1}], v6 offset:{arr*UOFF + it*512 + lq*4*PITCH}")
        k("s_waitcnt lgkmcnt(0)")
        R = 16 + 32*(it & 1)
        k(f"s_add_u32 s22, s18, {it*256*4096}")
        k(f"s_add_u32 s23, s19, {it*256*5120}")
        k(f"buffer_store_dwordx4 v[{R}:{R+3}], v8, s[12:15], s22 offen")
        k(f"buffer_store_dwordx4 v[{R+4}:{R+7}], v8, s[12:15], s22 offen offset:16")
        k(f"buffer_store_dwordx4 v[{R+16}:{R+19}], v9, s[12:15], s23 offen")
        k(f"buffer_store_dwordx4 v[{R+20}:{R+23}], v9, s[12:15], s23 offen offset:16")
    k(f"s_branch L{name}_end")

def role_B(k, name):
    k(f"""
    s_load_dwordx4 s[4:7], s[0:1], 64
    s_load_dwordx2 s[16:17], s[0:1], 104
    s_sub_u32 s18, s2, {NA}
    s_cmp_ge_u32 s18, 72
    s_cselect_b32 s19, 72, 0
    s_cselect_b32 s20, 1, 0
    s_sub_u32 s18, s18, s19                     ; cidx
    v_lshrrev_b32 v1, 3, v0                     ; rg
    v_and_b32 v2, 7, v0                         ; c
    v_mul_u32_u24 v3, 9216, v1
    v_lshl_add_u32 v3, v2, 4, v3
    s_waitcnt lgkmcnt(0)
    s_cmp_eq_u32 s20, 1
    s_cselect_b32 s8, s6, s4
    s_cselect_b32 s9, s7, s5
    s_mov_b32 s10, {576*9216}
    s_mov_b32 s11, 0x20000
    """)
    srd(k, 12, 16, 17, WS_END)
    k("s_lshl_b32 s21, s18, 7")
    for i in range(18):
        k(f"buffer_load_dwordx4 v[{16+4*i}:{16+4*i+3}], v3, s[8:11], s21 offen")
        if i < 17: k(f"s_add_u32 s21, s21, {32*9216}")
    for i in range(18):
        k(f"s_waitcnt vmcnt({17-i})")
        for d in range(4):
            r = 16+4*i+d
            if i == 0:
                k(f"v_lshlrev_b32 v{4+2*d}, 16, v{r}\nv_and_b32 v{5+2*d}, 0xffff0000, v{r}")
            else:
                k(f"v_lshlrev_b32 v12, 16, v{r}\nv_and_b32 v13, 0xffff0000, v{r}\nv_add_f32 v{4+2*d}, v{4+2*d}, v12\nv_add_f32 v{5+2*d}, v{5+2*d}, v13")
    k(f"""
    v_lshlrev_b32 v12, 8, v1
    v_lshl_add_u32 v12, v2, 5, v12              ; rg*256 + c*32
    ds_write_b128 v12, v[4:7]
    ds_write_b128 v12, v[8:11] offset:16
    s_waitcnt lgkmcnt(0)
    s_barrier
    v_cmp_gt_u32 vcc, 64, v0
    s_and_saveexec_b64 s[22:23], vcc
    s_cbranch_execz L{name}_end
    v_lshlrev_b32 v12, 2, v0
    """)
    for i in range(32):
        k(f"ds_read_b32 v{16+i}, v12 offset:{256*i}")
        if i == 14: k("s_waitcnt lgkmcnt(0)")
        if i == 29: k("s_waitcnt lgkmcnt(0)")
    k("s_waitcnt lgkmcnt(0)")
    for st in (16, 8, 4, 2, 1):
        for i in range(st):
            k(f"v_add_f32 v{16+i}, v{16+i}, v{16+i+st}")
    k(f"""
    v_cvt_pk_bf16_f32 v13, v16, v16
    v_and_b32 v14, 0xffff0000, v13
    v_sub_f32 v14, v16, v14
    v_cvt_pk_bf16_f32 v14, v14, v14
    v_and_b32 v13, 0xffff, v13
    v_and_b32 v14, 0xffff0000, v14
    v_or_b32 v13, v13, v14
    s_mul_i32 s21, s20, {4608*4}
    s_lshl_b32 s22, s18, 8
    s_add_u32 s21, s21, s22
    s_add_u32 s21, s21, {WS_CS}
    buffer_store_dword v13, v12, s[12:15], s21 offen
    s_branch L{name}_end
    """)

def cmul(k, dr, di, ar, ai, br, bi):
    k(f"v_mul_f32 v{dr}, v{ar}, v{br}")
    k(f"v_mul_f32 v{di}, v{ar}, v{bi}")
    k(f"v_fma_f32 v{dr}, -v{ai}, v{bi}, v{dr}")
    k(f"v_fma_f32 v{di}, v{ai}, v{br}, v{di}")

def role_C(k, name):
    TP = 544; TA = 0; TB = 16*TP; KT = TB + 41*TP
    assert KT + 2101*4 <= K1_LDS, KT + 2101*4
    k(f"""
    s_load_dwordx4 s[4:7], s[0:1], 8
    s_load_dwordx4 s[24:27], s[0:1], 24
    s_load_dwordx2 s[28:29], s[0:1], 40         ; log_dt
    s_load_dwordx2 s[30:31], s[0:1], 104        ; ws
    s_sub_u32 s16, s2, {NA+NB}                  ; d
    v_and_b32 v1, 63, v0                        ; lane
    v_lshrrev_b32 v2, 6, v0                     ; wave
    v_and_b32 v3, 1, v2
    v_lshl_add_u32 v4, v3, 6, v1                ; n
    v_lshlrev_b32 v5, 1, v4                     ; n*2
    v_xor_b32 v6, 128, v5
    v_readfirstlane_b32 s17, v2
    s_lshl_b32 s18, s16, 8                      ; d*256
    s_lshl_b32 s19, s16, 1
    v_mov_b32 v7, s19
    s_waitcnt lgkmcnt(0)
    """)
    srd(k, 8, 4, 5, 576*256)
    srd(k, 12, 6, 7, 576*256)
    srd(k, 32, 24, 25, 576*256)
    srd(k, 36, 26, 27, 576*256)
    srd(k, 40, 28, 29, 576*2)
    srd(k, 44, 30, 31, WS_END)
    k("""
    buffer_load_ushort v8, v5, s[8:11], s18 offen
    buffer_load_ushort v9, v5, s[12:15], s18 offen
    buffer_load_ushort v10, v5, s[32:35], s18 offen
    buffer_load_ushort v11, v5, s[36:39], s18 offen
    buffer_load_ushort v12, v6, s[32:35], s18 offen
    buffer_load_ushort v13, v6, s[36:39], s18 offen
    buffer_load_ushort v14, v7, s[40:43], 0 offen
    s_waitcnt vmcnt(0)
    """)
    for r in (8, 9, 10, 11, 12, 13, 14): k(f"v_lshlrev_b32 v{r}, 16, v{r}")
    k(f"""
    v_mul_f32 v14, {f2u(LOG2E):#x}, v14
    v_mul_f32 v8, {f2u(LOG2E):#x}, v8
    v_exp_f32 v14, v14
    v_exp_f32 v8, v8
    v_add_f32 v15, |v10|, |v11|
    v_add_f32 v16, |v12|, |v13|
    v_add_f32 v15, v15, v16
    """)
    bf16r(k, 14, 14)
    bf16r(k, 8, 8)
    k("""
    s_nop 1
    v_add_f32_dpp v15, v15, v15 quad_perm:[1,0,3,2] row_mask:0xf bank_mask:0xf
    s_nop 1
    v_add_f32_dpp v15, v15, v15 quad_perm:[2,3,0,1] row_mask:0xf bank_mask:0xf
    s_nop 1
    v_add_f32_dpp v15, v15, v15 row_half_mirror row_mask:0xf bank_mask:0xf
    s_nop 1
    v_add_f32_dpp v15, v15, v15 row_mirror row_mask:0xf bank_mask:0xf
    s_nop 1
    v_readlane_b32 s20, v15, 0
    v_readlane_b32 s21, v15, 16
    v_readlane_b32 s22, v15, 32
    v_readlane_b32 s23, v15, 48
    s_nop 1
    v_mov_b32 v15, s20
    v_add_f32 v15, s21, v15
    v_add_f32 v15, s22, v15
    v_add_f32 v15, s23, v15
    v_mul_f32 v15, v15, v14
    v_add_f32 v15, v15, v15
    v_frexp_exp_i32_f32 v16, v15                 ; e
    v_sub_u32 v17, 13, v16                       ; 13-e
    v_mov_b32 v18, 1.0
    v_ldexp_f32 v19, v18, v17                    ; S = 2^(13-e)
    v_sub_u32 v17, 0, v17
    v_ldexp_f32 v20, v18, v17                    ; 1/S
    """)
    k(f"""
    v_mul_f32 v8, v8, v14
    v_mul_f32 v9, v9, v14
    v_mul_f32 v8, {f2u(-LOG2E):#x}, v8           ; alpha
    v_mul_f32 v9, 0.15915494, v9
    """)
    AL, BE = 8, 9
    def direct(dr, di, p, t0=21, t1=22):
        k(f"""
        v_mul_f32 v{t0}, {f2u(float(p)):#x}, v{AL}
        v_mul_f32 v{t1}, {f2u(float(p)):#x}, v{BE}
        v_exp_f32 v{t0}, v{t0}
        v_fract_f32 v{t1}, v{t1}
        s_nop 0
        v_cos_f32 v{dr}, v{t1}
        v_sin_f32 v{di}, v{t1}
        s_nop 0
        v_mul_f32 v{dr}, v{dr}, v{t0}
        v_mul_f32 v{di}, v{di}, v{t0}
        """)
    k("v_lshlrev_b32 v23, 2, v4")
    def put(tab, row, re, im, neg=False, tmp=24):
        if neg: k(f"v_cvt_pk_f16_f32 v{tmp}, v{re}, -v{im}")
        else: k(f"v_cvt_pk_f16_f32 v{tmp}, v{re}, v{im}")
        k(f"ds_write_b32 v23, v{tmp} offset:{tab + row*TP}")
    k(f"s_cmp_ge_u32 s17, 2\ns_cbranch_scc1 L{name}_C_part1")
    direct(30, 31, 1); direct(32, 33, 16)
    k("""
    v_mul_f32 v25, v19, v14
    v_add_f32 v25, v25, v25
    v_mul_f32 v34, v10, v25
    v_mul_f32 v35, v11, v25
    v_mov_b32 v38, 1.0
    v_mov_b32 v39, 0
    """)
    fr, fi, er, ei = 34, 35, 38, 39
    for r in range(16):
        put(TA, r, fr, fi, neg=True, tmp=24)
        put(TB, r, er, ei, tmp=26)
        if r < 15:
            nf = 36 if fr == 34 else 34; ne = 40 if er == 38 else 38
            cmul(k, nf, nf+1, fr, fi, 32, 33)
            cmul(k, ne, ne+1, er, ei, 30, 31)
            fr, fi, er, ei = nf, nf+1, ne, ne+1
    k(f"s_branch L{name}_C_join")
    k.label(f"L{name}_C_part1")
    direct(30, 31, 2); direct(32, 33, 256)
    cmul(k, 34, 35, 30, 31, 30, 31)
    cmul(k, 36, 37, 34, 35, 34, 35)
    cmul(k, 38, 39, 32, 33, 32, 33)
    cmul(k, 40, 41, 38, 39, 38, 39)
    cmul(k, 42, 43, 40, 41, 40, 41)
    put(TB, 40, 42, 43)
    cr_, ci_ = 32, 33
    put(TB, 16, cr_, ci_)
    for c in range(1, 8):
        n_ = 44 if cr_ != 44 else 46
        cmul(k, n_, n_+1, cr_, ci_, 30, 31); cr_, ci_ = n_, n_+1
        put(TB, 16 + c, cr_, ci_, tmp=24 + 2*(c & 1))
    cmul(k, 48, 49, 38, 39, 32, 33)
    for base, (b0, b1) in ((24, (38, 39)), (28, (48, 49))):
        cr_, ci_ = b0, b1
        put(TB, base, cr_, ci_)
        for c in range(1, 4):
            n_ = 44 if cr_ != 44 else 46
            cmul(k, n_, n_+1, cr_, ci_, 34, 35); cr_, ci_ = n_, n_+1
            put(TB, base + c, cr_, ci_, tmp=24 + 2*(c & 1))
    cr_, ci_ = 40, 41
    for g in range(4):
        put(TB, 32 + 2*g, cr_, ci_)
        cmul(k, 50, 51, cr_, ci_, 36, 37)
        put(TB, 32 + 2*g + 1, 50, 51, tmp=26)
        if g < 3:
            n_ = 44 if cr_ != 44 else 46
            cmul(k, n_, n_+1, cr_, ci_, 32, 33); cr_, ci_ = n_, n_+1
    k.label(f"L{name}_C_join")
    k("s_waitcnt lgkmcnt(0)\ns_barrier")
    k(f"""
    s_cmp_ge_u32 s17, 3
    s_cbranch_scc1 L{name}_C_skipmm
    v_and_b32 v24, 15, v1                         ; r / col
    v_lshrrev_b32 v25, 4, v1                      ; q
    v_mul_u32_u24 v26, {TP}, v24
    v_lshl_add_u32 v26, v25, 4, v26
    s_mul_i32 s20, s17, {16*TP}
    v_add_u32 v27, s20, v26
    """)
    for t in range(8):
        k(f"ds_read_b128 v[{32+8*t}:{32+8*t+3}], v26 offset:{TA + 64*t}")
        k(f"ds_read_b128 v[{36+8*t}:{36+8*t+3}], v27 offset:{TB + 64*t}")
        if t == 6: k("s_waitcnt lgkmcnt(8)")
    for t in range(8):
        k(f"s_waitcnt lgkmcnt({min(15, 2*(7-t))})")
        C = "0" if t == 0 else "v[28:31]"
        k(f"v_mfma_f32_16x16x32_f16 v[28:31], v[{32+8*t}:{32+8*t+3}], v[{36+8*t}:{36+8*t+3}], {C}")
    k(f"""
    v_mov_b32 v32, v24                            ; tile0
    s_cmp_eq_u32 s17, 0
    s_cbranch_scc1 L{name}_C_oready
    s_cmp_eq_u32 s17, 1
    s_cbranch_scc0 L{name}_C_t2
    v_lshlrev_b32 v33, 1, v24
    v_add_u32 v33, 256, v33                       ; 256+2col
    v_and_b32 v34, 3, v24
    v_lshlrev_b32 v34, 2, v34
    v_bfe_u32 v35, v24, 2, 1
    v_lshlrev_b32 v35, 8, v35
    v_add_u32 v34, v34, v35
    v_add_u32 v34, 512, v34
    v_cmp_gt_u32 vcc, 8, v24
    s_nop 1
    v_cndmask_b32 v32, v34, v33, vcc
    s_branch L{name}_C_oready
    """)
    k.label(f"L{name}_C_t2")
    k(f"""
    v_lshrrev_b32 v33, 1, v24
    v_lshlrev_b32 v33, 8, v33
    v_and_b32 v34, 1, v24
    v_lshl_add_u32 v33, v34, 3, v33
    v_add_u32 v33, 1024, v33
    v_cmp_gt_u32 vcc, 9, v24
    v_mov_b32 v34, 2052
    s_nop 0
    v_cndmask_b32 v32, v34, v33, vcc
    """)
    k.label(f"L{name}_C_oready")
    k(f"""
    v_lshl_add_u32 v33, v25, 6, v32               ; 64q + o
    v_min_u32 v34, 2100, v33
    v_add_u32 v35, 16, v33
    v_min_u32 v35, 2100, v35
    v_add_u32 v36, 32, v33
    v_min_u32 v36, 2100, v36
    v_add_u32 v37, 48, v33
    v_min_u32 v37, 2100, v37
    v_lshlrev_b32 v34, 2, v34
    v_lshlrev_b32 v35, 2, v35
    v_lshlrev_b32 v36, 2, v36
    v_lshlrev_b32 v37, 2, v37
    s_nop 7
    ds_write_b32 v34, v28 offset:{KT}
    ds_write_b32 v35, v29 offset:{KT}
    ds_write_b32 v36, v30 offset:{KT}
    ds_write_b32 v37, v31 offset:{KT}
    """)
    k.label(f"L{name}_C_skipmm")
    for i in range(8):
        sh = {0: 0, 1: 1, 2: 2, 3: 2}.get(i, 3)
        r = 40 + i
        if sh == 0:
            k(f"v_lshlrev_b32 v{r}, 2, v0")
        else:
            k(f"""
            v_add_u32 v38, {256*i}, v0
            v_bfe_u32 v39, v38, {sh}, 1
            v_add_u32 v38, v38, v39
            v_add_u32 v38, {(1 << (sh-1)) - 1}, v38
            v_lshrrev_b32 v38, {sh}, v38
            v_lshlrev_b32 v{r}, {sh+2}, v38
            """)
    k("s_waitcnt lgkmcnt(0)\ns_barrier")
    for i in range(8):
        k(f"ds_read_b32 v{48+i}, v{40+i} offset:{KT}")
    k(f"""
    v_lshlrev_b32 v38, 1, v0
    s_lshl_b32 s20, s16, 12
    s_add_u32 s20, s20, {WS_KG}
    """)
    for i in range(8):
        k(f"s_waitcnt lgkmcnt({7-i})")
        k(f"v_cvt_f16_f32 v{48+i}, v{48+i}")
        k(f"buffer_store_short v{48+i}, v38, s[44:47], s20 offen offset:{512*i}")
    k(f"""
    v_cmp_eq_u32 vcc, 0, v0
    s_and_saveexec_b64 s[22:23], vcc
    s_cbranch_execz L{name}_end
    s_lshl_b32 s20, s16, 2
    s_add_u32 s20, s20, {WS_SC}
    v_mov_b32 v38, 0
    buffer_store_dword v20, v38, s[44:47], s20 offen
    """)

def gen_k1(name="k1_kernel"):
    k = K(name)
    k(f"""
    s_cmp_ge_u32 s2, {NA+NB+NC}
    s_cbranch_scc1 L{name}_end
    s_cmp_ge_u32 s2, {NA+NB}
    s_cbranch_scc1 L{name}_C
    s_cmp_ge_u32 s2, {NA}
    s_cbranch_scc1 L{name}_B
    """)
    role_A(k, name)
    k.label(f"L{name}_B")
    role_B(k, name)
    k.label(f"L{name}_C")
    role_C(k, name)
    k.label(f"L{name}_end")
    k("s_endpgm")
    return k
if __name__ == "__main__":
    from asmlib import build_file
    k = gen_k1()
    build_file("mb/k1.s", [(k, 104, 64, 104)], [("k1_kernel", NA+NB+NC, 256, K1_LDS)])
```

```python
from asmlib import K
from gen_k3 import WS_XT, WS_UT, WS_KG, WS_SC, WS_HT, WS_END, f2u
from gen_k1 import srd
UZ = 2560
UD = UZ
KB = UD + 5120
CS = 4416
RED = KB + 4*CS
K2_LDS = RED + 24*1024
def gen_k2(name="k2_kernel"):
    k = K(name)
    k(f"""
    s_cmp_ge_u32 s2, 576
    s_cbranch_scc1 L{name}_end
    s_load_dwordx2 s[4:5], s[0:1], 48          ; D_skip
    s_load_dwordx2 s[6:7], s[0:1], 104         ; ws
    v_and_b32 v1, 63, v0                       ; lane
    v_lshrrev_b32 v2, 6, v0                    ; wave
    v_lshlrev_b32 v3, 4, v1                    ; lane*16
    v_readfirstlane_b32 s16, v2
    s_and_b32 s17, s2, 7
    s_mul_i32 s17, s17, 72
    s_lshr_b32 s18, s2, 3
    s_add_u32 s17, s17, s18                    ; d
    s_waitcnt lgkmcnt(0)
    """)
    srd(k, 8, 6, 7, WS_END); srd(k, 12, 4, 5, 576*2)
    k(f"""
    s_mul_i32 s19, s17, 5120
    s_add_u32 s19, s19, {WS_UT}
    s_lshl_b32 s20, s16, 10
    s_add_u32 s21, s19, s20
    s_add_u32 m0, s20, {UD}
    s_lshl_b32 s22, s17, 12
    s_add_u32 s22, s22, {WS_KG}
    buffer_load_dwordx4 v3, s[8:11], s21 offen lds
    s_add_u32 s22, s22, s20
    s_add_u32 m0, s20, {KB + 128}
    s_nop 0
    buffer_load_dwordx4 v3, s[8:11], s22 offen lds
    s_cmp_lg_u32 s16, 0
    s_cbranch_scc1 L{name}_nou4
    s_add_u32 s21, s19, 4096
    s_mov_b32 m0, {UD + 4096}
    s_nop 0
    buffer_load_dwordx4 v3, s[8:11], s21 offen lds
    """)
    k.label(f"L{name}_nou4")
    k(f"""
    v_and_b32 v4, 15, v1                       ; a (or b)
    v_lshrrev_b32 v5, 4, v1                    ; q
    v_lshlrev_b32 v6, 7, v4                    ; a*128 bytes
    v_lshl_add_u32 v6, v5, 3, v6               ; + q*8
    s_lshl_b32 s23, s16, 5
    s_lshl_b32 s24, s17, 12
    s_add_u32 s24, s24, s23                    ; d*4096 + mb*32
    s_add_u32 s25, s24, {WS_XT}
    buffer_load_dwordx2 v[8:9], v6, s[8:11], s25 offen
    buffer_load_dwordx2 v[10:11], v6, s[8:11], s25 offen offset:2048
    s_lshl_b32 s26, s17, 1
    v_mov_b32 v7, s26
    buffer_load_ushort v12, v7, s[12:15], 0 offen     ; D_skip[d]
    s_lshl_b32 s26, s17, 2
    s_add_u32 s26, s26, {WS_SC}
    v_mov_b32 v7, 0
    buffer_load_dword v13, v7, s[8:11], s26 offen     ; unscale
    """)
    k(f"""
    v_mov_b32 v16, 0
    v_mov_b32 v17, 0
    v_mov_b32 v18, 0
    v_mov_b32 v19, 0
    v_lshlrev_b32 v14, 4, v0                   ; tid*16
    v_cmp_gt_u32 vcc, 160, v0
    s_and_saveexec_b64 s[28:29], vcc
    ds_write_b128 v14, v[16:19]
    s_mov_b64 exec, s[28:29]
    v_cmp_gt_u32 vcc, 32, v0
    v_lshrrev_b32 v15, 3, v0                   ; copy
    v_mul_u32_u24 v15, {CS}, v15
    v_and_b32 v20, 7, v0
    v_lshl_add_u32 v15, v20, 4, v15
    s_and_saveexec_b64 s[28:29], vcc
    ds_write_b128 v15, v[16:19] offset:{KB}
    s_mov_b64 exec, s[28:29]
    s_waitcnt vmcnt(0) lgkmcnt(0)
    s_barrier
    """)
    k(f"""
    ds_read_b128 v[24:27], v14 offset:{KB + 128}
    ds_read_b64 v[22:23], v14 offset:{KB + 120}
    s_waitcnt lgkmcnt(0)
    v_alignbit_b32 v28, v23, v22, 16           ; o(-1) = (K[8t-3],K[8t-2])
    v_alignbit_b32 v29, v24, v23, 16           ; o0 = (K[8t-1],K[8t])
    v_alignbit_b32 v30, v25, v24, 16
    v_alignbit_b32 v31, v26, v25, 16
    v_alignbit_b32 v32, v27, v26, 16           ; o3 = (K[8t+5],K[8t+6])
    v_mov_b32 v36, v29
    v_mov_b32 v37, v30
    v_mov_b32 v38, v31
    v_mov_b32 v39, v32
    v_mov_b32 v40, v23
    v_mov_b32 v41, v24
    v_mov_b32 v42, v25
    v_mov_b32 v43, v26
    ds_write_b128 v14, v[28:31] offset:{KB + 3*CS + 128}
    ds_write_b128 v14, v[36:39] offset:{KB + 1*CS + 128}
    ds_write_b128 v14, v[40:43] offset:{KB + 2*CS + 128}
    s_waitcnt lgkmcnt(0)
    s_barrier
    """)
    k(f"""
    v_bfe_u32 v14, v1, 2, 2                    ; r'
    v_mul_u32_u24 v14, {CS}, v14
    v_and_b32 v15, 3, v1
    v_lshl_add_u32 v14, v15, 3, v14            ; + 8c
    v_lshlrev_b32 v15, 4, v5                   ; 16q
    v_sub_u32 v14, v14, v15                    ; - 16q
    s_lshl_b32 s27, s16, 9                     ; 32*16w
    s_add_u32 s27, s27, {KB + 128 - 64 - 8}    ; tau=16w-2 -> -64 ; i=1 -> -8
    v_add_u32 v14, s27, v14
    v_mul_u32_u24 v15, 160, v4
    v_lshl_add_u32 v15, v5, 4, v15
    s_mul_i32 s27, s16, {4*160}
    s_sub_u32 s27, {UD - 3*160}, s27
    v_add_u32 v15, s27, v15
    """)
    ACC = 16
    BSET = [48, 64]
    A1, A2 = 80, 120
    def loads(si):
        L = []
        for na in range(2):
            for kk in range(2):
                r = BSET[si & 1] + 4*(2*na + kk)
                L.append(f"ds_read_b128 v[{r}:{r+3}], v15 offset:{(16*na + 3 - si)*160 + 64*kk}")
        lo = 0 if si == 0 else 4*si + 2
        for ta in range(lo, 4*si + 6):
            for rng in range(2):
                base = (A1 if rng == 0 else A2) + 4*(ta % 10)
                for i in range(2):
                    L.append(f"ds_read_b64_tr_b16 v[{base+2*i}:{base+2*i+1}], v14 offset:{32*ta + 8*(1-i) + (2048 if rng else 0)}")
        return L
    L0 = loads(0)
    for n, l in enumerate(L0):
        k(l)
        if n in (11, 19): k("s_waitcnt lgkmcnt(4)")
    first = {}
    for si in range(4):
        k("s_waitcnt lgkmcnt(0)")
        nxt = loads(si + 1) if si < 3 else []
        mm = []
        Bb = BSET[si & 1]
        for kk in range(2):
            for mb in range(4):
                ta = 4*si + 2 + mb - 2*kk
                for rng, na, bsel in ((0, 0, 0), (0, 1, 1), (1, 1, 0)):
                    acc = ACC + 8*mb + 4*na
                    A = (A1 if rng == 0 else A2) + 4*(ta % 10)
                    B = Bb + 4*(2*bsel + kk)
                    C = f"v[{acc}:{acc+3}]" if (mb, na) in first else "0"
                    first[(mb, na)] = 1
                    mm.append(f"v_mfma_f32_16x16x32_f16 v[{acc}:{acc+3}], v[{A}:{A+3}], v[{B}:{B+3}], {C}")
        issued = 0
        for n, m in enumerate(mm):
            k(m)
            if nxt and issued < len(nxt):
                k(nxt[issued]); issued += 1
                if issued == 12: k("s_waitcnt lgkmcnt(6)")
        assert issued == len(nxt), (issued, len(nxt))
    k(f"""
    s_nop 7
    v_lshlrev_b32 v14, 4, v1
    s_mul_i32 s27, s16, {6*1024}
    v_add_u32 v14, s27, v14
    """)
    for mb in range(4):
        k(f"s_cmp_eq_u32 s16, {mb}\ns_cbranch_scc1 L{name}_skw{mb}")
        k(f"s_sub_u32 s28, {mb + 3}, s16\ns_and_b32 s28, s28, 3\ns_lshl_b32 s28, s28, 11\nv_add_u32 v15, s28, v14")
        for na in range(2):
            acc = ACC + 8*mb + 4*na
            k(f"ds_write_b128 v15, v[{acc}:{acc+3}] offset:{RED + na*1024}")
        k.label(f"L{name}_skw{mb}")
    k("s_waitcnt lgkmcnt(0)\ns_barrier")
    for mb in range(4):
        k(f"s_cmp_lg_u32 s16, {mb}\ns_cbranch_scc1 L{name}_mv{mb}")
        for i in range(8): k(f"v_mov_b32 v{48+i}, v{ACC+8*mb+i}")
        k.label(f"L{name}_mv{mb}")
    k("v_lshlrev_b32 v14, 4, v1")
    for t in range(3):
        k(f"""
        s_sub_u32 s28, s16, {1+t}
        s_and_b32 s28, s28, 3
        s_mul_i32 s28, s28, {6*1024}
        s_add_u32 s28, s28, {t*2048}
        v_add_u32 v15, s28, v14
        ds_read_b128 v[{56+8*t}:{56+8*t+3}], v15 offset:{RED}
        ds_read_b128 v[{60+8*t}:{60+8*t+3}], v15 offset:{RED+1024}
        """)
    k(f"""
    v_mul_u32_u24 v15, 160, v4
    v_lshl_add_u32 v15, v5, 3, v15
    v_add_u32 v15, s23, v15
    ds_read_b64 v[80:81], v15 offset:{UD}
    ds_read_b64 v[82:83], v15 offset:{UD + 16*160}
    s_waitcnt lgkmcnt(0)
    v_lshlrev_b32 v12, 16, v12                 ; D_skip
    """)
    for t in range(3):
        for i in range(8):
            k(f"v_add_f32 v{48+i}, v{48+i}, v{56+8*t+i}")
    for na in range(2):
        Y = 48 + 4*na
        for p in range(2):
            y0, y1 = Y + 2*p, Y + 2*p + 1
            ur = 80 + 2*na + p; xr = 8 + 2*na + p
            k(f"""
            v_mul_f32 v{y0}, v{y0}, v13
            v_mul_f32 v{y1}, v{y1}, v13
            v_cvt_pk_bf16_f32 v84, v{y0}, v{y1}
            v_cvt_f32_f16 v85, v{ur}
            v_cvt_f32_f16_sdwa v86, v{ur} dst_sel:DWORD dst_unused:UNUSED_PAD src0_sel:WORD_1
            v_mul_f32 v85, v85, v12
            v_mul_f32 v86, v86, v12
            v_cvt_pk_bf16_f32 v85, v85, v86
            v_lshlrev_b32 v86, 16, v84
            v_and_b32 v84, 0xffff0000, v84
            v_lshlrev_b32 v87, 16, v85
            v_and_b32 v85, 0xffff0000, v85
            v_add_f32 v86, v86, v87
            v_add_f32 v84, v84, v85
            v_cvt_pk_bf16_f32 v84, v86, v84                ; y+skip
            v_lshlrev_b32 v86, 16, v84
            v_and_b32 v84, 0xffff0000, v84
            v_lshlrev_b32 v87, 16, v{xr}
            v_and_b32 v85, 0xffff0000, v{xr}
            v_add_f32 v86, v86, v87
            v_add_f32 v84, v84, v85
            v_cvt_pk_bf16_f32 v{88 + 2*na + p}, v86, v84
            """)
    k(f"""
    s_add_u32 s25, s24, {WS_HT}
    buffer_store_dwordx2 v[88:89], v6, s[8:11], s25 offen
    buffer_store_dwordx2 v[90:91], v6, s[8:11], s25 offen offset:2048
    """)
    k.label(f"L{name}_end")
    k("s_endpgm")
    return k
if __name__ == "__main__":
    from asmlib import build_file
    from gen_k1 import gen_k1, NA, NB, NC, K1_LDS
    k1 = gen_k1(); k2 = gen_k2()
    build_file("mb/k12.s", [(k1, 104, 64, 104), (k2, 160, 64, 160)], [("k1_kernel", NA+NB+NC, 256, K1_LDS), ("k2_kernel", 576, 256, K2_LDS)])
```

```python
from asmlib import K
import math

WS_XT   = 0
WS_UT   = WS_XT + 576*4096
WS_KG   = WS_UT + 576*5120
WS_SC   = WS_KG + 576*4096
WS_HT   = WS_SC + 4096
WS_CS   = WS_HT + 576*2048*2
WS_PART = WS_CS + 65536
WS_DBG  = WS_PART + 16*2048*576*2
WS_END  = WS_DBG + 1024*256
WS_BYTES = 268435456

SLOT = 36864
NST1 = 18
NST2 = 9
NST = NST1 + NST2

K0C = -2.0*math.log2(math.e)*math.sqrt(2.0/math.pi)
K1C = K0C*0.044715

import struct
def f2u(x): return struct.unpack("<I", struct.pack("<f", x))[0]

class VmTracker:
    def __init__(self, maxcnt): self.q = []; self.maxcnt = maxcnt; self.done = 0
    def issue(self, tag): self.q.append(tag)
    def need(self, tag):
        last = -1
        for i, t in enumerate(self.q):
            if t == tag: last = i
        assert last >= 0, tag
        if last < self.done: return None
        n = len(self.q) - 1 - last
        self.done = last + 1
        assert n <= self.maxcnt, (tag, n)
        return n

def gen_k3(name="k3_kernel", LA=6, RING=8, opts=None):
    opts = opts or {}
    k = K(name)
    vm = VmTracker(63); lg = VmTracker(15)
    ACC = [0+0, 64]
    vACC = [48, 112]
    vH = 176
    vT = 248
    vLANE = 0
    vDA = [1, 2, 3, 4]
    vDH = [5, 6, 7, 8]
    vDD = [9, 10, 11, 12]
    vLF = [13, 14]
    vLH = 15
    vLD = [16, 17]
    vRA = [18, 19]
    vC0, vC1, vS2 = 20, 21, 22
    vST = 23
    vX = [24, 25, 26, 27]
    vTMP = list(range(28, 48))
    aX = 0; aR = 144; aCS = 176; aBM0 = 196; aBM1 = 200
    sWM = 8
    sWD = 12
    sWS = 16
    sW, sJ, sMT = 20, 21, 22
    sW1F, sW1H = 23, 24
    sM1 = 25
    sD = [26, 27, 28]
    sMD = [29, 30, 31]
    sSO = 32
    sPART = 33
    sXO, sMX = 34, 35
    sT0, sT1, sT2, sT3 = 36, 37, 38, 39

    nst = [0]
    def stamp():
        if not opts.get("stamps"): return
        k("s_memrealtime s[60:61]" if opts.get("rt") else "s_memtime s[60:61]")
        k("s_waitcnt lgkmcnt(0)")
        k(f"s_mov_b32 s{62 + nst[0]}, s60")
        lg.done = len(lg.q)
        nst[0] += 1
    k(f"""
    s_cmp_ge_u32 s2, 256
    s_cbranch_scc1 L{name}_end
    s_load_dwordx4 s[4:7], s[0:1], 64
    s_load_dwordx2 s[40:41], s[0:1], 80        ; w_down
    s_load_dwordx2 s[42:43], s[0:1], 104       ; ws
    v_lshrrev_b32 v{vTMP[0]}, 6, v0
    v_and_b32 v{vLANE}, 63, v0
    s_nop 0
    v_readfirstlane_b32 s{sW}, v{vTMP[0]}
    s_and_b32 s{sT0}, s2, 7
    s_lshr_b32 s{sT1}, s2, 3
    s_and_b32 s{sT2}, s{sT1}, 1                 ; parity
    s_lshl_b32 s{sJ}, s{sT0}, 1
    s_add_u32 s{sJ}, s{sJ}, s{sT2}              ; split j
    s_lshr_b32 s{sMT}, s{sT1}, 1                ; m tile
    s_waitcnt lgkmcnt(0)
    s_cmp_ge_u32 s{sW}, 2
    s_cselect_b32 s{sWM}, s6, s4
    s_cselect_b32 s{sWM+1}, s7, s5
    s_mov_b32 s{sWM+2}, {576*4608*2}
    s_mov_b32 s{sWM+3}, 0x20000
    s_mov_b32 s{sWD}, s40
    s_mov_b32 s{sWD+1}, s41
    s_mov_b32 s{sWD+2}, {4608*576*2}
    s_mov_b32 s{sWD+3}, 0x20000
    s_mov_b32 s{sWS}, s42
    s_mov_b32 s{sWS+1}, s43
    s_mov_b32 s{sWS+2}, {WS_END}
    s_mov_b32 s{sWS+3}, 0x20000
    """)
    if opts.get("stamps"):
        k("s_memrealtime s[96:97]")
    stamp()
    t0, t1, t2, t3 = vTMP[0:4]
    k(f"""
    v_lshrrev_b32 v{t0}, 4, v{vLANE}            ; row
    v_and_b32 v{t1}, 15, v{vLANE}
    v_lshlrev_b32 v{t2}, 2, v{t0}
    v_xor_b32 v{t1}, v{t1}, v{t2}               ; pi
    v_lshlrev_b32 v{t1}, 4, v{t1}
    v_lshlrev_b32 v{t0}, 12, v{t0}              ; row*4096
    v_add_u32 v{vX[0]}, v{t0}, v{t1}
    v_add_u32 v{vX[1]}, {4*4096-1024}, v{vX[0]}
    v_add_u32 v{vX[2]}, {2*(4*4096-1024)}, v{vX[0]}
    v_add_u32 v{vX[3]}, {3*(4*4096-1024)}, v{vX[0]}
    s_mul_i32 s{sXO}, s{sW}, {36*4096}
    s_lshl_b32 s{sT0}, s{sMT}, 8
    s_add_u32 s{sXO}, s{sXO}, s{sT0}
    s_add_u32 s{sXO}, s{sXO}, {WS_HT}
    s_mul_i32 s{sMX}, s{sW}, {36*256}
    """)
    def dma(voff, srd, i):
        off = f" offset:{i*1024}" if i else ""
        return f"buffer_load_dwordx4 v{voff}, s[{srd}:{srd+3}], s{sSO} offen{off} lds"
    for q in range(4):
        for u, cnt in ((0, 4), (1, 4), (2, 1)):
            k(f"s_add_u32 s{sSO}, s{sXO}, {144*q*4096 + u*16*4096}")
            k(f"s_add_u32 m0, s{sMX}, {q*SLOT + u*4096}")
            k("s_nop 0")
            for i in range(cnt):
                k(dma(vX[i], sWS, i)); vm.issue(("X", q))
    k(f"""
    v_and_b32 v{t0}, 31, v{vLANE}
    v_lshlrev_b32 v{t0}, 2, v{t0}               ; (lane&31)*4
    s_and_b32 s{sT2}, s{sJ}, 1                  ; parity
    s_mul_i32 s{sT0}, s{sJ}, 288                ; F0
    s_lshl_b32 s{sT1}, s{sT2}, 5
    s_add_u32 s{sT1}, s{sT0}, s{sT1}
    s_xor_b32 s{sT3}, s{sT2}, 1
    s_lshl_b32 s{sT3}, s{sT3}, 8
    s_add_u32 s{sT3}, s{sT0}, s{sT3}
    s_lshl_b32 s44, s{sT1}, 2
    s_add_u32 s44, s44, {WS_CS}
    s_lshl_b32 s45, s{sT3}, 2
    s_add_u32 s45, s45, {WS_CS}
    """)
    for t in range(9):
        for mat in range(2):
            idx = 2*t + mat
            if t < 8:
                k(f"s_add_u32 s{sSO}, s44, {mat*4608*4 + t*128}")
            else:
                k(f"s_add_u32 s{sSO}, s45, {mat*4608*4}")
            k(f"buffer_load_dword a{aCS+idx}, v{t0}, s[{sWS}:{sWS+3}], s{sSO} offen"); vm.issue("CS")
    k(f"""
    s_and_b32 s46, s{sW}, 1
    s_lshr_b32 s47, s{sW}, 1
    s_mul_i32 s{sW1F}, s46, {72*9216}
    s_lshl_b32 s48, s{sT1}, 1
    s_add_u32 s{sW1F}, s{sW1F}, s48             ; (72*(w&1))*9216 + FG0*2
    s_mul_i32 s{sW1H}, s46, {144*9216}
    s_lshl_b32 s48, s{sT3}, 1
    s_add_u32 s{sW1H}, s{sW1H}, s48             ; (144*(w&1))*9216 + FH*2
    s_mul_i32 s{sM1}, s47, 18432
    s_mul_i32 s48, s46, 9216
    s_add_u32 s{sM1}, s{sM1}, s48
    """)
    for u, dl in enumerate((0, 32, 40)):
        k(f"""
        s_mul_i32 s48, s{sW}, 72
        s_add_u32 s48, s48, {dl}
        s_lshl_b32 s{sMD[u]}, s48, 7
        s_lshl_b32 s49, s{sT2}, 5
        s_add_u32 s48, s48, s49
        s_cmp_ge_u32 s48, 288
        s_cselect_b32 s49, 288, 0
        s_sub_u32 s48, s48, s49
        s_add_u32 s48, s48, s{sT0}
        s_mul_i32 s{sD[u]}, s48, 1152
        """)
    k(f"""
    s_lshl_b32 s48, s{sJ}, 4
    s_add_u32 s48, s48, s{sMT}
    s_lshl_b32 s48, s48, 2
    s_add_u32 s48, s48, s{sW}
    s_mul_i32 s{sPART}, s48, {18*2048}
    s_add_u32 s{sPART}, s{sPART}, {WS_PART}
    v_lshlrev_b32 v{vST}, 4, v{vLANE}
    """)
    k(f"""
    v_lshrrev_b32 v{t0}, 3, v{vLANE}            ; row
    v_and_b32 v{t1}, 7, v{vLANE}
    v_bfe_u32 v{t2}, v{vLANE}, 4, 1
    v_lshlrev_b32 v{t2}, 2, v{t2}
    v_xor_b32 v{t1}, v{t1}, v{t2}
    v_lshlrev_b32 v{t1}, 4, v{t1}               ; pi*16
    v_mul_u32_u24 v{t2}, 9216, v{t0}
    v_add_u32 v{vDA[0]}, v{t2}, v{t1}
    v_mul_u32_u24 v{t2}, 1152, v{t0}
    v_add_u32 v{vDD[0]}, v{t2}, v{t1}
    v_lshrrev_b32 v{t0}, 2, v{vLANE}
    v_and_b32 v{t1}, 3, v{vLANE}
    v_lshlrev_b32 v{t1}, 4, v{t1}
    v_mul_u32_u24 v{t2}, 9216, v{t0}
    v_add_u32 v{vDH[0]}, v{t2}, v{t1}
    """)
    for i in range(1, 4):
        k(f"v_add_u32 v{vDA[i]}, {i*(8*9216-1024)}, v{vDA[0]}")
        k(f"v_add_u32 v{vDD[i]}, {i*(8*1152-1024)}, v{vDD[0]}")
        k(f"v_add_u32 v{vDH[i]}, {i*(16*9216-1024)}, v{vDH[0]}")
    k(f"""
    v_bfe_u32 v{t0}, v{vLANE}, 2, 2             ; r
    v_bfe_u32 v{t1}, v{vLANE}, 5, 1             ; khalf
    v_bfe_u32 v{t2}, v{vLANE}, 4, 1             ; half16
    v_and_b32 v{t3}, 3, v{vLANE}                ; c
    v_lshlrev_b32 v{t2}, 5, v{t2}               ; half16*32
    v_lshlrev_b32 v{t3}, 3, v{t3}               ; c*8
    v_add_u32 v{t2}, v{t2}, v{t3}               ; half16*32 + c*8      (t2)
    v_lshr_rev_dummy
    """.replace("v_lshr_rev_dummy", ""))
    t4, t5, t6 = vTMP[4:7]
    k(f"""
    v_lshrrev_b32 v{t3}, 1, v{t0}               ; (r>>1)&1
    v_lshlrev_b32 v{t3}, 6, v{t3}               ; *64                  (t3)
    v_lshlrev_b32 v{t4}, 3, v{t1}
    v_add_u32 v{t4}, v{t4}, v{t0}               ; 8*khalf + r          (t4)
    v_lshlrev_b32 v{t5}, 7, v{t4}
    v_add_u32 v{t5}, v{t5}, v{t2}
    v_add_u32 v{vLF[0]}, v{t5}, v{t3}
    v_xor_b32 v{vLF[1]}, 64, v{vLF[0]}
    v_lshlrev_b32 v{t5}, 6, v{t4}
    v_add_u32 v{vLH}, v{t5}, v{t2}
    v_lshlrev_b32 v{t5}, 2, v{t1}
    v_add_u32 v{t5}, v{t5}, v{t0}               ; 4*khalf + r
    v_lshlrev_b32 v{t5}, 7, v{t5}
    v_add_u32 v{t5}, v{t5}, v{t2}
    v_add_u32 v{vLD[0]}, v{t5}, v{t3}
    v_xor_b32 v{vLD[1]}, 64, v{vLD[0]}
    ; X read lane const: (8*khalf+r)*256 + ((w^r)*64) + half16*32 + c*8
    v_lshlrev_b32 v{t5}, 8, v{t4}
    v_add_u32 v{t5}, v{t5}, v{t2}
    v_xor_b32 v{t6}, s{sW}, v{t0}
    v_lshlrev_b32 v{t6}, 6, v{t6}
    v_add_u32 v{vTMP[7]}, v{t5}, v{t6}
    """)
    vXL = vTMP[7]
    def stage_info(i):
        if i < 16: return ("F", i // 4, i % 4)
        if i < 18: return ("H", 0, i - 16)
        return ("D", i - 18, 0)
    def dma_ops(i):
        ty, a, b = stage_info(i); slot = (i % 4) * SLOT
        items = []
        if ty == "F":
            for u, cnt in ((0, 4), (1, 4), (2, 1)):
                items.append(("s", [f"s_add_u32 s{sSO}, s{sW1F}, {(144*b + 32*u)*9216 + a*128}", f"s_add_u32 m0, s{sM1}, {slot + u*4096}"]))
                for j in range(cnt): items.append(("d", dma(vDA[j], sWM, j)))
        elif ty == "H":
            for u, cnt in ((0, 4), (1, 4), (2, 1)):
                items.append(("s", [f"s_add_u32 s{sSO}, s{sW1H}, {(288*b + 64*u)*9216}", f"s_add_u32 m0, s{sM1}, {slot + u*4096}"]))
                for j in range(cnt): items.append(("d", dma(vDH[j], sWM, j)))
        else:
            for u, cnt in ((0, 4), (1, 1), (2, 4)):
                items.append(("s", [f"s_add_u32 s{sSO}, s{sD[u]}, {a*128}", f"s_add_u32 m0, s{sMD[u]}, {slot}"]))
                for j in range(cnt): items.append(("d", dma(vDD[j], sWD, j)))
        return items
    def emit_dma_all(i):
        for kind, x in dma_ops(i):
            if kind == "s":
                for l in x: k(l)
                k("s_nop 0")
            else:
                k(x); vm.issue(("W", i))
    s1 = [vTMP[8], vTMP[9]]; s2 = [vTMP[10], vTMP[11]]; ones = vTMP[12]
    k(f"v_mov_b32 v{ones}, 0x3f803f80")
    for x in s1 + s2: k(f"v_mov_b32 v{x}, 0")
    tA = vTMP[13:17]
    for q in range(4):
        if opts.get("pstamps"): stamp()
        n = vm.need(("X", q)); k(f"s_waitcnt vmcnt({n})")
        k("s_barrier")
        if opts.get("pstamps"): stamp()
        if q >= 1: emit_dma_all(q - 1)
        k(f"v_add_u32 v{vRA[0]}, {q*SLOT}, v{vXL}")
        for s in range(9):
            for i in range(2):
                r = aX + 4*(9*q + s) + 2*i
                k(f"ds_read_b64_tr_b16 a[{r}:{r+1}], v{vRA[0]} offset:{s*4096 + i*1024}")
                if (2*s + i) % 8 == 7: k("s_waitcnt lgkmcnt(4)")
        k("s_waitcnt lgkmcnt(0)")
        if opts.get("pstamps"): stamp()
        for r in range(36):
            a = aX + 36*q + r; tv = tA[r % 4]
            k(f"v_accvgpr_read_b32 v{tv}, a{a}")
            if r >= 1:
                pv = tA[(r-1) % 4]
                k(f"v_dot2_f32_bf16 v{s1[(r-1)%2]}, v{pv}, v{ones}, v{s1[(r-1)%2]}")
                k(f"v_dot2_f32_bf16 v{s2[(r-1)%2]}, v{pv}, v{pv}, v{s2[(r-1)%2]}")
        pv = tA[35 % 4]
        k("s_nop 0")
        k(f"v_dot2_f32_bf16 v{s1[1]}, v{pv}, v{ones}, v{s1[1]}")
        k(f"v_dot2_f32_bf16 v{s2[1]}, v{pv}, v{pv}, v{s2[1]}")
    k("s_barrier")
    emit_dma_all(3)
    stamp()
    m, va, tb = vTMP[13], vTMP[14], vTMP[15]
    k(f"""
    s_nop 2
    v_add_f32 v{s1[0]}, v{s1[0]}, v{s1[1]}
    v_add_f32 v{s2[0]}, v{s2[0]}, v{s2[1]}
    v_mov_b32 v{s1[1]}, v{s1[0]}
    v_mov_b32 v{s2[1]}, v{s2[0]}
    s_nop 1
    v_permlane32_swap_b32 v{s1[0]}, v{s1[1]}
    v_permlane32_swap_b32 v{s2[0]}, v{s2[1]}
    s_nop 1
    v_add_f32 v{s1[0]}, v{s1[0]}, v{s1[1]}
    v_add_f32 v{s2[0]}, v{s2[0]}, v{s2[1]}
    v_mul_f32 v{m}, {f2u(1.0/576):#x}, v{s1[0]}          ; mean
    v_mul_f32 v{va}, {f2u(1.0/576):#x}, v{s2[0]}         ; E[x^2]
    v_fma_f32 v{va}, -v{m}, v{m}, v{va}                  ; var
    v_max_f32 v{va}, 0, v{va}
    v_cvt_pk_bf16_f32 v{tb}, v{m}, v{va}
    v_and_b32 v{va}, 0xffff0000, v{tb}
    v_add_f32 v{va}, {f2u(1e-5):#x}, v{va}
    v_cvt_pk_bf16_f32 v{va}, v{va}, v{va}
    v_and_b32 v{va}, 0xffff0000, v{va}
    v_sqrt_f32 v{va}, v{va}
    s_nop 0
    v_cvt_pk_bf16_f32 v{va}, v{va}, v{va}
    v_and_b32 v{va}, 0xffff0000, v{va}
    v_mul_f32 v{vS2}, v{va}, v{va}
    v_rcp_f32 v{va}, v{va}                               ; r
    s_nop 0
    v_mul_f32 v{vC0}, {f2u(K0C):#x}, v{va}
    v_mul_f32 v{vC1}, v{va}, v{va}
    v_mul_f32 v{vC1}, v{vC1}, v{va}
    v_mul_f32 v{vC1}, {f2u(K1C):#x}, v{vC1}
    v_and_b32 v{tb}, 0xffff, v{tb}
    v_xor_b32 v{tb}, 0x8000, v{tb}
    v_lshl_or_b32 v{tb}, v{tb}, 16, v{tb}
    v_cmp_gt_u32 vcc, 32, v{vLANE}
    s_nop 1
    v_cndmask_b32 v{tb}, 0, v{tb}, vcc
    v_mov_b32 v{m}, 0
    s_nop 0
    v_accvgpr_write_b32 a{aBM0}, v{tb}
    v_accvgpr_write_b32 a{aBM0+1}, v{m}
    v_accvgpr_write_b32 a{aBM0+2}, v{m}
    v_accvgpr_write_b32 a{aBM0+3}, v{m}
    v_accvgpr_write_b32 a{aBM1}, v{m}
    v_accvgpr_write_b32 a{aBM1+1}, v{tb}
    v_accvgpr_write_b32 a{aBM1+2}, v{m}
    v_accvgpr_write_b32 a{aBM1+3}, v{m}
    v_accvgpr_write_b32 a{aCS+18}, v{m}
    v_accvgpr_write_b32 a{aCS+19}, v{m}
    """)
    mf = []
    def acc_reg(stage, tile):
        ty, a, b = stage_info(stage)
        if ty == "F": return vACC[a % 2] + 16*tile
        if ty == "H": return vACC[0] + 16*tile
        return vACC[1] + 32*(a % 2) + 16*tile
    for st in range(NST):
        ty, a, b = stage_info(st)
        if ty == "F":
            for s in range(9):
                for tile in range(4):
                    ft, mat = tile >> 1, tile & 1
                    rd = [(ft, mat*18432 + s*2048 + i*512) for i in range(2)]
                    mf.append(dict(st=st, acc=acc_reg(st, tile), rd=rd, B=f"a[{aX+4*(9*b+s)}:{aX+4*(9*b+s)+3}]", first=(b == 0 and s == 0)))
            if b == 3:
                for tile in range(4):
                    ft, mat = tile >> 1, tile & 1
                    idx = 2*(2*a + ft) + mat
                    w0 = aCS + (idx & ~1); bm = aBM1 if idx & 1 else aBM0
                    mf.append(dict(st=st, acc=acc_reg(st, tile), rd=None, A=f"a[{w0}:{w0+3}]", B=f"a[{bm}:{bm+3}]", first=False))
        elif ty == "H":
            for s in range(18):
                for tile in range(2):
                    rd = [(0, tile*18432 + s*1024 + i*256) for i in range(2)]
                    mf.append(dict(st=st, acc=acc_reg(st, tile), rd=rd, B=f"a[{aX+4*(18*b+s)}:{aX+4*(18*b+s)+3}]", first=(b == 0 and s == 0)))
            if b == 1:
                for tile in range(2):
                    idx = 16 + tile
                    w0 = aCS + (idx & ~1); bm = aBM1 if idx & 1 else aBM0
                    mf.append(dict(st=st, acc=acc_reg(st, tile), rd=None, A=f"a[{w0}:{w0+3}]", B=f"a[{bm}:{bm+3}]", first=False))
        else:
            for s in range(18):
                for tile in range(2):
                    rd = [(tile, s*2048 + i*1024) for i in range(2)]
                    h = vH + 8*(s >> 1) + 4*(s & 1)
                    mf.append(dict(st=st, acc=acc_reg(st, tile), rd=rd, B=f"v[{h}:{h+3}]", first=(s == 0), needH=(s >> 1)))
    fi = 0
    for d in mf:
        if d["rd"] is not None:
            d["fr"] = fi; d["A"] = f"a[{aR+4*(fi % RING)}:{aR+4*(fi % RING)+3}]"; fi += 1
    frags = [d for d in mf if d["rd"] is not None]
    vRB = [[18, 19], [vTMP[18], vTMP[19]]]
    def base_setup(st):
        ty, a, b = stage_info(st); slot = (st % 4) * SLOT
        rb = vRB[st % 2]
        if ty == "F": return [f"v_add_u32 v{rb[0]}, {slot}, v{vLF[0]}", f"v_add_u32 v{rb[1]}, {slot}, v{vLF[1]}"]
        if ty == "H": return [f"v_add_u32 v{rb[0]}, {slot}, v{vLH}"]
        return [f"v_add_u32 v{rb[0]}, {slot}, v{vLD[0]}", f"v_add_u32 v{rb[1]}, {slot}, v{vLD[1]}"]
    def emit_reads(f):
        d = frags[f]; rb = vRB[d["st"] % 2]; r0 = aR + 4*(f % RING)
        for i, (sel, off) in enumerate(d["rd"]):
            if not opts.get("noread"): k(f"ds_read_b64_tr_b16 a[{r0+2*i}:{r0+2*i+1}], v{rb[sel]} offset:{off}")
            lg.issue(("f", f))
    def gelu_ops(buf, ntile_pairs, Hbase):
        ops = []
        pairs = [(ft, p) for ft in range(ntile_pairs) for p in range(8)]
        for n, (ft, p) in enumerate(pairs):
            T = vT + 4*(n % 2)
            a0 = buf + 32*ft + 2*p; a1 = a0 + 1; b0 = a0 + 16; b1 = a1 + 16
            x0, x1, y0, y1 = T, T+1, T+2, T+3
            ops += [(1, f"v_mul_f32 v{x0}, v{a0}, v{a0}"), (1, f"v_mul_f32 v{x1}, v{a1}, v{a1}"),
                    (1, f"v_fma_f32 v{x0}, v{x0}, v{vC1}, v{vC0}"), (1, f"v_fma_f32 v{x1}, v{x1}, v{vC1}, v{vC0}"),
                    (1, f"v_mul_f32 v{x0}, v{a0}, v{x0}"), (1, f"v_mul_f32 v{x1}, v{a1}, v{x1}"),
                    (2, f"v_exp_f32 v{x0}, v{x0}"), (2, f"v_exp_f32 v{x1}, v{x1}"),
                    (1, f"v_mul_f32 v{y0}, v{a0}, v{b0}"), (1, f"v_mul_f32 v{y1}, v{a1}, v{b1}"),
                    (1, f"v_fma_f32 v{x0}, v{x0}, v{vS2}, v{vS2}"), (1, f"v_fma_f32 v{x1}, v{x1}, v{vS2}, v{vS2}"),
                    (2, f"v_rcp_f32 v{x0}, v{x0}"), (2, f"v_rcp_f32 v{x1}, v{x1}"),
                    (1, "s_nop 0"),
                    (1, f"v_mul_f32 v{y0}, v{y0}, v{x0}"), (1, f"v_mul_f32 v{y1}, v{y1}, v{x1}"),
                    (1, f"v_cvt_pk_bf16_f32 v{Hbase + 8*ft + p}, v{y0}, v{y1}")]
        return ops
    def fix_gelu(ops):
        return [o for o in ops if o[1] != "s_nop 0"]
    def epi_ops(st):
        ty, a, b = stage_info(st)
        ops = []
        P = vACC[0]
        for tile in range(2):
            A = acc_reg(st, tile)
            for hf in range(2):
                q = P + 8*tile + 4*hf
                for d in range(4):
                    ops.append((1, f"v_cvt_pk_bf16_f32 v{q+d}, v{A+8*hf+2*d}, v{A+8*hf+2*d+1}"))
            for hf in range(2):
                q = P + 8*tile + 4*hf
                ops.append((1, "s_nop 1" if hf == 1 else "s_nop 0"))
                ops.append((1, f"v_permlane32_swap_b32 v{q}, v{q+2}"))
                ops.append((1, f"v_permlane32_swap_b32 v{q+1}, v{q+3}"))
            for hf in range(2):
                q = P + 8*tile + 4*hf
                nt = 2*a + tile
                ops.append((1, f"s_add_u32 s{sT0}, s{sPART}, {nt*2048 + hf*1024}"))
                ops.append((1, ("store", f"buffer_store_dwordx4 v[{q}:{q+3}], v{vST}, s[{sWS}:{sWS+3}], s{sT0} offen")))
        return ops

    n = vm.need("CS")
    n = vm.need(("W", 1))
    k(f"s_waitcnt vmcnt({n})")
    k("s_barrier")
    for l in base_setup(0): k(l)
    for l in base_setup(1): k(l)
    k("s_nop 0")
    for f in range(LA): emit_reads(f)

    fillers = []
    pace_total = 0
    dmaq = []
    cur_stage = -1
    nm = len(mf)
    i = 0
    credit = 0.0; rate = 0.0
    stage_first = {}
    for idx, d in enumerate(mf):
        stage_first.setdefault(d["st"], idx)
    stage_len = {st: sum(1 for d in mf if d["st"] == st) for st in range(NST)}
    H_ready_at = {}
    for idx, d in enumerate(mf):
        st = d["st"]; pos = idx - stage_first[st]
        if pos == 0:
            if not opts.get("pstamps") or st in (0, 1, 18, 26): stamp()
            ty, a, b = stage_info(st)
            if st >= 1:
                if st + 1 < NST:
                    n = vm.need(("W", st + 1))
                    if n is not None: k(f"s_waitcnt vmcnt({n})")
                k("s_barrier")
                if st + 3 < NST:
                    dmaq = dma_ops(st + 3); dma_stage = st + 3
            if ty == "F" and b == 0 and a >= 1:
                assert not fillers
                fillers = fix_gelu(gelu_ops(vACC[(a-1) % 2], 2, vH + 16*(a-1)))
                span = sum(stage_len[s] for s in range(st, st + 4)) - 6
                rate = sum(c for c, _ in fillers) / span; credit = -3*rate
            elif ty == "H" and b == 0:
                assert not fillers
                fillers = fix_gelu(gelu_ops(vACC[1], 2, vH + 48))
                span = stage_len[16] + stage_len[17] - 6
                rate = sum(c for c, _ in fillers) / span; credit = -3*rate
            elif ty == "D":
                if a == 0:
                    assert not fillers
                    fillers = fix_gelu(gelu_ops(vACC[0], 1, vH + 64))
                    span = 28; rate = sum(c for c, _ in fillers) / span; credit = -3*rate
                    gelu_last = True
                else:
                    assert not fillers, (st, len(fillers))
                    fillers = epi_ops(st - 1)
                    span = stage_len[st] - 8
                    rate = sum(c for c, _ in fillers) / span; credit = -3*rate
        if d.get("needH") == 8 and st == 18 and fillers:
            for c, l in fillers: k(l)
            fillers = []
            k("s_nop 1")
        if d["rd"] is not None:
            f = d["fr"]
            tgt = f + 1 if (f % 2 == 0 and f + 1 < len(frags)) else f
            n = lg.need(("f", tgt)) if (f % 2 == 0) else lg.need(("f", f))
            if n is not None: k(f"s_waitcnt lgkmcnt({n})")
        C = "0" if d["first"] else f"v[{d['acc']}:{d['acc']+15}]"
        k(f"v_mfma_f32_32x32x16_bf16 v[{d['acc']}:{d['acc']+15}], {d['A']}, {d['B']}, {C}")
        if opts.get("pad") and idx % opts["pad"][0] == 0: k(f"s_nop {opts['pad'][1]}")
        if pos == 8 and st + 1 < NST and st >= 1:
            for l in base_setup(st + 1): k(l)
        if d["rd"] is not None and d["fr"] + LA < len(frags):
            emit_reads(d["fr"] + LA)
        if dmaq and pos >= 1 and (pos % 2 == 1):
            while dmaq:
                kind, x = dmaq.pop(0)
                if kind == "s":
                    for l in x: k(l)
                    k("s_nop 0") if opts.get("nop_m0", True) else None
                else:
                    if not opts.get("nodma"): k(x)
                    vm.issue(("W", dma_stage)); break
        credit += rate
        while fillers and credit >= fillers[0][0]:
            c, l = fillers.pop(0); credit -= c
            if isinstance(l, tuple):
                k(l[1]); vm.issue("ST")
            else:
                if not (opts.get("nofill")): k(l)
    assert not fillers or True
    for c, l in fillers:
        if isinstance(l, tuple): k(l[1]); vm.issue("ST")
        else: k(l)
    k("s_nop 15")
    for c, l in epi_ops(NST - 1):
        if isinstance(l, tuple): k(l[1])
        else: k(l)
    k("s_waitcnt vmcnt(0)")
    stamp()
    if opts.get("stamps"):
        k("s_memrealtime s[98:99]")
        k("s_waitcnt lgkmcnt(0)")
        k("v_mov_b32 v1, 0")
        k("v_writelane_b32 v1, s96, 62")
        k("v_writelane_b32 v1, s98, 63")
        for i in range(nst[0]):
            k(f"v_writelane_b32 v1, s{62+i}, {i}")
        k(f"v_lshlrev_b32 v2, 2, v{vLANE}")
        k(f"s_lshl_b32 s60, s2, 2")
        k(f"s_add_u32 s60, s60, s{sW}")
        k(f"s_lshl_b32 s60, s60, 8")
        k(f"s_add_u32 s60, s60, {WS_DBG}")
        k(f"buffer_store_dword v1, v2, s[{sWS}:{sWS+3}], s60 offen")
        k("s_waitcnt vmcnt(0)")
    k.label(f"L{name}_end")
    k("s_endpgm")
    return k

if __name__ == "__main__":
    from asmlib import build_file
    import sys
    variants = {"k3": {}, "k3s": {"stamps":1}, "k3s_nodma": {"stamps":1,"nodma":1}, "k3s_nofill": {"stamps":1,"nofill":1},
                "k3s_noread": {"stamps":1,"noread":1}, "k3s_bare": {"stamps":1,"noread":1,"nofill":1,"nodma":1}, "k3p": {"stamps":1,"pstamps":1}, "k3rt": {"stamps":1,"rt":1}, "k3rt_bare": {"stamps":1,"rt":1,"noread":1,"nofill":1,"nodma":1},
                "k3rt_pad1": {"stamps":1,"rt":1,"pad":(1,1)}, "k3rt_pad2": {"stamps":1,"rt":1,"pad":(1,3)}, "k3s_pad1": {"stamps":1,"pad":(1,1)}, "k3s_pad2": {"stamps":1,"pad":(1,3)},
                "k3rt_nodma": {"stamps":1,"rt":1,"nodma":1}, "k3rt_nofill": {"stamps":1,"rt":1,"nofill":1}, "k3rt_noread": {"stamps":1,"rt":1,"noread":1},
                "k3rt_onlyread": {"stamps":1,"rt":1,"nofill":1,"nodma":1}, "k3rt_onlyfill": {"stamps":1,"rt":1,"noread":1,"nodma":1}}
    for nm, o in variants.items():
        k = gen_k3(opts=o)
        build_file(f"mb/{nm}.s", [(k, 512, 102, 256)], [("k3_kernel", 256, 256, 4*SLOT)])
        print(nm, len(k.lines))
```

```python
from asmlib import K
from gen_k3 import WS_HT, WS_PART, WS_END
PSZ = 2048*576*2
def gen_k4(name="k4_kernel"):
    k = K(name)
    k(f"""
    s_cmp_ge_u32 s2, 576
    s_cbranch_scc1 L{name}_end
    s_load_dwordx2 s[4:5], s[0:1], 88          ; out
    s_load_dwordx2 s[6:7], s[0:1], 104         ; ws
    v_lshrrev_b32 v1, 6, v0
    v_and_b32 v2, 63, v0                       ; lane
    s_nop 0
    v_readfirstlane_b32 s16, v1
    s_lshl_b32 s17, s2, 2
    s_add_u32 s17, s17, s16
    s_mul_hi_u32 s18, s17, 119304648           ; rowblk = q/36
    s_mul_i32 s19, s18, 36
    s_sub_u32 s19, s17, s19                    ; rem
    s_waitcnt lgkmcnt(0)
    s_mov_b32 s8, s6
    s_mov_b32 s9, s7
    s_mov_b32 s10, {WS_END}
    s_mov_b32 s11, 0x20000
    s_mov_b32 s12, s4
    s_mov_b32 s13, s5
    s_mov_b32 s14, {PSZ}
    s_mov_b32 s15, 0x20000
    v_lshlrev_b32 v3, 4, v2                    ; lane*16
    s_lshl_b32 s20, s17, 10
    s_add_u32 s20, s20, {WS_PART}
    """)
    for j in range(16):
        k(f"buffer_load_dwordx4 v[{16+4*j}:{16+4*j+3}], v3, s[8:11], s20 offen")
        if j < 15: k(f"s_add_u32 s20, s20, {PSZ}")
    k(f"""
    v_and_b32 v4, 31, v2
    v_lshrrev_b32 v5, 5, v2
    v_lshlrev_b32 v6, 15, v5                   ; 8*(lane>>5)*4096
    v_lshl_add_u32 v6, v4, 1, v6               ; + (lane&31)*2
    s_lshl_b32 s21, s18, 6                     ; 32*rowblk*2
    s_lshl_b32 s22, s19, 16                    ; 16*rem*4096
    s_add_u32 s21, s21, s22
    s_add_u32 s21, s21, {WS_HT}
    """)
    for i in range(8):
        k(f"buffer_load_ushort v{92+i}, v6, s[8:11], s21 offen")
        if i < 7: k("s_add_u32 s21, s21, 4096")
    k(f"""
    v_mul_u32_u24 v7, 1152, v4
    v_lshl_add_u32 v7, v5, 4, v7
    s_mul_i32 s23, s18, {32*1152}
    s_lshl_b32 s24, s19, 5
    s_add_u32 s23, s23, s24
    """)
    for j in range(16):
        k(f"s_waitcnt vmcnt({min(63, 15 - j + 8)})")
        for d in range(4):
            r = 16 + 4*j + d
            if j == 0:
                k(f"v_lshlrev_b32 v{80+2*d}, 16, v{r}")
                k(f"v_and_b32 v{81+2*d}, 0xffff0000, v{r}")
            else:
                k(f"v_lshlrev_b32 v12, 16, v{r}")
                k(f"v_and_b32 v13, 0xffff0000, v{r}")
                k(f"v_add_f32 v{80+2*d}, v{80+2*d}, v12")
                k(f"v_add_f32 v{81+2*d}, v{81+2*d}, v13")
    k("s_waitcnt vmcnt(0)")
    for d in range(4):
        k(f"""
        v_cvt_pk_bf16_f32 v12, v{80+2*d}, v{81+2*d}
        v_lshlrev_b32 v13, 16, v12
        v_and_b32 v12, 0xffff0000, v12
        v_lshlrev_b32 v14, 16, v{92+2*d}
        v_lshlrev_b32 v15, 16, v{93+2*d}
        v_add_f32 v13, v13, v14
        v_add_f32 v12, v12, v15
        v_cvt_pk_bf16_f32 v{88+d}, v13, v12
        """)
    k(f"""
    buffer_store_dwordx4 v[88:91], v7, s[12:15], s23 offen
    s_waitcnt vmcnt(0)
    """)
    k.label(f"L{name}_end")
    k("s_endpgm")
    return k
```

```python
import sys
from asmlib import build_file
from gen_k1 import gen_k1, NA, NB, NC, K1_LDS
from gen_k2 import gen_k2, K2_LDS
from gen_k3 import gen_k3, SLOT
from gen_k4 import gen_k4
HEADER = """; sequential_preLN -> S4D conv -> preLN -> GEGLU FFN, gfx950.  Generated by a hand-written generator (dev/gen_*.py).
"""
def build(fn, extra_empty=0, k3opts=None):
    k1 = gen_k1(); k2 = gen_k2(); k3 = gen_k3(opts=k3opts); k4 = gen_k4()
    ks = [(k1, 104, 64, 104), (k2, 160, 64, 160), (k3, 512, 102, 256), (k4, 104, 32, 104)]
    launches = [("k1_kernel", NA+NB+NC, 256, K1_LDS), ("k2_kernel", 576, 256, K2_LDS), ("k3_kernel", 256, 256, 4*SLOT), ("k4_kernel", 576, 256, 0)]
    if extra_empty:
        from asmlib import K
        e = K("e_kernel"); e("s_endpgm")
        ks.append((e, 8, 16, 8))
        launches = launches + [("e_kernel", 256, 64, 0)]*extra_empty
    build_file(fn, ks, launches, header=HEADER)
if __name__ == "__main__":
    build("sequential_preLN__ssm_conv_s4d__geglu_ffn__prompt.s")
    build("v_e2.s", extra_empty=2)
    build("v_e6.s", extra_empty=6)
```

```python
from asmlib import K
from gen_k3 import WS_XT, WS_UT, WS_KG, WS_SC, WS_CS, WS_END, f2u
import math
NA, NB, NC = 128, 144, 576
LOG2E = math.log2(math.e)
K1_LDS = 40960

def srd(k, s, base_lo, base_hi, size):
    k(f"s_mov_b32 s{s}, s{base_lo}\ns_mov_b32 s{s+1}, s{base_hi}\ns_mov_b32 s{s+2}, {size}\ns_mov_b32 s{s+3}, 0x20000")

def bf16r(k, dst, src):
    k(f"v_cvt_pk_bf16_f32 v{dst}, v{src}, v{src}")
    k(f"v_and_b32 v{dst}, 0xffff0000, v{dst}")

def role_A(k, name):
    PITCH = 1216
    k(f"""
    s_load_dwordx2 s[4:5], s[0:1], 0           ; x
    s_load_dwordx2 s[6:7], s[0:1], 104         ; ws
    s_and_b32 s16, s2, 7
    s_lshl_b32 s16, s16, 4
    s_lshr_b32 s17, s2, 3
    s_add_u32 s16, s16, s17                    ; rb
    v_and_b32 v1, 63, v0                       ; lane
    v_lshrrev_b32 v2, 6, v0                    ; wave
    v_lshrrev_b32 v3, 4, v1                    ; r (0..3)
    v_and_b32 v4, 15, v1                       ; c
    v_lshl_add_u32 v5, v2, 2, v3
    v_mul_u32_u24 v6, 1152, v5
    v_lshl_add_u32 v6, v4, 4, v6               ; row*1152 + c*16
    s_mul_i32 s17, s16, {16*1152}
    s_waitcnt lgkmcnt(0)
    """)
    srd(k, 8, 4, 5, 2048*1152); srd(k, 12, 6, 7, WS_END)
    X = 16
    k(f"""
    v_cmp_gt_u32 vcc, 8, v4
    v_add_u32 v7, 1024, v6
    v_mov_b32 v8, 0x7fffffff
    s_nop 0
    v_cndmask_b32 v7, v8, v7, vcc
    """)
    for i in range(4):
        k(f"buffer_load_dwordx4 v[{X+4*i}:{X+4*i+3}], v6, s[8:11], s17 offen offset:{256*i}")
    k(f"buffer_load_dwordx4 v[{X+16}:{X+19}], v7, s[8:11], s17 offen")
    F = 40
    k("v_mov_b32 v9, 0x3f803f80\nv_mov_b32 v10, 0\nv_mov_b32 v11, 0\ns_waitcnt vmcnt(0)")
    for i in range(20):
        k(f"v_dot2_f32_bf16 v{10+(i&1)}, v{X+i}, v9, v{10+(i&1)}")
    for i in range(20):
        k(f"v_lshlrev_b32 v{F+2*i}, 16, v{X+i}")
        k(f"v_and_b32 v{F+2*i+1}, 0xffff0000, v{X+i}")
    k("v_add_f32 v10, v10, v11")
    def reduce16(reg):
        k(f"""
        s_nop 1
        v_add_f32_dpp v{reg}, v{reg}, v{reg} quad_perm:[1,0,3,2] row_mask:0xf bank_mask:0xf
        s_nop 1
        v_add_f32_dpp v{reg}, v{reg}, v{reg} quad_perm:[2,3,0,1] row_mask:0xf bank_mask:0xf
        s_nop 1
        v_add_f32_dpp v{reg}, v{reg}, v{reg} row_half_mirror row_mask:0xf bank_mask:0xf
        s_nop 1
        v_add_f32_dpp v{reg}, v{reg}, v{reg} row_mirror row_mask:0xf bank_mask:0xf
        """)
    reduce16(10)
    k(f"v_mul_f32 v10, {f2u(1.0/576):#x}, v10        ; mean")
    k("v_mov_b32 v11, 0\nv_mov_b32 v12, 0\nv_mov_b32 v15, 0")
    for i in range(32):
        t = 13 + (i & 1)
        k(f"v_sub_f32 v{t}, v{F+i}, v10")
        k(f"v_fmac_f32 v{11+(i&1)}, v{t}, v{t}")
    for i in range(32, 40):
        t = 13 + (i & 1)
        k(f"v_sub_f32 v{t}, v{F+i}, v10")
        k(f"v_fmac_f32 v15, v{t}, v{t}")
    k("""
    v_add_f32 v11, v11, v12
    v_cndmask_b32 v15, 0, v15, vcc
    v_add_f32 v11, v11, v15
    """)
    reduce16(11)
    k(f"""
    v_mul_f32 v11, {f2u(1.0/576):#x}, v11        ; var
    v_cvt_pk_bf16_f32 v12, v10, v11
    v_lshlrev_b32 v10, 16, v12                   ; m (bf16)
    v_and_b32 v11, 0xffff0000, v12
    v_add_f32 v11, {f2u(1e-5):#x}, v11
    """)
    bf16r(k, 11, 11)
    k("v_sqrt_f32 v11, v11\ns_nop 0")
    bf16r(k, 11, 11)
    k("v_rcp_f32 v11, v11\ns_nop 0")
    U = 80
    for i in range(20):
        a, b = F+2*i, F+2*i+1
        k(f"""
        v_sub_f32 v{a}, v{a}, v10
        v_sub_f32 v{b}, v{b}, v10
        v_cvt_pk_bf16_f32 v13, v{a}, v{b}
        v_lshlrev_b32 v{a}, 16, v13
        v_and_b32 v{b}, 0xffff0000, v13
        v_mul_f32 v{a}, v{a}, v11
        v_mul_f32 v{b}, v{b}, v11
        v_cvt_pk_bf16_f32 v13, v{a}, v{b}
        v_lshlrev_b32 v{a}, 16, v13
        v_and_b32 v{b}, 0xffff0000, v13
        v_cvt_pk_f16_f32 v{U+i}, v{a}, v{b}
        """)
    UOFF = 16*PITCH
    k(f"""
    v_mul_u32_u24 v6, {PITCH}, v5
    v_lshl_add_u32 v6, v4, 4, v6
    """)
    for i in range(4):
        k(f"ds_write_b128 v6, v[{X+4*i}:{X+4*i+3}] offset:{256*i}")
        k(f"ds_write_b128 v6, v[{U+4*i}:{U+4*i+3}] offset:{UOFF+256*i}")
    k("s_and_saveexec_b64 s[20:21], vcc")
    k(f"ds_write_b128 v6, v[{X+16}:{X+19}] offset:1024")
    k(f"ds_write_b128 v6, v[{U+16}:{U+19}] offset:{UOFF+1024}")
    k("s_mov_b64 exec, s[20:21]")
    k("s_waitcnt lgkmcnt(0)\ns_barrier")
    k(f"""
    v_bfe_u32 v6, v1, 2, 2                       ; r
    v_mul_u32_u24 v6, {PITCH}, v6
    v_and_b32 v7, 3, v1
    v_lshl_add_u32 v6, v7, 3, v6                 ; + 4*(lane&3)*2
    v_lshl_add_u32 v6, v3, 5, v6                 ; + 16g*2
    v_lshl_add_u32 v6, v2, 7, v6
    v_lshl_add_u32 v7, v2, 6, v1
    v_lshlrev_b32 v8, 12, v7                     ; d*4096 (xT)
    v_mul_u32_u24 v9, 5120, v7                   ; d*5120 (uT)
    s_lshl_b32 s18, s16, 5
    s_add_u32 s18, s18, {WS_XT}
    s_lshr_b32 s19, s16, 2
    s_mul_i32 s19, s19, 160
    s_and_b32 s20, s16, 3
    s_lshl_b32 s20, s20, 5
    s_add_u32 s19, s19, s20
    s_add_u32 s19, s19, {WS_UT}
    v_readfirstlane_b32 s21, v2
    """)
    for it in range(3):
        if it == 2:
            k(f"s_cmp_lg_u32 s21, 0\ns_cbranch_scc1 L{name}_end")
        for arr in range(2):
            R = 16 + 16*arr + 32*(it & 1)
            for lq in range(4):
                k(f"ds_read_b64_tr_b16 v[{R+2*lq}:{R+2*lq+1}], v6 offset:{arr*UOFF + it*512 + lq*4*PITCH}")
        k("s_waitcnt lgkmcnt(0)")
        R = 16 + 32*(it & 1)
        k(f"s_add_u32 s22, s18, {it*256*4096}")
        k(f"s_add_u32 s23, s19, {it*256*5120}")
        k(f"buffer_store_dwordx4 v[{R}:{R+3}], v8, s[12:15], s22 offen")
        k(f"buffer_store_dwordx4 v[{R+4}:{R+7}], v8, s[12:15], s22 offen offset:16")
        k(f"buffer_store_dwordx4 v[{R+16}:{R+19}], v9, s[12:15], s23 offen")
        k(f"buffer_store_dwordx4 v[{R+20}:{R+23}], v9, s[12:15], s23 offen offset:16")
    k(f"s_branch L{name}_end")

def role_B(k, name):
    k(f"""
    s_load_dwordx4 s[4:7], s[0:1], 64
    s_load_dwordx2 s[16:17], s[0:1], 104
    s_sub_u32 s18, s2, {NA}
    s_cmp_ge_u32 s18, 72
    s_cselect_b32 s19, 72, 0
    s_cselect_b32 s20, 1, 0
    s_sub_u32 s18, s18, s19                     ; cidx
    v_lshrrev_b32 v1, 3, v0                     ; rg
    v_and_b32 v2, 7, v0                         ; c
    v_mul_u32_u24 v3, 9216, v1
    v_lshl_add_u32 v3, v2, 4, v3
    s_waitcnt lgkmcnt(0)
    s_cmp_eq_u32 s20, 1
    s_cselect_b32 s8, s6, s4
    s_cselect_b32 s9, s7, s5
    s_mov_b32 s10, {576*9216}
    s_mov_b32 s11, 0x20000
    """)
    srd(k, 12, 16, 17, WS_END)
    k("s_lshl_b32 s21, s18, 7")
    for i in range(18):
        k(f"buffer_load_dwordx4 v[{16+4*i}:{16+4*i+3}], v3, s[8:11], s21 offen")
        if i < 17: k(f"s_add_u32 s21, s21, {32*9216}")
    for i in range(18):
        k(f"s_waitcnt vmcnt({17-i})")
        for d in range(4):
            r = 16+4*i+d
            if i == 0:
                k(f"v_lshlrev_b32 v{4+2*d}, 16, v{r}\nv_and_b32 v{5+2*d}, 0xffff0000, v{r}")
            else:
                k(f"v_lshlrev_b32 v12, 16, v{r}\nv_and_b32 v13, 0xffff0000, v{r}\nv_add_f32 v{4+2*d}, v{4+2*d}, v12\nv_add_f32 v{5+2*d}, v{5+2*d}, v13")
    k(f"""
    v_lshlrev_b32 v12, 8, v1
    v_lshl_add_u32 v12, v2, 5, v12              ; rg*256 + c*32
    ds_write_b128 v12, v[4:7]
    ds_write_b128 v12, v[8:11] offset:16
    s_waitcnt lgkmcnt(0)
    s_barrier
    v_cmp_gt_u32 vcc, 64, v0
    s_and_saveexec_b64 s[22:23], vcc
    s_cbranch_execz L{name}_end
    v_lshlrev_b32 v12, 2, v0
    """)
    for i in range(32):
        k(f"ds_read_b32 v{16+i}, v12 offset:{256*i}")
        if i == 14: k("s_waitcnt lgkmcnt(0)")
        if i == 29: k("s_waitcnt lgkmcnt(0)")
    k("s_waitcnt lgkmcnt(0)")
    for st in (16, 8, 4, 2, 1):
        for i in range(st):
            k(f"v_add_f32 v{16+i}, v{16+i}, v{16+i+st}")
    k(f"""
    v_cvt_pk_bf16_f32 v13, v16, v16
    v_and_b32 v14, 0xffff0000, v13
    v_sub_f32 v14, v16, v14
    v_cvt_pk_bf16_f32 v14, v14, v14
    v_and_b32 v13, 0xffff, v13
    v_and_b32 v14, 0xffff0000, v14
    v_or_b32 v13, v13, v14
    s_lshl_b32 s22, s18, 6
    v_add_u32 v15, s22, v0                      ; f
    s_mov_b32 s22, 14913081                     ; ceil(2^32/288)
    v_mul_hi_u32 v16, v15, s22                  ; j
    v_mul_u32_u24 v17, 288, v16
    v_sub_u32 v17, v15, v17                     ; local
    v_and_b32 v18, 1, v16                       ; par
    v_lshlrev_b32 v19, 5, v18
    v_sub_u32 v19, v17, v19
    v_cmp_gt_i32 vcc, 0, v19
    v_add_u32 v20, 288, v19
    s_nop 0
    v_cndmask_b32 v19, v19, v20, vcc
    v_lshrrev_b32 v20, 4, v19                   ; ftile
    v_and_b32 v19, 15, v19                      ; f16
    v_lshl_add_u32 v19, v16, 4, v19             ; j*16 + f16
    v_mul_u32_u24 v19, 36, v19
    v_lshl_add_u32 v19, v20, 1, v19
    v_add_u32 v19, s20, v19                     ; + mat
    v_lshlrev_b32 v12, 2, v19
    s_mov_b32 s21, {WS_CS}
    buffer_store_dword v13, v12, s[12:15], s21 offen
    s_branch L{name}_end
    """)

def cmul(k, dr, di, ar, ai, br, bi):
    k(f"v_mul_f32 v{dr}, v{ar}, v{br}")
    k(f"v_mul_f32 v{di}, v{ar}, v{bi}")
    k(f"v_fma_f32 v{dr}, -v{ai}, v{bi}, v{dr}")
    k(f"v_fma_f32 v{di}, v{ai}, v{br}, v{di}")

def role_C(k, name):
    TP = 544; TA = 0; TB = 16*TP; KT = TB + 41*TP
    assert KT + 2101*4 <= K1_LDS, KT + 2101*4
    k(f"""
    s_load_dwordx4 s[4:7], s[0:1], 8
    s_load_dwordx4 s[24:27], s[0:1], 24
    s_load_dwordx2 s[28:29], s[0:1], 40         ; log_dt
    s_load_dwordx2 s[30:31], s[0:1], 104        ; ws
    s_sub_u32 s16, s2, {NA+NB}                  ; d
    v_and_b32 v1, 63, v0                        ; lane
    v_lshrrev_b32 v2, 6, v0                     ; wave
    v_and_b32 v3, 1, v2
    v_lshl_add_u32 v4, v3, 6, v1                ; n
    v_lshlrev_b32 v5, 1, v4                     ; n*2
    v_xor_b32 v6, 128, v5
    v_readfirstlane_b32 s17, v2
    s_lshl_b32 s18, s16, 8                      ; d*256
    s_lshl_b32 s19, s16, 1
    v_mov_b32 v7, s19
    s_waitcnt lgkmcnt(0)
    """)
    srd(k, 8, 4, 5, 576*256)
    srd(k, 12, 6, 7, 576*256)
    srd(k, 32, 24, 25, 576*256)
    srd(k, 36, 26, 27, 576*256)
    srd(k, 40, 28, 29, 576*2)
    srd(k, 44, 30, 31, WS_END)
    k("""
    buffer_load_ushort v8, v5, s[8:11], s18 offen
    buffer_load_ushort v9, v5, s[12:15], s18 offen
    buffer_load_ushort v10, v5, s[32:35], s18 offen
    buffer_load_ushort v11, v5, s[36:39], s18 offen
    buffer_load_ushort v12, v6, s[32:35], s18 offen
    buffer_load_ushort v13, v6, s[36:39], s18 offen
    buffer_load_ushort v14, v7, s[40:43], 0 offen
    s_waitcnt vmcnt(0)
    """)
    for r in (8, 9, 10, 11, 12, 13, 14): k(f"v_lshlrev_b32 v{r}, 16, v{r}")
    k(f"""
    v_mul_f32 v14, {f2u(LOG2E):#x}, v14
    v_mul_f32 v8, {f2u(LOG2E):#x}, v8
    v_exp_f32 v14, v14
    v_exp_f32 v8, v8
    v_add_f32 v15, |v10|, |v11|
    v_add_f32 v16, |v12|, |v13|
    v_add_f32 v15, v15, v16
    """)
    bf16r(k, 14, 14)
    bf16r(k, 8, 8)
    k("""
    s_nop 1
    v_add_f32_dpp v15, v15, v15 quad_perm:[1,0,3,2] row_mask:0xf bank_mask:0xf
    s_nop 1
    v_add_f32_dpp v15, v15, v15 quad_perm:[2,3,0,1] row_mask:0xf bank_mask:0xf
    s_nop 1
    v_add_f32_dpp v15, v15, v15 row_half_mirror row_mask:0xf bank_mask:0xf
    s_nop 1
    v_add_f32_dpp v15, v15, v15 row_mirror row_mask:0xf bank_mask:0xf
    s_nop 1
    v_readlane_b32 s20, v15, 0
    v_readlane_b32 s21, v15, 16
    v_readlane_b32 s22, v15, 32
    v_readlane_b32 s23, v15, 48
    s_nop 1
    v_mov_b32 v15, s20
    v_add_f32 v15, s21, v15
    v_add_f32 v15, s22, v15
    v_add_f32 v15, s23, v15
    v_mul_f32 v15, v15, v14
    v_add_f32 v15, v15, v15
    v_frexp_exp_i32_f32 v16, v15                 ; e
    v_sub_u32 v17, 13, v16                       ; 13-e
    v_mov_b32 v18, 1.0
    v_ldexp_f32 v19, v18, v17                    ; S = 2^(13-e)
    v_sub_u32 v17, 0, v17
    v_ldexp_f32 v20, v18, v17                    ; 1/S
    """)
    k(f"""
    v_mul_f32 v8, v8, v14
    v_mul_f32 v9, v9, v14
    v_mul_f32 v8, {f2u(-LOG2E):#x}, v8           ; alpha
    v_mul_f32 v9, 0.15915494, v9
    """)
    AL, BE = 8, 9
    def direct(dr, di, p, t0=21, t1=22):
        k(f"""
        v_mul_f32 v{t0}, {f2u(float(p)):#x}, v{AL}
        v_mul_f32 v{t1}, {f2u(float(p)):#x}, v{BE}
        v_exp_f32 v{t0}, v{t0}
        v_fract_f32 v{t1}, v{t1}
        s_nop 0
        v_cos_f32 v{dr}, v{t1}
        v_sin_f32 v{di}, v{t1}
        s_nop 0
        v_mul_f32 v{dr}, v{dr}, v{t0}
        v_mul_f32 v{di}, v{di}, v{t0}
        """)
    k("v_lshlrev_b32 v23, 2, v4")
    def put(tab, row, re, im, neg=False, tmp=24):
        if neg: k(f"v_cvt_pk_f16_f32 v{tmp}, v{re}, -v{im}")
        else: k(f"v_cvt_pk_f16_f32 v{tmp}, v{re}, v{im}")
        k(f"ds_write_b32 v23, v{tmp} offset:{tab + row*TP}")
    k(f"s_cmp_ge_u32 s17, 2\ns_cbranch_scc1 L{name}_C_part1")
    direct(30, 31, 1); direct(32, 33, 16)
    k("""
    v_mul_f32 v25, v19, v14
    v_add_f32 v25, v25, v25
    v_mul_f32 v34, v10, v25
    v_mul_f32 v35, v11, v25
    v_mov_b32 v38, 1.0
    v_mov_b32 v39, 0
    """)
    fr, fi, er, ei = 34, 35, 38, 39
    for r in range(16):
        put(TA, r, fr, fi, neg=True, tmp=24)
        put(TB, r, er, ei, tmp=26)
        if r < 15:
            nf = 36 if fr == 34 else 34; ne = 40 if er == 38 else 38
            cmul(k, nf, nf+1, fr, fi, 32, 33)
            cmul(k, ne, ne+1, er, ei, 30, 31)
            fr, fi, er, ei = nf, nf+1, ne, ne+1
    k(f"s_branch L{name}_C_join")
    k.label(f"L{name}_C_part1")
    direct(30, 31, 2); direct(32, 33, 256)
    cmul(k, 34, 35, 30, 31, 30, 31)
    cmul(k, 36, 37, 34, 35, 34, 35)
    cmul(k, 38, 39, 32, 33, 32, 33)
    cmul(k, 40, 41, 38, 39, 38, 39)
    cmul(k, 42, 43, 40, 41, 40, 41)
    put(TB, 40, 42, 43)
    cr_, ci_ = 32, 33
    put(TB, 16, cr_, ci_)
    for c in range(1, 8):
        n_ = 44 if cr_ != 44 else 46
        cmul(k, n_, n_+1, cr_, ci_, 30, 31); cr_, ci_ = n_, n_+1
        put(TB, 16 + c, cr_, ci_, tmp=24 + 2*(c & 1))
    cmul(k, 48, 49, 38, 39, 32, 33)
    for base, (b0, b1) in ((24, (38, 39)), (28, (48, 49))):
        cr_, ci_ = b0, b1
        put(TB, base, cr_, ci_)
        for c in range(1, 4):
            n_ = 44 if cr_ != 44 else 46
            cmul(k, n_, n_+1, cr_, ci_, 34, 35); cr_, ci_ = n_, n_+1
            put(TB, base + c, cr_, ci_, tmp=24 + 2*(c & 1))
    cr_, ci_ = 40, 41
    for g in range(4):
        put(TB, 32 + 2*g, cr_, ci_)
        cmul(k, 50, 51, cr_, ci_, 36, 37)
        put(TB, 32 + 2*g + 1, 50, 51, tmp=26)
        if g < 3:
            n_ = 44 if cr_ != 44 else 46
            cmul(k, n_, n_+1, cr_, ci_, 32, 33); cr_, ci_ = n_, n_+1
    k.label(f"L{name}_C_join")
    k("s_waitcnt lgkmcnt(0)\ns_barrier")
    k(f"""
    s_cmp_ge_u32 s17, 3
    s_cbranch_scc1 L{name}_C_skipmm
    v_and_b32 v24, 15, v1                         ; r / col
    v_lshrrev_b32 v25, 4, v1                      ; q
    v_mul_u32_u24 v26, {TP}, v24
    v_lshl_add_u32 v26, v25, 4, v26
    s_mul_i32 s20, s17, {16*TP}
    v_add_u32 v27, s20, v26
    """)
    for t in range(8):
        k(f"ds_read_b128 v[{32+8*t}:{32+8*t+3}], v26 offset:{TA + 64*t}")
        k(f"ds_read_b128 v[{36+8*t}:{36+8*t+3}], v27 offset:{TB + 64*t}")
        if t == 6: k("s_waitcnt lgkmcnt(8)")
    for t in range(8):
        k(f"s_waitcnt lgkmcnt({min(15, 2*(7-t))})")
        C = "0" if t == 0 else "v[28:31]"
        k(f"v_mfma_f32_16x16x32_f16 v[28:31], v[{32+8*t}:{32+8*t+3}], v[{36+8*t}:{36+8*t+3}], {C}")
    k(f"""
    v_mov_b32 v32, v24                            ; tile0
    s_cmp_eq_u32 s17, 0
    s_cbranch_scc1 L{name}_C_oready
    s_cmp_eq_u32 s17, 1
    s_cbranch_scc0 L{name}_C_t2
    v_lshlrev_b32 v33, 1, v24
    v_add_u32 v33, 256, v33                       ; 256+2col
    v_and_b32 v34, 3, v24
    v_lshlrev_b32 v34, 2, v34
    v_bfe_u32 v35, v24, 2, 1
    v_lshlrev_b32 v35, 8, v35
    v_add_u32 v34, v34, v35
    v_add_u32 v34, 512, v34
    v_cmp_gt_u32 vcc, 8, v24
    s_nop 1
    v_cndmask_b32 v32, v34, v33, vcc
    s_branch L{name}_C_oready
    """)
    k.label(f"L{name}_C_t2")
    k(f"""
    v_lshrrev_b32 v33, 1, v24
    v_lshlrev_b32 v33, 8, v33
    v_and_b32 v34, 1, v24
    v_lshl_add_u32 v33, v34, 3, v33
    v_add_u32 v33, 1024, v33
    v_cmp_gt_u32 vcc, 9, v24
    v_mov_b32 v34, 2052
    s_nop 0
    v_cndmask_b32 v32, v34, v33, vcc
    """)
    k.label(f"L{name}_C_oready")
    k(f"""
    v_lshl_add_u32 v33, v25, 6, v32               ; 64q + o
    v_min_u32 v34, 2100, v33
    v_add_u32 v35, 16, v33
    v_min_u32 v35, 2100, v35
    v_add_u32 v36, 32, v33
    v_min_u32 v36, 2100, v36
    v_add_u32 v37, 48, v33
    v_min_u32 v37, 2100, v37
    v_lshlrev_b32 v34, 2, v34
    v_lshlrev_b32 v35, 2, v35
    v_lshlrev_b32 v36, 2, v36
    v_lshlrev_b32 v37, 2, v37
    s_nop 7
    ds_write_b32 v34, v28 offset:{KT}
    ds_write_b32 v35, v29 offset:{KT}
    ds_write_b32 v36, v30 offset:{KT}
    ds_write_b32 v37, v31 offset:{KT}
    """)
    k.label(f"L{name}_C_skipmm")
    for i in range(8):
        sh = {0: 0, 1: 1, 2: 2, 3: 2}.get(i, 3)
        r = 40 + i
        if sh == 0:
            k(f"v_lshlrev_b32 v{r}, 2, v0")
        else:
            k(f"""
            v_add_u32 v38, {256*i}, v0
            v_bfe_u32 v39, v38, {sh}, 1
            v_add_u32 v38, v38, v39
            v_add_u32 v38, {(1 << (sh-1)) - 1}, v38
            v_lshrrev_b32 v38, {sh}, v38
            v_lshlrev_b32 v{r}, {sh+2}, v38
            """)
    k("s_waitcnt lgkmcnt(0)\ns_barrier")
    for i in range(8):
        k(f"ds_read_b32 v{48+i}, v{40+i} offset:{KT}")
    k(f"""
    v_lshlrev_b32 v38, 1, v0
    s_lshl_b32 s20, s16, 12
    s_add_u32 s20, s20, {WS_KG}
    """)
    for i in range(8):
        k(f"s_waitcnt lgkmcnt({7-i})")
        k(f"v_cvt_f16_f32 v{48+i}, v{48+i}")
        k(f"buffer_store_short v{48+i}, v38, s[44:47], s20 offen offset:{512*i}")
    k(f"""
    v_cmp_eq_u32 vcc, 0, v0
    s_and_saveexec_b64 s[22:23], vcc
    s_cbranch_execz L{name}_end
    s_lshl_b32 s20, s16, 2
    s_add_u32 s20, s20, {WS_SC}
    v_mov_b32 v38, 0
    buffer_store_dword v20, v38, s[44:47], s20 offen
    """)

def gen_k1(name="k1_kernel"):
    k = K(name)
    k(f"""
    s_cmp_ge_u32 s2, {NA+NB+NC}
    s_cbranch_scc1 L{name}_end
    s_cmp_ge_u32 s2, {NA+NB}
    s_cbranch_scc1 L{name}_C
    s_cmp_ge_u32 s2, {NA}
    s_cbranch_scc1 L{name}_B
    """)
    role_A(k, name)
    k.label(f"L{name}_B")
    role_B(k, name)
    k.label(f"L{name}_C")
    role_C(k, name)
    k.label(f"L{name}_end")
    k("s_endpgm")
    return k
if __name__ == "__main__":
    from asmlib import build_file
    k = gen_k1()
    build_file("mb/k1.s", [(k, 104, 64, 104)], [("k1_kernel", NA+NB+NC, 256, K1_LDS)])
```

```python
from asmlib import K
import math, struct
from gen_k3 import (WS_HT, WS_CS, WS_PART, WS_DBG, WS_END, K0C, K1C, f2u, VmTracker)

UNIT = 12288
NUNIT = 12
LDS_BYTES = UNIT*NUNIT

def gen_k3b(name="k3_kernel", LA=6, RING=8, opts=None):
    opts = opts or {}
    k = K(name)
    vm = VmTracker(63); lg = VmTracker(15)
    vLANE = 0
    vDA = [1, 2, 3]
    vDH = [4, 5, 6]
    vDD = [7, 8, 9]
    vC0, vC1, vS2 = [10, 11], [12, 13], [14, 15]
    vST = 16
    vRB = list(range(17, 33))
    vLH = 33
    vLH1 = 34
    vTMP = list(range(35, 48))
    vACC = [48, 112]
    vH = 176
    vT = 248
    vX = list(range(112, 118))
    vXL = [118, 119]
    vXB = [120, 121]
    vS1 = [122, 123]; vS2s = [124, 125]; vONE = 126; vTA = [127, 128, 129, 130]
    aX = 0; aR = 144; aCS = 176; aBM = 214
    aONE = 232
    sWM = 8; sWD = 12; sWS = 16
    sW, sJ, sMT = 20, 21, 22
    sW1F, sW1H, sM1 = 23, 24, 25
    sD, sMD = 26, 27
    sDw = 28
    sSO = 32; sPART = 33; sXO, sMX = 34, 35
    sT0, sT1, sT2, sT3 = 36, 37, 38, 39
    nst = [0]
    def stamp():
        if not opts.get("stamps"): return
        k("s_memrealtime s[60:61]" if opts.get("rt") else "s_memtime s[60:61]")
        k("s_waitcnt lgkmcnt(0)")
        k(f"s_mov_b32 s{62 + nst[0]}, s60")
        lg.done = len(lg.q)
        nst[0] += 1
    k(f"""
    s_cmp_ge_u32 s2, 256
    s_cbranch_scc1 L{name}_end
    s_load_dwordx4 s[4:7], s[0:1], 64
    s_load_dwordx2 s[40:41], s[0:1], 80        ; w_down
    s_load_dwordx2 s[42:43], s[0:1], 104       ; ws
    v_lshrrev_b32 v{vTMP[0]}, 6, v0
    v_and_b32 v{vLANE}, 63, v0
    s_nop 0
    v_readfirstlane_b32 s{sW}, v{vTMP[0]}
    s_and_b32 s{sT0}, s2, 7
    s_lshr_b32 s{sT1}, s2, 3
    s_and_b32 s{sT2}, s{sT1}, 1                 ; parity
    s_lshl_b32 s{sJ}, s{sT0}, 1
    s_add_u32 s{sJ}, s{sJ}, s{sT2}              ; split j
    s_lshr_b32 s{sMT}, s{sT1}, 1                ; m tile
    """)
    t0, t1, t2, t3, t4, t5, t6 = vTMP[0:7]
    k(f"""
    v_lshrrev_b32 v{t0}, 4, v{vLANE}            ; row 0..3
    v_bfe_u32 v{t1}, v{vLANE}, 1, 3             ; unit32
    v_and_b32 v{t2}, 1, v{vLANE}
    v_lshlrev_b32 v{t2}, 4, v{t2}               ; (sigma16&1)*16
    v_lshlrev_b32 v{t3}, 12, v{t0}              ; row*4096
    v_add_u32 v{t3}, v{t3}, v{t2}
    v_xor_b32 v{t4}, v{t1}, v{t0}               ; par 0
    v_xor_b32 v{t5}, 4, v{t4}                   ; par 1
    v_lshl_add_u32 v{t4}, v{t4}, 5, v{t3}
    v_lshl_add_u32 v{t5}, v{t5}, 5, v{t3}
    """)
    for tp in range(6):
        src = t4 if tp % 2 == 0 else t5
        k(f"v_add_u32 v{vX[tp]}, {(tp % 3)*(4*4096-1024)}, v{src}")
    k(f"""
    v_lshrrev_b32 v{t0}, 3, v{vLANE}
    v_bfe_u32 v{t1}, v{vLANE}, 1, 2
    v_bfe_u32 v{t2}, v{vLANE}, 4, 2
    v_xor_b32 v{t1}, v{t1}, v{t2}
    v_and_b32 v{t2}, 1, v{vLANE}
    v_lshlrev_b32 v{t2}, 4, v{t2}
    v_lshl_add_u32 v{t1}, v{t1}, 5, v{t2}
    v_mul_u32_u24 v{t2}, 9216, v{t0}
    v_add_u32 v{vDA[0]}, v{t2}, v{t1}
    v_mul_u32_u24 v{t2}, 1152, v{t0}
    v_add_u32 v{vDD[0]}, v{t2}, v{t1}
    v_lshrrev_b32 v{t0}, 2, v{vLANE}
    v_bfe_u32 v{t1}, v{vLANE}, 1, 1
    v_bfe_u32 v{t2}, v{vLANE}, 4, 1
    v_xor_b32 v{t1}, v{t1}, v{t2}
    v_and_b32 v{t2}, 1, v{vLANE}
    v_lshlrev_b32 v{t2}, 4, v{t2}
    v_lshl_add_u32 v{t1}, v{t1}, 5, v{t2}
    v_mul_u32_u24 v{t2}, 9216, v{t0}
    v_add_u32 v{vDH[0]}, v{t2}, v{t1}
    """)
    for i in range(1, 3):
        k(f"v_add_u32 v{vDA[i]}, {i*(8*9216-1024)}, v{vDA[0]}")
        k(f"v_add_u32 v{vDD[i]}, {i*(8*1152-1024)}, v{vDD[0]}")
        k(f"v_add_u32 v{vDH[i]}, {i*(16*9216-1024)}, v{vDH[0]}")
    k("s_waitcnt lgkmcnt(0)")
    k(f"""
    s_cmp_ge_u32 s{sW}, 2
    s_cselect_b32 s{sWM}, s6, s4
    s_cselect_b32 s{sWM+1}, s7, s5
    s_mov_b32 s{sWM+2}, {576*4608*2}
    s_mov_b32 s{sWM+3}, 0x20000
    s_mov_b32 s{sWD}, s40
    s_mov_b32 s{sWD+1}, s41
    s_mov_b32 s{sWD+2}, {4608*576*2}
    s_mov_b32 s{sWD+3}, 0x20000
    s_mov_b32 s{sWS}, s42
    s_mov_b32 s{sWS+1}, s43
    s_mov_b32 s{sWS+2}, {WS_END}
    s_mov_b32 s{sWS+3}, 0x20000
    """)
    stamp()
    k(f"""
    s_mul_i32 s{sXO}, s{sW}, {24*4096}
    s_lshl_b32 s{sT0}, s{sMT}, 8
    s_add_u32 s{sXO}, s{sXO}, s{sT0}
    s_add_u32 s{sXO}, s{sXO}, {WS_HT}           ; X: + (96p + 24w + 12u)*4096
    s_mul_i32 s{sMX}, s{sW}, {6*1024}
    s_and_b32 s{sT2}, s{sJ}, 1                  ; parity
    s_mul_i32 s{sT0}, s{sJ}, 288                ; F0
    s_lshl_b32 s{sT1}, s{sT2}, 5
    s_add_u32 s{sT1}, s{sT0}, s{sT1}            ; FG0
    s_xor_b32 s{sT3}, s{sT2}, 1
    s_lshl_b32 s{sT3}, s{sT3}, 8
    s_add_u32 s{sT3}, s{sT0}, s{sT3}            ; FH
    s_and_b32 s46, s{sW}, 1
    s_lshr_b32 s47, s{sW}, 1
    ; phase 1: waves 0,1 -> gate unit, waves 2,3 -> up unit. each wave 6 instr: rows 48*(w&1) + 8*t (full) ; rows 96*(w&1)+16t (half)
    s_mul_i32 s{sW1F}, s46, {48*9216}
    s_lshl_b32 s48, s{sT1}, 1
    s_add_u32 s{sW1F}, s{sW1F}, s48
    s_mul_i32 s{sW1H}, s46, {96*9216}
    s_lshl_b32 s48, s{sT3}, 1
    s_add_u32 s{sW1H}, s{sW1H}, s48
    s_mul_i32 s{sM1}, s47, {UNIT}
    s_mul_i32 s48, s46, 6144
    s_add_u32 s{sM1}, s{sM1}, s48
    """)
    sDb = [50, 51, 52, 53, 54]
    for n, (rho_add, tcomp) in enumerate(((0, 0), (96, 0), (192, 0), (200, 1), (208, 2))):
        k(f"""
        s_mul_i32 s48, s{sW}, 24
        s_add_u32 s48, s48, {rho_add}
        s_lshl_b32 s49, s{sT2}, 5
        s_add_u32 s48, s48, s49
        s_cmp_ge_u32 s48, 288
        s_cselect_b32 s49, 288, 0
        s_sub_u32 s48, s48, s49
        s_add_u32 s48, s48, s{sT0}
        s_mul_i32 s{sDb[n]}, s48, 1152
        """)
        if tcomp: k(f"s_sub_u32 s{sDb[n]}, s{sDb[n]}, {tcomp*8*1152}")
    k(f"s_mul_i32 s{sMD}, s{sW}, 3072")
    k(f"""
    s_lshl_b32 s48, s{sJ}, 4
    s_add_u32 s48, s48, s{sMT}
    s_lshl_b32 s48, s48, 2
    s_add_u32 s48, s48, s{sW}
    s_mul_i32 s{sPART}, s48, {36*1024}
    s_add_u32 s{sPART}, s{sPART}, {WS_PART}
    v_lshlrev_b32 v{vST}, 4, v{vLANE}
    s_lshl_b32 s44, s{sT1}, 2
    s_add_u32 s44, s44, {WS_CS}
    s_lshl_b32 s45, s{sT3}, 2
    s_add_u32 s45, s45, {WS_CS}
    """)
    def dma(voff, srd, i):
        off = f" offset:{i*1024}" if i else ""
        return f"buffer_load_dwordx4 v{voff}, s[{srd}:{srd+3}], s{sSO} offen{off} lds"
    items = []
    for p in range(6): items += [("X", p), ("W", p)]
    items += [("W", p) for p in range(6, 27)]
    items += [("D", p) for p in range(9)]
    upos = {}; u = 0
    for it in items:
        n = 3 if it[0] == "D" else 2
        upos[it] = u % NUNIT
        assert (u % NUNIT) + n <= NUNIT
        u += n
    uabs = {}; u = 0
    for it in items:
        n = 3 if it[0] == "D" else 2
        uabs[it] = (u, u + n); u += n
    def dma_ops(it):
        ty, p = it; base = upos[it]*UNIT
        ops = []
        if ty == "X":
            for g in range(2):
                ops.append(("s", [f"s_add_u32 s{sSO}, s{sXO}, {(96*p + 12*g)*4096}", f"s_add_u32 m0, s{sMX}, {base + g*3072}"]))
                for t in range(3): ops.append(("d", dma(vX[3*g+t], sWS, t)))
        elif ty == "W" and p < 24:
            grp, q = p // 6, p % 6
            for g in range(2):
                ops.append(("s", [f"s_add_u32 s{sSO}, s{sW1F}, {(96*q + 24*g)*9216 + grp*128}", f"s_add_u32 m0, s{sM1}, {base + g*3072}"]))
                for t in range(3): ops.append(("d", dma(vDA[t], sWM, t)))
        elif ty == "W":
            q = p - 24
            for g in range(2):
                ops.append(("s", [f"s_add_u32 s{sSO}, s{sW1H}, {(192*q + 48*g)*9216}", f"s_add_u32 m0, s{sM1}, {base + g*3072}"]))
                for t in range(3): ops.append(("d", dma(vDH[t], sWM, t)))
        else:
            for u3 in range(2):
                ops.append(("s", [f"s_add_u32 s{sSO}, s{sDb[u3]}, {p*128}", f"s_add_u32 m0, s{sMD}, {base + u3*UNIT}"]))
                for t in range(3): ops.append(("d", dma(vDD[t], sWD, t)))
            for t in range(3):
                l = [f"s_add_u32 s{sSO}, s{sDb[2+t]}, {p*128}"]
                if t == 0: l.append(f"s_add_u32 m0, s{sMD}, {base + 2*UNIT}")
                ops.append(("s", l))
                ops.append(("d", dma(vDD[t], sWD, t)))
        return ops
    def emit_dma_all(it):
        for kind, x in dma_ops(it):
            if kind == "s":
                for l in x: k(l)
                k("s_nop 0")
            else:
                k(x); vm.issue(it)
    issued = []
    for it in items[:2]:
        emit_dma_all(it); issued.append(it)
    def cs_ops():
        L = [(1, f"v_and_b32 v{vTMP[10]}, 15, v{vLANE}"), (1, f"v_mul_u32_u24 v{vTMP[10]}, 144, v{vTMP[10]}"),
             (1, f"s_mul_i32 s44, s{sJ}, {16*144}"), (1, f"s_add_u32 s44, s44, {WS_CS}")]
        for n in range(9):
            off = f" offset:{16*n}" if n else ""
            L.append((1, ("load", f"buffer_load_dwordx4 a[{aCS+4*n}:{aCS+4*n+3}], v{vTMP[10]}, s[{sWS}:{sWS+3}], s44 offen{off}")))
        return L
    k(f"""
    v_bfe_u32 v{t0}, v{vLANE}, 2, 2             ; r'
    v_lshrrev_b32 v{t1}, 4, v{vLANE}            ; q
    v_lshl_add_u32 v{t2}, v{t1}, 2, v{t0}       ; rr = 4q + r'
    v_and_b32 v{t3}, 3, v{vLANE}
    v_lshlrev_b32 v{t3}, 3, v{t3}               ; 8c
    v_bfe_u32 v{t4}, v{t2}, 1, 2                ; g = (rr>>1)&3
    v_lshlrev_b32 v{t5}, 7, v{t2}
    v_add_u32 v{t5}, v{t5}, v{t3}
    v_lshl_add_u32 v{t5}, v{t4}, 5, v{t5}
    """)
    vLC0 = vTMP[7]
    k(f"v_mov_b32 v{vLC0}, v{t5}")
    def set_bases_p1():
        L = []
        for wdw in range(3):
            for ft in range(4):
                L.append(f"v_xor_b32 v{vRB[4*wdw+ft]}, {ft*32}, v{vLC0}")
                if wdw: L.append(f"v_add_u32 v{vRB[4*wdw+ft]}, {wdw*49152}, v{vRB[4*wdw+ft]}")
        return L
    def set_bases_p2():
        L = []
        for sl in range(4):
            for nt in range(4):
                L.append(f"v_xor_b32 v{vRB[4*sl+nt]}, {nt*32}, v{vLC0}")
                if sl: L.append(f"v_add_u32 v{vRB[4*sl+nt]}, {sl*36864}, v{vRB[4*sl+nt]}")
        return L
    for l in set_bases_p1(): k(l)
    k(f"""
    ; half lane const: rr*64 + ((q&1)*32) + 8c
    v_lshlrev_b32 v{t5}, 6, v{t2}
    v_add_u32 v{t5}, v{t5}, v{t3}
    v_and_b32 v{t6}, 1, v{t1}
    v_lshl_add_u32 v{vLH}, v{t6}, 5, v{t5}
    v_xor_b32 v{vLH1}, 32, v{vLH}
    ; X lane consts: rr*256 + (((2w+j) ^ (rr&7))*32) + 8c
    v_lshlrev_b32 v{t5}, 8, v{t2}
    v_add_u32 v{t5}, v{t5}, v{t3}
    v_and_b32 v{t6}, 7, v{t2}
    s_lshl_b32 s48, s{sW}, 1
    v_xor_b32 v{t6}, s48, v{t6}
    v_lshl_add_u32 v{vXL[0]}, v{t6}, 5, v{t5}
    v_xor_b32 v{vXL[1]}, 32, v{vXL[0]}
    v_mov_b32 v{vONE}, 0x3f803f80
    """)
    for e in range(4): k(f"v_accvgpr_write_b32 a{aONE+e}, v{vONE}")
    vD1 = [132, 136]; vD2 = [140, 144]
    def stats_mf(p):
        L = []
        for s_ in range(3):
            for j in range(2):
                xs = aX + 4*(2*(3*p+s_) + j)
                first = (p == 0 and s_ == 0)
                L.append(dict(fr=None, acc=vD1[j], A=f"a[{aONE}:{aONE+3}]", B=f"a[{xs}:{xs+3}]", first=first))
                L.append(dict(fr=None, acc=vD2[j], A=f"a[{xs}:{xs+3}]", B=f"a[{xs}:{xs+3}]", first=first))
        return L
    NS1 = 27; NS = 36
    def stage_item(st): return ("W", st) if st < NS1 else ("D", st - NS1)
    def acc_reg(st, tile):
        if st < 24: return vACC[(st // 6) % 2] + 4*tile
        if st < 27: return vACC[0] + 4*tile
        return vACC[1] + 32*((st - 27) % 2) + 4*tile
    mf = []; frags = []
    for st in range(NS):
        it = stage_item(st); base = upos[it]*UNIT
        if st < 24:
            grp, q = st // 6, st % 6
            wdw, rel = base // 49152, base % 49152
            for s in range(3):
                for ft in range(4):
                    for mat in range(2):
                        rd = [(vRB[4*wdw+ft], rel + mat*UNIT + s*4096 + i*2048) for i in range(2)]
                        fr = dict(st=st, rd=rd); frags.append(fr)
                        for j in range(2):
                            xs = aX + 4*(2*(3*q+s) + j)
                            mf.append(dict(st=st, fr=fr, acc=acc_reg(st, (ft*2+mat)*2+j), B=f"a[{xs}:{xs+3}]", first=(q == 0 and s == 0), needX=q))
            if grp == 0:
                sm = stats_mf(q)
                start = len(mf) - 48
                blk = mf[start:]; del mf[start:]
                if q == 5:
                    for x in sm: x["st"] = st
                    mf.extend(sm); mf.extend(blk)
                else:
                    for n_, b in enumerate(blk):
                        mf.append(b)
                        if n_ % 4 == 3 and sm:
                            x = sm.pop(0); x["st"] = st; mf.append(x)
                    assert not sm
            if q == 5:
                for ft in range(4):
                    for mat in range(2):
                        idx = 2*(4*grp + ft) + mat; w0 = aCS + (idx & ~1)
                        for j in range(2):
                            bm = aBM + 8*j + 4*(idx & 1)
                            mf.append(dict(st=st, fr=None, acc=acc_reg(st, (ft*2+mat)*2+j), A=f"a[{w0}:{w0+3}]", B=f"a[{bm}:{bm+3}]", first=False))
        elif st < 27:
            q = st - 24
            for s in range(6):
                for ft in range(2):
                    for mat in range(2):
                        rd = [("H%d" % ft, base + mat*UNIT + s*2048 + i*1024) for i in range(2)]
                        fr = dict(st=st, rd=rd); frags.append(fr)
                        for j in range(2):
                            xs = aX + 4*(2*(6*q+s) + j)
                            mf.append(dict(st=st, fr=fr, acc=acc_reg(st, (ft*2+mat)*2+j), B=f"a[{xs}:{xs+3}]", first=(q == 0 and s == 0)))
            if q == 2:
                for ft in range(2):
                    for mat in range(2):
                        idx = 2*(16 + ft) + mat; w0 = aCS + (idx & ~1)
                        for j in range(2):
                            bm = aBM + 8*j + 4*(idx & 1)
                            mf.append(dict(st=st, fr=None, acc=acc_reg(st, (ft*2+mat)*2+j), A=f"a[{w0}:{w0+3}]", B=f"a[{bm}:{bm+3}]", first=False))
        else:
            sl = upos[it] // 3
            for t in range(9):
                for nt in range(4):
                    rd = [(vRB[4*sl+nt], t*4096 + i*2048) for i in range(2)]
                    fr = dict(st=st, rd=rd); frags.append(fr)
                    for j in range(2):
                        h = vH + 8*t + 4*j
                        mf.append(dict(st=st, fr=fr, acc=acc_reg(st, nt*2+j), B=f"v[{h}:{h+3}]", first=(t == 0), needH=t))
    for n, fr in enumerate(frags):
        fr["n"] = n; fr["reg"] = aR + 4*(n % RING)
    vHB = [vTMP[8], vTMP[9]]
    def lg_room():
        if len(lg.q) - lg.done >= 15:
            k("s_waitcnt lgkmcnt(11)")
            lg.done = len(lg.q) - 11
    def emit_reads(fr, part=None):
        for i, (sel, off) in enumerate(fr["rd"]):
            if part is not None and i != part: continue
            if isinstance(sel, str):
                reg = vHB[int(sel[1])]; base = upos[stage_item(fr["st"])]*UNIT; off = off - base
            else: reg = sel
            assert 0 <= off < 65536, off
            r0 = fr["reg"] + 2*i
            lg_room()
            if not opts.get("noread"): k(f"ds_read_b64_tr_b16 a[{r0}:{r0+1}], v{reg} offset:{off}")
            lg.issue(("f", fr["n"]))
    def x_read_ops(p):
        base = upos[("X", p)]*UNIT
        L = [("v", f"v_add_u32 v{vXB[0]}, {base}, v{vXL[0]}"), ("v", f"v_add_u32 v{vXB[1]}, {base}, v{vXL[1]}")]
        for s in range(3):
            for j in range(2):
                for i in range(2):
                    r = aX + 4*(2*(3*p+s) + j) + 2*i
                    L.append(("x", f"ds_read_b64_tr_b16 a[{r}:{r+1}], v{vXB[j]} offset:{s*8192 + i*4096}"))
        return L
    def finalize_ops():
        ops = []
        m, va, tb, z = vTA[0], vTA[1], vTA[2], vTA[3]
        A = lambda s: ops.append((1, s))
        A("s_nop 7")
        A(f"v_bfe_u32 v{vS1[0]}, v{vLANE}, 2, 2")
        A(f"v_lshrrev_b32 v{vS1[1]}, 4, v{vLANE}")
        A(f"v_cmp_eq_u32 s[56:57], v{vS1[0]}, v{vS1[1]}")
        A(f"v_and_b32 v{vS1[0]}, 3, v{vLANE}")
        A(f"v_cmp_eq_u32 s[58:59], 1, v{vS1[0]}")
        A(f"v_cmp_eq_u32 s[30:31], 2, v{vS1[0]}")
        A(f"v_cmp_eq_u32 vcc, 3, v{vS1[0]}")
        A("s_nop 1")
        for j in range(2):
            s1, s2 = vD1[j], vS2s[j]
            d = vD2[j]
            A(f"v_cndmask_b32 v{s2}, v{d}, v{d+1}, s[58:59]")
            A(f"v_cndmask_b32 v{s2}, v{s2}, v{d+2}, s[30:31]")
            A(f"v_cndmask_b32 v{s2}, v{s2}, v{d+3}, vcc")
            A(f"v_cndmask_b32 v{s2}, 0, v{s2}, s[56:57]")
        for j in range(2):
            s1, s2 = vD1[j], vS2s[j]
            for r in (s2,):
                A(f"v_mov_b32 v{z}, v{r}"); A("s_nop 1"); A(f"v_permlane16_swap_b32 v{r}, v{z}"); A("s_nop 1"); A(f"v_add_f32 v{r}, v{r}, v{z}")
                A(f"v_mov_b32 v{z}, v{r}"); A("s_nop 1"); A(f"v_permlane32_swap_b32 v{r}, v{z}"); A("s_nop 1"); A(f"v_add_f32 v{r}, v{r}, v{z}")
            A(f"v_mul_f32 v{m}, {f2u(1.0/576):#x}, v{s1}")
            A(f"v_mul_f32 v{va}, {f2u(1.0/576):#x}, v{s2}")
            A(f"v_fma_f32 v{va}, -v{m}, v{m}, v{va}")
            A(f"v_max_f32 v{va}, 0, v{va}")
            A(f"v_cvt_pk_bf16_f32 v{tb}, v{m}, v{va}")
            A(f"v_and_b32 v{va}, 0xffff0000, v{tb}")
            A(f"v_add_f32 v{va}, {f2u(1e-5):#x}, v{va}")
            A(f"v_cvt_pk_bf16_f32 v{va}, v{va}, v{va}")
            A(f"v_and_b32 v{va}, 0xffff0000, v{va}")
            A(f"v_sqrt_f32 v{va}, v{va}"); A("s_nop 0")
            A(f"v_cvt_pk_bf16_f32 v{va}, v{va}, v{va}")
            A(f"v_and_b32 v{va}, 0xffff0000, v{va}")
            A(f"v_mul_f32 v{vS2[j]}, v{va}, v{va}")
            A(f"v_rcp_f32 v{va}, v{va}"); A("s_nop 0")
            A(f"v_mul_f32 v{vC0[j]}, {f2u(K0C):#x}, v{va}")
            A(f"v_mul_f32 v{vC1[j]}, v{va}, v{va}")
            A(f"v_mul_f32 v{vC1[j]}, v{vC1[j]}, v{va}")
            A(f"v_mul_f32 v{vC1[j]}, {f2u(K1C):#x}, v{vC1[j]}")
            A(f"v_and_b32 v{tb}, 0xffff, v{tb}")
            A(f"v_xor_b32 v{tb}, 0x8000, v{tb}")
            A(f"v_lshl_or_b32 v{tb}, v{tb}, 16, v{tb}")
            A(f"v_cmp_gt_u32 vcc, 16, v{vLANE}"); A("s_nop 1")
            A(f"v_cndmask_b32 v{tb}, 0, v{tb}, vcc")
            A(f"v_mov_b32 v{m}, 0"); A("s_nop 0")
            b0 = aBM + 8*j
            for e, src in enumerate((tb, m, m, m, m, tb, m, m)):
                A(f"v_accvgpr_write_b32 a{b0+e}, v{src}")
        A(f"v_accvgpr_write_b32 a{aCS+36}, v{m}"); A(f"v_accvgpr_write_b32 a{aCS+37}, v{m}")
        A("s_nop 1")
        return ops
    def gelu_ops(buf, nft, Hbase):
        ops = []
        n = 0
        for ft in range(nft):
            for j in range(2):
                for p in range(2):
                    T = vT + 4*(n % 2); n += 1
                    a0 = buf + 4*((ft*2+0)*2 + j) + 2*p; a1 = a0 + 1
                    b0 = buf + 4*((ft*2+1)*2 + j) + 2*p; b1 = b0 + 1
                    x0, x1, y0, y1 = T, T+1, T+2, T+3
                    hd = Hbase + 8*(ft >> 1) + 4*j + 2*(ft & 1) + p
                    ops += [(1, f"v_mul_f32 v{x0}, v{a0}, v{a0}"), (1, f"v_mul_f32 v{x1}, v{a1}, v{a1}"),
                            (1, f"v_fma_f32 v{x0}, v{x0}, v{vC1[j]}, v{vC0[j]}"), (1, f"v_fma_f32 v{x1}, v{x1}, v{vC1[j]}, v{vC0[j]}"),
                            (1, f"v_mul_f32 v{x0}, v{a0}, v{x0}"), (1, f"v_mul_f32 v{x1}, v{a1}, v{x1}"),
                            (2, f"v_exp_f32 v{x0}, v{x0}"), (2, f"v_exp_f32 v{x1}, v{x1}"),
                            (1, f"v_mul_f32 v{y0}, v{a0}, v{b0}"), (1, f"v_mul_f32 v{y1}, v{a1}, v{b1}"),
                            (1, f"v_fma_f32 v{x0}, v{x0}, v{vS2[j]}, v{vS2[j]}"), (1, f"v_fma_f32 v{x1}, v{x1}, v{vS2[j]}, v{vS2[j]}"),
                            (2, f"v_rcp_f32 v{x0}, v{x0}"), (2, f"v_rcp_f32 v{x1}, v{x1}"),
                            (1, f"v_mul_f32 v{y0}, v{y0}, v{x0}"), (1, f"v_mul_f32 v{y1}, v{y1}, v{x1}"),
                            (1, f"v_cvt_pk_bf16_f32 v{hd}, v{y0}, v{y1}")]
        return ops
    def epi_ops(st):
        a = st - 27
        ops = []
        P = vACC[0]
        for ntp in range(2):
            for j in range(2):
                q = P + 4*(2*ntp + j)
                for h2 in range(2):
                    A = acc_reg(st, (2*ntp + h2)*2 + j)
                    ops.append((1, f"v_cvt_pk_bf16_f32 v{q+2*h2}, v{A}, v{A+1}"))
                    ops.append((1, f"v_cvt_pk_bf16_f32 v{q+2*h2+1}, v{A+2}, v{A+3}"))
                ops.append((1, "s_nop 1"))
                ops.append((1, f"v_permlane16_swap_b32 v{q}, v{q+2}"))
                ops.append((1, f"v_permlane16_swap_b32 v{q+1}, v{q+3}"))
                ops.append((1, f"s_add_u32 s{sT0}, s{sPART}, {(a*4 + ntp*2 + j)*1024}"))
                ops.append((1, ("store", f"buffer_store_dwordx4 v[{q}:{q+3}], v{vST}, s[{sWS}:{sWS+3}], s{sT0} offen")))
        return ops

    for it in items[2:4]:
        emit_dma_all(it)
    n = vm.need(("W", 0)); k(f"s_waitcnt vmcnt({n})")
    k("s_barrier")
    stamp()
    for kind, l in x_read_ops(0): k(l)
    k("s_waitcnt lgkmcnt(0)")
    freed = {("X", 0): False}
    next_item = 4
    done_items = set()
    def can_issue(idx):
        it = items[idx]; lo, hi = uabs[it]
        for other in items[:idx]:
            a, b = uabs[other]
            if a < hi - NUNIT and b > lo - NUNIT and other not in done_items: return False
        return True
    stage_first = {}
    for idx, d in enumerate(mf): stage_first.setdefault(d["st"], idx)
    stage_len = {st: sum(1 for d in mf if d["st"] == st) for st in range(NS)}
    for f in range(LA): emit_reads(frags[f])
    fillers = []; rate = 0.0; credit = 0.0
    xq = []; dmaq = []
    seen_frag = set()
    for idx, d in enumerate(mf):
        st = d["st"]; pos = idx - stage_first[st]
        if pos == 0:
            if opts.get("stamps") and (st % 3 == 0 or st < 7): stamp()
            need = []
            if st + 1 < NS: need.append(stage_item(st + 1))
            if st + 1 < 6: need.append(("X", st + 1))
            ns = [vm.need(x) for x in need if x in vm.q]
            assert all(x in vm.q for x in need), (st, need)
            assert not any(it in need for it, _ in dmaq), (st, need)
            ns = [x for x in ns if x is not None]
            if st >= 1 or True:
                if ns: k(f"s_waitcnt vmcnt({min(ns)})")
                if st >= 1 and st <= 5:
                    nn = lg.need(("x", st))
                    if nn is not None: k(f"s_waitcnt lgkmcnt({nn})")
                k("s_barrier")
            if st >= 1: done_items.add(stage_item(st - 1))
            if st <= 5: done_items.add(("X", st))
            while next_item < len(items) and can_issue(next_item):
                for op in dma_ops(items[next_item]): dmaq.append((items[next_item], op))
                next_item += 1
            if st + 1 < 6: xq = x_read_ops(st + 1)
            if st < 6:
                if st >= 1 and False: pass
                assert not fillers, st
                fillers = []
                if st == 1: fillers = cs_ops()
                if st == 5: fillers = finalize_ops()
                span = stage_len[st] - (36 if st == 5 else 8)
                rate = sum(c for c, _ in fillers) / span; credit = -14*rate if st == 5 else 0
            elif st < 24 and st % 6 == 0:
                assert not fillers, st
                g = st // 6
                fillers = gelu_ops(vACC[(g-1) % 2], 4, vH + 16*(g-1))
                span = sum(stage_len[s] for s in range(st, st + 6)) - 12
                rate = sum(c for c, _ in fillers) / span; credit = -6*rate
            elif st == 24:
                assert not fillers
                fillers = gelu_ops(vACC[1], 4, vH + 48)
                span = sum(stage_len[s] for s in range(24, 27)) - 12
                rate = sum(c for c, _ in fillers) / span; credit = -6*rate
            elif st == 27:
                assert not fillers
                fillers = gelu_ops(vACC[0], 2, vH + 64)
                span = 56; rate = sum(c for c, _ in fillers) / span; credit = -6*rate
            elif st > 27:
                assert not fillers, (st, len(fillers))
                fillers = epi_ops(st - 1)
                span = stage_len[st] - 16
                rate = sum(c for c, _ in fillers) / span; credit = -6*rate
            if st == 24:
                for l in [f"v_add_u32 v{vHB[0]}, PLACE, v{vLH}"]: pass
        def flush_fillers():
            nonlocal fillers
            for c, l in fillers:
                if isinstance(l, tuple): k(l[1]); vm.issue("ST" if l[0] == "store" else "CS")
                else: k(l)
            fillers = []
        if st == 5 and d["fr"] is None and pos >= 12 and fillers: flush_fillers()
        if d.get("needH") == 8 and st == 27 and fillers:
            flush_fillers(); k("s_nop 1")
        fr = d["fr"]
        if fr is not None and fr["n"] not in seen_frag:
            seen_frag.add(fr["n"])
            f = fr["n"]
            if f % 2 == 0:
                tgt = min(f + 1, len(frags) - 1)
                nn = lg.need(("f", tgt)) if ("f", tgt) in lg.q else lg.need(("f", f))
            else: nn = lg.need(("f", f))
            if nn is not None: k(f"s_waitcnt lgkmcnt({nn})")
            firstuse = True
        else: firstuse = False
        A = d["A"] if fr is None else f"a[{fr['reg']}:{fr['reg']+3}]"
        C = "0" if d["first"] else f"v[{d['acc']}:{d['acc']+3}]"
        k(f"v_mfma_f32_16x16x32_bf16 v[{d['acc']}:{d['acc']+3}], {A}, {d['B']}, {C}")
        if st == 23 and pos == 4 or (st in (24, 25) and pos == 4):
            nb = upos[stage_item(st + 1)]*UNIT
            pass
        if fr is not None:
            nf = fr["n"] + LA
            if nf < len(frags):
                nfr = frags[nf]
                if firstuse:
                    if nfr["st"] != frags[nf-1]["st"]:
                        ns_ = nfr["st"]
                        if 24 <= ns_ < 27:
                            nb = upos[stage_item(ns_)]*UNIT
                            k(f"v_add_u32 v{vHB[0]}, {nb}, v{vLH}"); k(f"v_add_u32 v{vHB[1]}, {nb}, v{vLH1}")
                        if ns_ == 27:
                            for l in set_bases_p2(): k(l)
                    emit_reads(nfr, 0)
                else:
                    emit_reads(nfr, 1)
        if xq and pos >= 2:
            kind, l = xq.pop(0)
            if kind == "x": lg_room()
            k(l)
            if kind == "x": lg.issue(("x", st + 1))
            elif xq and xq[0][0] == "v":
                kind, l = xq.pop(0); k(l)
        if dmaq and pos % 3 == 1:
            while dmaq:
                it, (kind, x) = dmaq.pop(0)
                if kind == "s":
                    for l in x: k(l)
                    k("s_nop 0")
                else:
                    if not opts.get("nodma"): k(x)
                    vm.issue(it); break
        credit += rate
        while fillers and credit >= fillers[0][0]:
            c, l = fillers.pop(0); credit -= c
            if isinstance(l, tuple): k(l[1]); vm.issue("ST" if l[0] == "store" else "CS")
            elif not opts.get("nofill"): k(l)
    assert not dmaq and next_item == len(items), (len(dmaq), next_item)
    flush_fillers()
    k("s_nop 7")
    for c, l in epi_ops(NS - 1):
        if isinstance(l, tuple): k(l[1])
        else: k(l)
    k("s_waitcnt vmcnt(0)")
    stamp()
    if opts.get("stamps"):
        k("v_mov_b32 v1, 0")
        for i in range(nst[0]): k(f"v_writelane_b32 v1, s{62+i}, {i}")
        k(f"v_lshlrev_b32 v2, 2, v{vLANE}")
        k(f"s_lshl_b32 s60, s2, 2\ns_add_u32 s60, s60, s{sW}\ns_lshl_b32 s60, s60, 8\ns_add_u32 s60, s60, {WS_DBG}")
        k(f"buffer_store_dword v1, v2, s[{sWS}:{sWS+3}], s60 offen")
        k("s_waitcnt vmcnt(0)")
    k.label(f"L{name}_end")
    k("s_endpgm")
    return k

if __name__ == "__main__":
    from asmlib import build_file
    V = {"k3b": {}, "k3b_rt": {"stamps": 1, "rt": 1}, "k3b_cy": {"stamps": 1}}
    for nm, o in (("nodma", {"nodma":1}), ("nofill", {"nofill":1}), ("noread", {"noread":1}), ("bare", {"nodma":1,"nofill":1,"noread":1}), ("onlyread", {"nodma":1,"nofill":1})):
        V["k3b_rt_"+nm] = dict(o, stamps=1, rt=1); V["k3b_cy_"+nm] = dict(o, stamps=1)
    for nm, o in V.items():
        k = gen_k3b(opts=o)
        build_file(f"mb/{nm}.s", [(k, 512, 102, 256)], [("k3_kernel", 256, 256, LDS_BYTES)])
        print(nm, len(k.lines))
```

```python
from asmlib import K
from gen_k3 import WS_HT, WS_PART, WS_END
PSZ = 2048*576*2
def gen_k4(name="k4_kernel", v2=False):
    k = K(name)
    k(f"""
    s_cmp_ge_u32 s2, 576
    s_cbranch_scc1 L{name}_end
    s_load_dwordx2 s[4:5], s[0:1], 88          ; out
    s_load_dwordx2 s[6:7], s[0:1], 104         ; ws
    v_lshrrev_b32 v1, 6, v0
    v_and_b32 v2, 63, v0                       ; lane
    s_nop 0
    v_readfirstlane_b32 s16, v1
    s_lshl_b32 s17, s2, 2
    s_add_u32 s17, s17, s16
    s_mul_hi_u32 s18, s17, 119304648           ; rowblk = q/36
    s_mul_i32 s19, s18, 36
    s_sub_u32 s19, s17, s19                    ; rem
    s_waitcnt lgkmcnt(0)
    s_mov_b32 s8, s6
    s_mov_b32 s9, s7
    s_mov_b32 s10, {WS_END}
    s_mov_b32 s11, 0x20000
    s_mov_b32 s12, s4
    s_mov_b32 s13, s5
    s_mov_b32 s14, {PSZ}
    s_mov_b32 s15, 0x20000
    v_lshlrev_b32 v3, 4, v2                    ; lane*16
    s_lshl_b32 s20, s17, 10
    s_add_u32 s20, s20, {WS_PART}
    """)
    for j in range(16):
        k(f"buffer_load_dwordx4 v[{16+4*j}:{16+4*j+3}], v3, s[8:11], s20 offen")
        if j < 15: k(f"s_add_u32 s20, s20, {PSZ}")
    if not v2:
        k(f"""
        v_and_b32 v4, 31, v2
        v_lshrrev_b32 v5, 5, v2
        v_lshlrev_b32 v6, 15, v5                   ; 8*(lane>>5)*4096
        v_lshl_add_u32 v6, v4, 1, v6               ; + (lane&31)*2
        s_lshl_b32 s21, s18, 6                     ; 32*rowblk*2
        s_lshl_b32 s22, s19, 16                    ; 16*rem*4096
        s_add_u32 s21, s21, s22
        s_add_u32 s21, s21, {WS_HT}
        """)
    else:
        k(f"""
        v_and_b32 v4, 15, v2
        v_bfe_u32 v5, v2, 4, 1
        v_lshlrev_b32 v5, 1, v5
        v_lshrrev_b32 v8, 5, v2
        v_add_u32 v5, v5, v8                       ; (n offset)/8 = 2*(R&1) + (R>>1)
        v_lshlrev_b32 v6, 15, v5
        v_lshl_add_u32 v6, v4, 1, v6
        s_and_b32 s24, s19, 1                      ; jm
        s_lshr_b32 s25, s19, 1
        s_lshl_b32 s21, s18, 6
        s_lshl_b32 s22, s24, 5
        s_add_u32 s21, s21, s22
        s_lshl_b32 s22, s25, 17                    ; 32*blk*4096
        s_add_u32 s21, s21, s22
        s_add_u32 s21, s21, {WS_HT}
        """)
    for i in range(8):
        k(f"buffer_load_ushort v{92+i}, v6, s[8:11], s21 offen")
        if i < 7: k("s_add_u32 s21, s21, 4096")
    if not v2:
        k(f"""
        v_mul_u32_u24 v7, 1152, v4
        v_lshl_add_u32 v7, v5, 4, v7
        s_mul_i32 s23, s18, {32*1152}
        s_lshl_b32 s24, s19, 5
        s_add_u32 s23, s23, s24
        """)
    else:
        k(f"""
        v_mul_u32_u24 v7, 1152, v4
        v_lshl_add_u32 v7, v5, 4, v7
        s_mul_i32 s23, s18, {32*1152}
        s_mul_i32 s24, s24, {16*1152}
        s_add_u32 s23, s23, s24
        s_lshl_b32 s25, s25, 6
        s_add_u32 s23, s23, s25
        """)
    for j in range(16):
        k(f"s_waitcnt vmcnt({min(63, 15 - j + 8)})")
        for d in range(4):
            r = 16 + 4*j + d
            if j == 0:
                k(f"v_lshlrev_b32 v{80+2*d}, 16, v{r}")
                k(f"v_and_b32 v{81+2*d}, 0xffff0000, v{r}")
            else:
                k(f"v_lshlrev_b32 v12, 16, v{r}")
                k(f"v_and_b32 v13, 0xffff0000, v{r}")
                k(f"v_add_f32 v{80+2*d}, v{80+2*d}, v12")
                k(f"v_add_f32 v{81+2*d}, v{81+2*d}, v13")
    k("s_waitcnt vmcnt(0)")
    for d in range(4):
        k(f"""
        v_cvt_pk_bf16_f32 v12, v{80+2*d}, v{81+2*d}
        v_lshlrev_b32 v13, 16, v12
        v_and_b32 v12, 0xffff0000, v12
        v_lshlrev_b32 v14, 16, v{92+2*d}
        v_lshlrev_b32 v15, 16, v{93+2*d}
        v_add_f32 v13, v13, v14
        v_add_f32 v12, v12, v15
        v_cvt_pk_bf16_f32 v{88+d}, v13, v12
        """)
    k(f"""
    buffer_store_dwordx4 v[88:91], v7, s[12:15], s23 offen
    s_waitcnt vmcnt(0)
    """)
    k.label(f"L{name}_end")
    k("s_endpgm")
    return k
```

```python
import sys
from asmlib import build_file
from gen_k1 import gen_k1, NA, NB, NC, K1_LDS
from gen_k2 import gen_k2, K2_LDS
from gen_k3b import gen_k3b, LDS_BYTES
from gen_k4 import gen_k4
HEADER = """; sequential_preLN -> S4D conv -> preLN -> GEGLU FFN, gfx950.  Generated by a hand-written generator (dev/gen_*.py).
"""
def build(fn, extra_empty=0, k3opts=None):
    k1 = gen_k1(); k2 = gen_k2(); k3 = gen_k3b(opts=k3opts); k4 = gen_k4(v2=True)
    k3.lines = [l + ' sc1' if 'buffer_store_dwordx4' in l else l for l in k3.lines]
    ks = [(k1, 104, 64, 104), (k2, 160, 64, 160), (k3, 512, 102, 256), (k4, 104, 32, 104)]
    launches = [("k1_kernel", NA+NB+NC, 256, K1_LDS), ("k2_kernel", 576, 256, K2_LDS), ("k3_kernel", 256, 256, LDS_BYTES), ("k4_kernel", 576, 256, 0)]
    if extra_empty:
        from asmlib import K
        e = K("e_kernel"); e("s_endpgm")
        ks.append((e, 8, 16, 8))
        launches = launches + [("e_kernel", 256, 64, 0)]*extra_empty
    build_file(fn, ks, launches, header=HEADER)
if __name__ == "__main__":
    build("sequential_preLN__ssm_conv_s4d__geglu_ffn__prompt.s")
    build("mb/all.s")
```

```python
from asmlib import K
from gen_k3 import WS_XT, WS_UT, WS_HT, WS_CS, WS_END, f2u
from gen_k3 import WS_KG
WS_FL = WS_KG
WS_UX = WS_XT
from gen_k1 import srd, bf16r, cmul, LOG2E
import gen_k1, math
NP, NV, NB = 128, 576, 144
KA_LDS = 40960
TP = 544; TA = 0; TB = 16*TP; KT = TB + 41*TP
UZ = 2560; UD = UZ; KB = UD + 5120; CS = 4416; RED = KB
assert KB + 4*CS <= KA_LDS and RED + 24576 <= KA_LDS and KT + 2101*4 <= KA_LDS

def role_P(k, name, opts):
    PITCH = 1216
    k(f"""
    s_load_dwordx2 s[4:5], s[0:1], 0           ; x
    s_load_dwordx4 s[24:27], s[0:1], 96
    s_and_b32 s16, s2, 7
    s_lshl_b32 s16, s16, 4
    s_lshr_b32 s17, s2, 3
    s_add_u32 s16, s16, s17                    ; rb
    v_and_b32 v1, 63, v0                       ; lane
    v_lshrrev_b32 v2, 6, v0                    ; wave
    v_lshrrev_b32 v3, 4, v1                    ; r (0..3)
    v_and_b32 v4, 15, v1                       ; c
    v_lshl_add_u32 v5, v2, 2, v3
    v_mul_u32_u24 v6, 1152, v5
    v_lshl_add_u32 v6, v4, 4, v6               ; row*1152 + c*16
    s_mul_i32 s17, s16, {16*1152}
    v_cmp_gt_u32 vcc, 8, v4
    v_add_u32 v7, 1024, v6
    v_mov_b32 v8, 0x7fffffff
    v_cndmask_b32 v7, v8, v7, vcc
    s_waitcnt lgkmcnt(0)
    """)
    srd(k, 8, 4, 5, 2048*1152)
    X = 16
    for i in range(4):
        k(f"buffer_load_dwordx4 v[{X+4*i}:{X+4*i+3}], v6, s[8:11], s17 offen offset:{256*i}")
    k(f"buffer_load_dwordx4 v[{X+16}:{X+19}], v7, s[8:11], s17 offen")
    srd(k, 12, 26, 27, WS_END); srd(k, 28, 24, 25, 256)
    k(f"""
    v_readfirstlane_b32 s21, v2
    s_nop 3
    s_or_b32 s34, s21, s2
    s_cmp_lg_u32 s34, 0
    s_cbranch_scc1 L{name}_P_nononce
    s_memrealtime s[32:33]
    s_waitcnt lgkmcnt(0)
    s_or_b32 s32, s32, 1
    v_mov_b32 v12, s32
    v_mov_b32 v13, 0
    buffer_store_dword v12, v13, s[28:31], 0 offen sc1
    """)
    k.label(f"L{name}_P_nononce")
    if opts.get("pretouch", False):
        k(f"""
        v_and_b32 v12, 15, v1
        v_lshlrev_b32 v12, 9, v12
        s_lshl_b32 s22, s2, 2
        s_add_u32 s22, s22, {WS_FL}
        buffer_load_dword v100, v12, s[12:15], s22 offen sc1
        """)
    F = 40
    k("v_mov_b32 v9, 0x3f803f80\nv_mov_b32 v10, 0\nv_mov_b32 v11, 0\ns_waitcnt vmcnt(%d)" % (1 if opts.get("pretouch", False) else 0))
    for i in range(20):
        k(f"v_dot2_f32_bf16 v{10+(i&1)}, v{X+i}, v9, v{10+(i&1)}")
        k(f"v_lshlrev_b32 v{F+2*i}, 16, v{X+i}")
        k(f"v_and_b32 v{F+2*i+1}, 0xffff0000, v{X+i}")
    k("s_nop 1\nv_add_f32 v10, v10, v11")
    def reduce16(reg):
        k(f"""
        s_nop 1
        v_add_f32_dpp v{reg}, v{reg}, v{reg} quad_perm:[1,0,3,2] row_mask:0xf bank_mask:0xf
        s_nop 1
        v_add_f32_dpp v{reg}, v{reg}, v{reg} quad_perm:[2,3,0,1] row_mask:0xf bank_mask:0xf
        s_nop 1
        v_add_f32_dpp v{reg}, v{reg}, v{reg} row_half_mirror row_mask:0xf bank_mask:0xf
        s_nop 1
        v_add_f32_dpp v{reg}, v{reg}, v{reg} row_mirror row_mask:0xf bank_mask:0xf
        """)
    reduce16(10)
    k(f"v_mul_f32 v10, {f2u(1.0/576):#x}, v10        ; mean")
    k("v_mov_b32 v11, 0\nv_mov_b32 v12, 0\nv_mov_b32 v15, 0")
    for i in range(32):
        t = 13 + (i & 1)
        k(f"v_sub_f32 v{t}, v{F+i}, v10")
        k(f"v_fmac_f32 v{11+(i&1)}, v{t}, v{t}")
    for i in range(32, 40):
        t = 13 + (i & 1)
        k(f"v_sub_f32 v{t}, v{F+i}, v10")
        k(f"v_fmac_f32 v15, v{t}, v{t}")
    k("""
    v_add_f32 v11, v11, v12
    v_cndmask_b32 v15, 0, v15, vcc
    v_add_f32 v11, v11, v15
    """)
    reduce16(11)
    k(f"""
    v_mul_f32 v11, {f2u(1.0/576):#x}, v11        ; var
    v_cvt_pk_bf16_f32 v12, v10, v11
    v_lshlrev_b32 v10, 16, v12                   ; m (bf16)
    v_and_b32 v11, 0xffff0000, v12
    v_add_f32 v11, {f2u(1e-5):#x}, v11
    """)
    bf16r(k, 11, 11)
    k("v_sqrt_f32 v11, v11\ns_nop 0")
    bf16r(k, 11, 11)
    k("v_rcp_f32 v11, v11\ns_nop 0")
    UOFF = 16*PITCH
    k(f"""
    v_mul_u32_u24 v6, {PITCH}, v5
    v_lshl_add_u32 v6, v4, 4, v6
    """)
    for i in range(4): k(f"ds_write_b128 v6, v[{X+4*i}:{X+4*i+3}] offset:{256*i}")
    U = 80
    for i in range(20):
        a, b = F+2*i, F+2*i+1
        t = 13 + (i & 1)
        k(f"""
        v_sub_f32 v{a}, v{a}, v10
        v_sub_f32 v{b}, v{b}, v10
        v_cvt_pk_bf16_f32 v{t}, v{a}, v{b}
        v_lshlrev_b32 v{a}, 16, v{t}
        v_and_b32 v{b}, 0xffff0000, v{t}
        v_mul_f32 v{a}, v{a}, v11
        v_mul_f32 v{b}, v{b}, v11
        v_cvt_pk_bf16_f32 v{t}, v{a}, v{b}
        v_lshlrev_b32 v{a}, 16, v{t}
        v_and_b32 v{b}, 0xffff0000, v{t}
        v_cvt_pk_f16_f32 v{U+i}, v{a}, v{b}
        """)
        if i % 4 == 3 and i < 16:
            k(f"ds_write_b128 v6, v[{U+i-3}:{U+i}] offset:{UOFF+256*(i//4)}")
    k("s_and_saveexec_b64 s[20:21], vcc")
    k(f"ds_write_b128 v6, v[{X+16}:{X+19}] offset:1024")
    k(f"ds_write_b128 v6, v[{U+16}:{U+19}] offset:{UOFF+1024}")
    k("s_mov_b64 exec, s[20:21]")
    k(f"""
    v_bfe_u32 v6, v1, 2, 2
    v_mul_u32_u24 v6, {PITCH}, v6
    v_and_b32 v7, 3, v1
    v_lshl_add_u32 v6, v7, 3, v6
    v_and_b32 v7, 1, v3                          ; l half
    v_mul_u32_u24 v7, {8*PITCH}, v7
    v_add_u32 v6, v6, v7
    v_lshrrev_b32 v7, 1, v3                      ; 0: u, 1: x
    v_xor_b32 v7, 1, v7
    v_mul_u32_u24 v7, {UOFF}, v7
    v_add_u32 v6, v6, v7
    v_lshl_add_u32 v6, v2, 5, v6
    v_and_b32 v7, 15, v1
    v_lshl_add_u32 v7, v2, 4, v7
    v_lshlrev_b32 v8, 6, v7                      ; d*64
    v_lshl_add_u32 v8, v3, 4, v8                 ; + part*16
    s_mul_i32 s18, s16, {576*64}
    s_add_u32 s18, s18, {WS_UX}
    v_readfirstlane_b32 s21, v2
    s_waitcnt lgkmcnt(0)
    s_barrier
    """)
    for it in range(9):
        R = 16 + 4*(it % 3)
        k(f"ds_read_b64_tr_b16 v[{R}:{R+1}], v6 offset:{it*128}")
        k(f"ds_read_b64_tr_b16 v[{R+2}:{R+3}], v6 offset:{it*128 + 4*PITCH}")
        if it >= 2:
            Rp = 16 + 4*((it-2) % 3)
            k("s_waitcnt lgkmcnt(4)")
            k(f"buffer_store_dwordx4 v[{Rp}:{Rp+3}], v8, s[12:15], s18 offen sc1")
            k(f"s_add_u32 s18, s18, {64*64}")
            k("s_nop 0")
    for it in (7, 8):
        Rp = 16 + 4*(it % 3)
        k(f"s_waitcnt lgkmcnt({2 if it == 7 else 0})")
        k(f"buffer_store_dwordx4 v[{Rp}:{Rp+3}], v8, s[12:15], s18 offen sc1")
        k(f"s_add_u32 s18, s18, {64*64}")
    k.label(f"L{name}_P_sig")
    k(f"""
    s_cmp_lg_u32 s21, 0
    s_cbranch_scc1 L{name}_P_w
    v_mov_b32 v13, 0
    s_mov_b32 s22, 0
    """)
    k.label(f"L{name}_P_np")
    k(f"""
    buffer_load_dword v12, v13, s[28:31], 0 offen sc1
    s_waitcnt vmcnt(0)
    v_readfirstlane_b32 s23, v12
    s_cmp_lg_u32 s23, 0
    s_cbranch_scc1 L{name}_P_w
    s_add_u32 s22, s22, 1
    s_cmp_lt_u32 s22, 0x40000
    s_cbranch_scc0 L{name}_P_w
    s_sleep 4
    s_branch L{name}_P_np
    """)
    k.label(f"L{name}_P_w")
    k(f"""
    s_waitcnt vmcnt(0)
    s_barrier
    s_cmp_lg_u32 s21, 0
    s_cbranch_scc1 L{name}_end
    v_cmp_gt_u32 vcc, 16, v1
    s_and_saveexec_b64 s[18:19], vcc
    v_lshlrev_b32 v6, 9, v1                      ; replica*512
    s_lshl_b32 s22, s2, 2
    s_add_u32 s22, s22, {WS_FL}
    buffer_store_dword v12, v6, s[12:15], s22 offen sc1
    s_branch L{name}_end
    """)

def poll_flags(k, name, tag, srd_dbg, srd_ws, sleep, vA, vB, sT):
    k(f"""
    v_mov_b32 v{vB}, 0
    s_mov_b32 s{sT}, 0
    """)
    k.label(f"L{name}_{tag}_np")
    k(f"""
    buffer_load_dword v{vA}, v{vB}, s[{srd_dbg}:{srd_dbg+3}], 0 offen sc1
    s_waitcnt vmcnt(0)
    v_readfirstlane_b32 s{sT+1}, v{vA}
    s_cmp_lg_u32 s{sT+1}, 0
    s_cbranch_scc1 L{name}_{tag}_gotn
    s_add_u32 s{sT}, s{sT}, 1
    s_cmp_lt_u32 s{sT}, 0x40000
    s_cbranch_scc0 L{name}_{tag}_gotn
    s_sleep 4
    s_branch L{name}_{tag}_np
    """)
    k.label(f"L{name}_{tag}_gotn")
    k(f"""
    s_and_b32 s{sT+2}, s2, 15
    s_lshl_b32 s{sT+2}, s{sT+2}, 9
    s_add_u32 s{sT+2}, s{sT+2}, {WS_FL}
    v_lshlrev_b32 v{vB}, 3, v1
    """)
    k.label(f"L{name}_{tag}_poll")
    k(f"""
    buffer_load_dwordx2 v[{vA}:{vA+1}], v{vB}, s[{srd_ws}:{srd_ws+3}], s{sT+2} offen sc1
    s_waitcnt vmcnt(0)
    v_cmp_ne_u32 vcc, s{sT+1}, v{vA}
    v_cmp_ne_u32 s[{sT+4}:{sT+5}], s{sT+1}, v{vA+1}
    s_or_b64 vcc, vcc, s[{sT+4}:{sT+5}]
    s_cbranch_vccz L{name}_{tag}_go
    s_add_u32 s{sT}, s{sT}, 1
    s_cmp_lt_u32 s{sT}, 0x40000
    s_cbranch_scc0 L{name}_{tag}_go
    s_sleep {sleep}
    s_branch L{name}_{tag}_poll
    """)
    k.label(f"L{name}_{tag}_go")

def role_B(k, name, opts):
    k(f"""
    s_load_dwordx4 s[4:7], s[0:1], 64
    s_load_dwordx2 s[24:25], s[0:1], 80         ; w_down
    s_load_dwordx4 s[32:35], s[0:1], 96
    s_sub_u32 s26, s2, {NP+NV}
    s_cmp_ge_u32 s26, 72
    s_cselect_b32 s19, 72, 0
    s_cselect_b32 s20, 1, 0
    s_sub_u32 s18, s26, s19                     ; cidx
    v_lshrrev_b32 v1, 3, v0                     ; rg
    v_and_b32 v2, 7, v0                         ; c
    v_mul_u32_u24 v3, 9216, v1
    v_lshl_add_u32 v3, v2, 4, v3
    s_waitcnt lgkmcnt(0)
    s_cmp_eq_u32 s20, 1
    s_cselect_b32 s8, s6, s4
    s_cselect_b32 s9, s7, s5
    s_mov_b32 s10, {576*9216}
    s_mov_b32 s11, 0x20000
    """)
    srd(k, 12, 34, 35, WS_END)
    if opts.get("bwait", True):
        srd(k, 36, 32, 33, 256)
        k(f"v_and_b32 v1, 63, v0\nv_lshrrev_b32 v60, 6, v0\ns_nop 0\nv_readfirstlane_b32 s40, v60\ns_nop 3\ns_cmp_lg_u32 s40, 0\ns_cbranch_scc1 L{name}_B_nopoll")
        poll_flags(k, name, "B", 36, 12, 16, 60, 62, 40)
        k.label(f"L{name}_B_nopoll")
        k("s_barrier\nv_lshrrev_b32 v1, 3, v0")
    k("s_lshl_b32 s21, s18, 7")
    for i in range(18):
        k(f"buffer_load_dwordx4 v[{16+4*i}:{16+4*i+3}], v3, s[8:11], s21 offen")
        if i < 17: k(f"s_add_u32 s21, s21, {32*9216}")
    srd(k, 28, 24, 25, 4608*1152)
    k(f"""
    s_mul_i32 s27, s26, {288*128}
    v_lshlrev_b32 v14, 7, v0
    buffer_load_dword v90, v14, s[28:31], s27 offen
    v_cmp_gt_u32 vcc, 32, v0
    v_add_u32 v15, {256*128}, v14
    v_mov_b32 v91, 0x7fffffff
    v_cndmask_b32 v15, v91, v15, vcc
    buffer_load_dword v91, v15, s[28:31], s27 offen
    """)
    for i in range(18):
        k(f"s_waitcnt vmcnt({17-i+2})")
        for d in range(4):
            r = 16+4*i+d
            if i == 0:
                k(f"v_lshlrev_b32 v{4+2*d}, 16, v{r}\nv_and_b32 v{5+2*d}, 0xffff0000, v{r}")
            else:
                k(f"v_lshlrev_b32 v12, 16, v{r}\nv_and_b32 v13, 0xffff0000, v{r}\nv_add_f32 v{4+2*d}, v{4+2*d}, v12\nv_add_f32 v{5+2*d}, v{5+2*d}, v13")
    k(f"""
    v_lshlrev_b32 v12, 8, v1
    v_lshl_add_u32 v12, v2, 5, v12
    ds_write_b128 v12, v[4:7]
    ds_write_b128 v12, v[8:11] offset:16
    s_waitcnt lgkmcnt(0)
    s_barrier
    v_cmp_gt_u32 vcc, 64, v0
    s_and_saveexec_b64 s[22:23], vcc
    s_cbranch_execz L{name}_end
    v_lshlrev_b32 v12, 2, v0
    """)
    for i in range(32):
        k(f"ds_read_b32 v{16+i}, v12 offset:{256*i}")
        if i in (14, 29): k("s_waitcnt lgkmcnt(0)")
    k("s_waitcnt lgkmcnt(0)")
    for st in (16, 8, 4, 2, 1):
        for i in range(st): k(f"v_add_f32 v{16+i}, v{16+i}, v{16+i+st}")
    k(f"""
    v_cvt_pk_bf16_f32 v13, v16, v16
    v_and_b32 v14, 0xffff0000, v13
    v_sub_f32 v14, v16, v14
    v_cvt_pk_bf16_f32 v14, v14, v14
    v_and_b32 v13, 0xffff, v13
    v_and_b32 v14, 0xffff0000, v14
    v_or_b32 v13, v13, v14
    s_lshl_b32 s22, s18, 6
    v_add_u32 v15, s22, v0                      ; f
    s_mov_b32 s22, 14913081
    v_mul_hi_u32 v16, v15, s22                  ; j
    v_mul_u32_u24 v17, 288, v16
    v_sub_u32 v17, v15, v17                     ; local
    v_and_b32 v18, 1, v16
    v_lshlrev_b32 v19, 5, v18
    v_sub_u32 v19, v17, v19
    v_cmp_gt_i32 vcc, 0, v19
    v_add_u32 v20, 288, v19
    s_nop 0
    v_cndmask_b32 v19, v19, v20, vcc
    v_lshrrev_b32 v20, 4, v19
    v_and_b32 v19, 15, v19
    v_lshl_add_u32 v19, v16, 4, v19
    v_mul_u32_u24 v19, 36, v19
    v_lshl_add_u32 v19, v20, 1, v19
    v_add_u32 v19, s20, v19
    v_lshlrev_b32 v12, 2, v19
    s_mov_b32 s21, {WS_CS}
    buffer_store_dword v13, v12, s[12:15], s21 offen
    s_branch L{name}_end
    """)

def role_V(k, name, opts):
    k(f"""
    s_load_dwordx4 s[4:7], s[0:1], 8
    s_load_dwordx4 s[24:27], s[0:1], 24
    s_load_dwordx4 s[28:31], s[0:1], 40
    s_load_dwordx4 s[48:51], s[0:1], 96
    s_sub_u32 s16, s2, {NP}
    s_and_b32 s18, s16, 7
    s_mul_i32 s18, s18, 72
    s_lshr_b32 s16, s16, 3
    s_add_u32 s16, s16, s18
    v_and_b32 v1, 63, v0                        ; lane
    v_lshrrev_b32 v2, 6, v0                     ; wave
    v_and_b32 v3, 1, v2
    v_lshl_add_u32 v4, v3, 6, v1                ; n
    v_lshlrev_b32 v5, 1, v4                     ; n*2
    v_xor_b32 v6, 128, v5
    v_readfirstlane_b32 s17, v2
    s_lshl_b32 s18, s16, 8                      ; d*256
    s_lshl_b32 s19, s16, 1
    v_mov_b32 v7, s19
    s_waitcnt lgkmcnt(0)
    """)
    srd(k, 8, 4, 5, 576*256); srd(k, 12, 6, 7, 576*256); srd(k, 32, 24, 25, 576*256); srd(k, 36, 26, 27, 576*256)
    srd(k, 40, 28, 29, 576*2); srd(k, 52, 30, 31, 576*2); srd(k, 44, 50, 51, WS_END); srd(k, 56, 48, 49, 256)
    k("""
    buffer_load_ushort v8, v5, s[8:11], s18 offen
    buffer_load_ushort v14, v7, s[40:43], 0 offen
    buffer_load_ushort v9, v5, s[12:15], s18 offen
    buffer_load_ushort v10, v5, s[32:35], s18 offen
    buffer_load_ushort v11, v5, s[36:39], s18 offen
    buffer_load_ushort v12, v6, s[32:35], s18 offen
    buffer_load_ushort v13, v6, s[36:39], s18 offen
    buffer_load_ushort v62, v7, s[52:55], 0 offen       ; D_skip
    """)
    for i in range(8):
        sh = {0: 0, 1: 1, 2: 2, 3: 2}.get(i, 3)
        r = 40 + i
        if sh == 0: k(f"v_lshlrev_b32 v{r}, 2, v0")
        else:
            k(f"""
            v_add_u32 v38, {256*i}, v0
            v_bfe_u32 v39, v38, {sh}, 1
            v_add_u32 v38, v38, v39
            v_add_u32 v38, {(1 << (sh-1)) - 1}, v38
            v_lshrrev_b32 v38, {sh}, v38
            v_lshlrev_b32 v{r}, {sh+2}, v38
            """)
    k("s_waitcnt vmcnt(0)")
    for r in (8, 9, 10, 11, 12, 13, 14, 62): k(f"v_lshlrev_b32 v{r}, 16, v{r}")
    k(f"""
    v_mul_f32 v14, {f2u(LOG2E):#x}, v14
    v_mul_f32 v8, {f2u(LOG2E):#x}, v8
    v_exp_f32 v14, v14
    v_exp_f32 v8, v8
    v_add_f32 v15, |v10|, |v11|
    v_add_f32 v16, |v12|, |v13|
    v_add_f32 v15, v15, v16
    """)
    bf16r(k, 14, 14); bf16r(k, 8, 8)
    k("""
    s_nop 1
    v_add_f32_dpp v15, v15, v15 quad_perm:[1,0,3,2] row_mask:0xf bank_mask:0xf
    s_nop 1
    v_add_f32_dpp v15, v15, v15 quad_perm:[2,3,0,1] row_mask:0xf bank_mask:0xf
    s_nop 1
    v_add_f32_dpp v15, v15, v15 row_half_mirror row_mask:0xf bank_mask:0xf
    s_nop 1
    v_add_f32_dpp v15, v15, v15 row_mirror row_mask:0xf bank_mask:0xf
    s_nop 1
    v_readlane_b32 s20, v15, 0
    v_readlane_b32 s21, v15, 16
    v_readlane_b32 s22, v15, 32
    v_readlane_b32 s23, v15, 48
    s_nop 1
    v_mov_b32 v15, s20
    v_add_f32 v15, s21, v15
    v_add_f32 v15, s22, v15
    v_add_f32 v15, s23, v15
    v_mul_f32 v15, v15, v14
    v_add_f32 v15, v15, v15
    v_frexp_exp_i32_f32 v16, v15
    v_sub_u32 v17, 13, v16
    v_mov_b32 v18, 1.0
    v_ldexp_f32 v19, v18, v17                    ; S
    v_sub_u32 v17, 0, v17
    v_ldexp_f32 v63, v18, v17
    """)
    k(f"""
    v_mul_f32 v8, v8, v14
    v_mul_f32 v9, v9, v14
    v_mul_f32 v8, {f2u(-LOG2E):#x}, v8
    v_mul_f32 v9, 0.15915494, v9
    """)
    AL, BE = 8, 9
    def direct(dr, di, p, t0=21, t1=22):
        k(f"""
        v_mul_f32 v{t0}, {f2u(float(p)):#x}, v{AL}
        v_mul_f32 v{t1}, {f2u(float(p)):#x}, v{BE}
        v_exp_f32 v{t0}, v{t0}
        v_fract_f32 v{t1}, v{t1}
        s_nop 0
        v_cos_f32 v{dr}, v{t1}
        v_sin_f32 v{di}, v{t1}
        s_nop 0
        v_mul_f32 v{dr}, v{dr}, v{t0}
        v_mul_f32 v{di}, v{di}, v{t0}
        """)
    k("v_lshlrev_b32 v23, 2, v4")
    def put(tab, row, re, im, neg=False, tmp=24):
        if neg: k(f"v_cvt_pk_f16_f32 v{tmp}, v{re}, -v{im}")
        else: k(f"v_cvt_pk_f16_f32 v{tmp}, v{re}, v{im}")
        k(f"ds_write_b32 v23, v{tmp} offset:{tab + row*TP}")
    k(f"s_cmp_ge_u32 s17, 2\ns_cbranch_scc1 L{name}_V_part1")
    direct(30, 31, 1); direct(32, 33, 16)
    k("""
    v_mul_f32 v25, v19, v14
    v_add_f32 v25, v25, v25
    v_mul_f32 v34, v10, v25
    v_mul_f32 v35, v11, v25
    v_mov_b32 v26, 1.0
    v_mov_b32 v27, 0
    """)
    fr, fi, er, ei = 34, 35, 26, 27
    for r in range(16):
        put(TA, r, fr, fi, neg=True, tmp=24)
        put(TB, r, er, ei, tmp=25)
        if r < 15:
            nf = 36 if fr == 34 else 34; ne = 28 if er == 26 else 26
            cmul(k, nf, nf+1, fr, fi, 32, 33)
            cmul(k, ne, ne+1, er, ei, 30, 31)
            fr, fi, er, ei = nf, nf+1, ne, ne+1
    k(f"s_branch L{name}_V_join")
    k.label(f"L{name}_V_part1")
    direct(30, 31, 2); direct(32, 33, 256)
    cmul(k, 34, 35, 30, 31, 30, 31)
    cmul(k, 36, 37, 34, 35, 34, 35)
    cmul(k, 38, 39, 32, 33, 32, 33)
    cmul(k, 48, 49, 38, 39, 38, 39)
    cmul(k, 50, 51, 48, 49, 48, 49)
    put(TB, 40, 50, 51)
    cr_, ci_ = 32, 33
    put(TB, 16, cr_, ci_)
    for c in range(1, 8):
        n_ = 52 if cr_ != 52 else 54
        cmul(k, n_, n_+1, cr_, ci_, 30, 31); cr_, ci_ = n_, n_+1
        put(TB, 16 + c, cr_, ci_, tmp=24 + (c & 1))
    cmul(k, 56, 57, 38, 39, 32, 33)
    for base, (b0, b1) in ((24, (38, 39)), (28, (56, 57))):
        cr_, ci_ = b0, b1
        put(TB, base, cr_, ci_)
        for c in range(1, 4):
            n_ = 52 if cr_ != 52 else 54
            cmul(k, n_, n_+1, cr_, ci_, 34, 35); cr_, ci_ = n_, n_+1
            put(TB, base + c, cr_, ci_, tmp=24 + (c & 1))
    cr_, ci_ = 48, 49
    for g in range(4):
        put(TB, 32 + 2*g, cr_, ci_)
        cmul(k, 58, 59, cr_, ci_, 36, 37)
        put(TB, 32 + 2*g + 1, 58, 59, tmp=25)
        if g < 3:
            n_ = 52 if cr_ != 52 else 54
            cmul(k, n_, n_+1, cr_, ci_, 32, 33); cr_, ci_ = n_, n_+1
    k.label(f"L{name}_V_join")
    k("s_waitcnt lgkmcnt(0)\ns_barrier")
    k(f"""
    v_and_b32 v4, 15, v1                          ; a / col / b
    v_lshrrev_b32 v5, 4, v1                       ; q
    s_cmp_ge_u32 s17, 3
    s_cbranch_scc1 L{name}_V_skipmm
    v_mul_u32_u24 v26, {TP}, v4
    v_lshl_add_u32 v26, v5, 4, v26
    s_mul_i32 s20, s17, {16*TP}
    v_add_u32 v27, s20, v26
    """)
    for t in range(8):
        k(f"ds_read_b128 v[{64+8*t}:{64+8*t+3}], v26 offset:{TA + 64*t}")
        k(f"ds_read_b128 v[{68+8*t}:{68+8*t+3}], v27 offset:{TB + 64*t}")
        if t == 6: k("s_waitcnt lgkmcnt(8)")
    k(f"""
    v_mov_b32 v32, v4
    s_cmp_eq_u32 s17, 0
    s_cbranch_scc1 L{name}_V_oready
    s_cmp_eq_u32 s17, 1
    s_cbranch_scc0 L{name}_V_t2
    v_lshlrev_b32 v33, 1, v4
    v_add_u32 v33, 256, v33
    v_and_b32 v34, 3, v4
    v_lshlrev_b32 v34, 2, v34
    v_bfe_u32 v35, v4, 2, 1
    v_lshlrev_b32 v35, 8, v35
    v_add_u32 v34, v34, v35
    v_add_u32 v34, 512, v34
    v_cmp_gt_u32 vcc, 8, v4
    s_nop 1
    v_cndmask_b32 v32, v34, v33, vcc
    s_branch L{name}_V_oready
    """)
    k.label(f"L{name}_V_t2")
    k(f"""
    v_lshrrev_b32 v33, 1, v4
    v_lshlrev_b32 v33, 8, v33
    v_and_b32 v34, 1, v4
    v_lshl_add_u32 v33, v34, 3, v33
    v_add_u32 v33, 1024, v33
    v_cmp_gt_u32 vcc, 9, v4
    v_mov_b32 v34, 2052
    s_nop 0
    v_cndmask_b32 v32, v34, v33, vcc
    """)
    k.label(f"L{name}_V_oready")
    k(f"""
    v_lshl_add_u32 v33, v5, 6, v32
    v_min_u32 v34, 2100, v33
    v_add_u32 v35, 16, v33
    v_min_u32 v35, 2100, v35
    v_add_u32 v36, 32, v33
    v_min_u32 v36, 2100, v36
    v_add_u32 v37, 48, v33
    v_min_u32 v37, 2100, v37
    v_lshlrev_b32 v34, 2, v34
    v_lshlrev_b32 v35, 2, v35
    v_lshlrev_b32 v36, 2, v36
    v_lshlrev_b32 v37, 2, v37
    """)
    for t in range(8):
        k(f"s_waitcnt lgkmcnt({min(15, 2*(7-t))})")
        C = "0" if t == 0 else "v[28:31]"
        k(f"v_mfma_f32_16x16x32_f16 v[28:31], v[{64+8*t}:{64+8*t+3}], v[{68+8*t}:{68+8*t+3}], {C}")
    k(f"""
    s_nop 7
    ds_write_b32 v34, v28 offset:{KT}
    ds_write_b32 v35, v29 offset:{KT}
    ds_write_b32 v36, v30 offset:{KT}
    ds_write_b32 v37, v31 offset:{KT}
    """)
    k.label(f"L{name}_V_skipmm")
    k("s_waitcnt lgkmcnt(0)\ns_barrier")
    for i in range(8): k(f"ds_read_b32 v{48+i}, v{40+i} offset:{KT}")
    k(f"""
    v_mov_b32 v16, 0
    v_mov_b32 v17, 0
    v_mov_b32 v18, 0
    v_mov_b32 v19, 0
    v_lshlrev_b32 v14, 4, v0                   ; tid*16
    v_cmp_gt_u32 vcc, 160, v0
    s_and_saveexec_b64 s[22:23], vcc
    ds_write_b128 v14, v[16:19]
    s_mov_b64 exec, s[22:23]
    v_cmp_gt_u32 vcc, 32, v0
    v_lshrrev_b32 v15, 3, v0
    v_mul_u32_u24 v15, {CS}, v15
    v_and_b32 v20, 7, v0
    v_lshl_add_u32 v15, v20, 4, v15
    s_and_saveexec_b64 s[22:23], vcc
    ds_write_b128 v15, v[16:19] offset:{KB}
    s_mov_b64 exec, s[22:23]
    v_lshlrev_b32 v15, 1, v0
    s_waitcnt lgkmcnt(0)
    """)
    for i in range(8):
        k(f"v_cvt_f16_f32 v{48+i}, v{48+i}")
        k(f"ds_write_b16 v15, v{48+i} offset:{KB + 128 + 512*i}")
    k("s_waitcnt lgkmcnt(0)\ns_barrier")
    k(f"""
    ds_read_b128 v[24:27], v14 offset:{KB + 128}
    ds_read_b64 v[22:23], v14 offset:{KB + 120}
    """)
    k(f"""
    s_cmp_lg_u32 s17, 0
    s_cbranch_scc1 L{name}_V_nopoll
    """)
    poll_flags(k, name, "V", 56, 44, opts.get("vsleep", 4), 60, 21, 60)
    k.label(f"L{name}_V_nopoll")
    k(f"""
    s_waitcnt lgkmcnt(0)
    v_alignbit_b32 v28, v23, v22, 16
    v_alignbit_b32 v29, v24, v23, 16
    v_alignbit_b32 v30, v25, v24, 16
    v_alignbit_b32 v31, v26, v25, 16
    v_alignbit_b32 v32, v27, v26, 16
    v_mov_b32 v36, v29
    v_mov_b32 v37, v30
    v_mov_b32 v38, v31
    v_mov_b32 v39, v32
    v_mov_b32 v40, v23
    v_mov_b32 v41, v24
    v_mov_b32 v42, v25
    v_mov_b32 v43, v26
    ds_write_b128 v14, v[28:31] offset:{KB + 3*CS + 128}
    ds_write_b128 v14, v[36:39] offset:{KB + 1*CS + 128}
    ds_write_b128 v14, v[40:43] offset:{KB + 2*CS + 128}
    s_barrier
    """)
    k(f"""
    v_lshrrev_b32 v15, 1, v0                   ; rb
    v_mul_u32_u24 v20, {576*64}, v15
    v_and_b32 v21, 1, v0
    v_lshl_add_u32 v20, v21, 4, v20
    s_lshl_b32 s19, s16, 6
    s_add_u32 s19, s19, {WS_UX}                ; + d*64
    buffer_load_dwordx4 v[44:47], v20, s[44:47], s19 offen sc1
    v_lshrrev_b32 v48, 2, v15
    v_mul_u32_u24 v48, 160, v48
    v_and_b32 v49, 3, v15
    v_lshl_add_u32 v48, v49, 5, v48
    v_lshl_add_u32 v48, v21, 4, v48
    v_lshlrev_b32 v7, 2, v4
    v_add_u32 v7, s17, v7                      ; 4a + mb
    v_mul_u32_u24 v7, {576*64}, v7
    v_lshl_add_u32 v7, v5, 3, v7
    s_add_u32 s25, s19, 32
    buffer_load_dwordx2 v[8:9], v7, s[44:47], s25 offen sc1
    s_add_u32 s25, s25, {64*576*64}
    buffer_load_dwordx2 v[10:11], v7, s[44:47], s25 offen sc1
    v_lshlrev_b32 v6, 7, v4
    v_lshl_add_u32 v6, v5, 3, v6               ; h^T offset: a*128 + q*8
    s_lshl_b32 s23, s17, 5                     ; mb*32
    s_lshl_b32 s24, s16, 12
    s_add_u32 s24, s24, s23
    """)
    k(f"""
    v_bfe_u32 v52, v1, 2, 2
    v_mul_u32_u24 v52, {CS}, v52
    v_and_b32 v53, 3, v1
    v_lshl_add_u32 v52, v53, 3, v52
    v_lshlrev_b32 v53, 4, v5
    v_sub_u32 v52, v52, v53
    s_lshl_b32 s27, s17, 9
    s_add_u32 s27, s27, {KB + 128 - 64 - 8}
    v_add_u32 v12, s27, v52                    ; A base
    v_mul_u32_u24 v53, 160, v4
    v_lshl_add_u32 v53, v5, 4, v53
    s_mul_i32 s27, s17, {4*160}
    s_sub_u32 s27, {UD - 3*160}, s27
    v_add_u32 v13, s27, v53                    ; B base
    s_waitcnt vmcnt(2)
    ds_write_b128 v48, v[44:47] offset:{UD}
    s_waitcnt lgkmcnt(0)
    s_barrier
    """)
    ACC = 16; BSET = [48, 64]; A1, A2 = 80, 120
    def loads(si):
        L = []
        for na in range(2):
            for kk in range(2):
                r = BSET[si & 1] + 4*(2*na + kk)
                L.append(f"ds_read_b128 v[{r}:{r+3}], v13 offset:{(16*na + 3 - si)*160 + 64*kk}")
        lo = 0 if si == 0 else 4*si + 2
        for ta in range(lo, 4*si + 6):
            for rng in range(2):
                base = (A1 if rng == 0 else A2) + 4*(ta % 10)
                for i in range(2):
                    L.append(f"ds_read_b64_tr_b16 v[{base+2*i}:{base+2*i+1}], v12 offset:{32*ta + 8*(1-i) + (2048 if rng else 0)}")
        return L
    k("v_mov_b32 v14, v62\nv_mov_b32 v15, v63")
    L0 = loads(0)
    for n, l in enumerate(L0):
        k(l)
        if n in (11, 19): k("s_waitcnt lgkmcnt(4)")
    first = {}
    for si in range(4):
        k("s_waitcnt lgkmcnt(0)")
        nxt = loads(si + 1) if si < 3 else []
        mm = []
        Bb = BSET[si & 1]
        for kk in range(2):
            for mb in range(4):
                ta = 4*si + 2 + mb - 2*kk
                for rng, na, bsel in ((0, 0, 0), (0, 1, 1), (1, 1, 0)):
                    acc = ACC + 8*mb + 4*na
                    A = (A1 if rng == 0 else A2) + 4*(ta % 10)
                    B = Bb + 4*(2*bsel + kk)
                    C = f"v[{acc}:{acc+3}]" if (mb, na) in first else "0"
                    first[(mb, na)] = 1
                    mm.append(f"v_mfma_f32_16x16x32_f16 v[{acc}:{acc+3}], v[{A}:{A+3}], v[{B}:{B+3}], {C}")
        issued = 0
        for n, m in enumerate(mm):
            k(m)
            if nxt and issued < len(nxt):
                k(nxt[issued]); issued += 1
                if issued == 12: k("s_waitcnt lgkmcnt(6)")
        assert issued == len(nxt)
    k(f"""
    s_barrier
    v_lshlrev_b32 v12, 4, v1
    s_mul_i32 s27, s17, {6*1024}
    v_add_u32 v12, s27, v12
    """)
    for mb in range(4):
        k(f"s_cmp_eq_u32 s17, {mb}\ns_cbranch_scc1 L{name}_skw{mb}")
        k(f"s_sub_u32 s28, {mb + 3}, s17\ns_and_b32 s28, s28, 3\ns_lshl_b32 s28, s28, 11\nv_add_u32 v13, s28, v12")
        for na in range(2):
            acc = ACC + 8*mb + 4*na
            k(f"ds_write_b128 v13, v[{acc}:{acc+3}] offset:{RED + na*1024}")
        k.label(f"L{name}_skw{mb}")
    for mb in range(4):
        k(f"s_cmp_lg_u32 s17, {mb}\ns_cbranch_scc1 L{name}_mv{mb}")
        for i in range(8): k(f"v_mov_b32 v{48+i}, v{ACC+8*mb+i}")
        k.label(f"L{name}_mv{mb}")
    k("s_waitcnt lgkmcnt(0)\ns_barrier")
    k("v_lshlrev_b32 v12, 4, v1")
    for t in range(3):
        k(f"""
        s_sub_u32 s28, s17, {1+t}
        s_and_b32 s28, s28, 3
        s_mul_i32 s28, s28, {6*1024}
        s_add_u32 s28, s28, {t*2048}
        v_add_u32 v13, s28, v12
        ds_read_b128 v[{56+8*t}:{56+8*t+3}], v13 offset:{RED}
        ds_read_b128 v[{60+8*t}:{60+8*t+3}], v13 offset:{RED+1024}
        """)
    k(f"""
    v_mul_u32_u24 v13, 160, v4
    v_lshl_add_u32 v13, v5, 3, v13
    v_add_u32 v13, s23, v13
    ds_read_b64 v[80:81], v13 offset:{UD}
    ds_read_b64 v[82:83], v13 offset:{UD + 16*160}
    s_waitcnt vmcnt(0) lgkmcnt(0)
    """)
    for t in range(3):
        for i in range(8): k(f"v_add_f32 v{48+i}, v{48+i}, v{56+8*t+i}")
    for na in range(2):
        Y = 48 + 4*na
        for p in range(2):
            y0, y1 = Y + 2*p, Y + 2*p + 1
            ur = 80 + 2*na + p; xr = 8 + 2*na + p
            k(f"""
            v_mul_f32 v{y0}, v{y0}, v15
            v_mul_f32 v{y1}, v{y1}, v15
            v_cvt_pk_bf16_f32 v84, v{y0}, v{y1}
            v_cvt_f32_f16 v85, v{ur}
            v_cvt_f32_f16_sdwa v86, v{ur} dst_sel:DWORD dst_unused:UNUSED_PAD src0_sel:WORD_1
            v_mul_f32 v85, v85, v14
            v_mul_f32 v86, v86, v14
            v_cvt_pk_bf16_f32 v85, v85, v86
            v_lshlrev_b32 v86, 16, v84
            v_and_b32 v84, 0xffff0000, v84
            v_lshlrev_b32 v87, 16, v85
            v_and_b32 v85, 0xffff0000, v85
            v_add_f32 v86, v86, v87
            v_add_f32 v84, v84, v85
            v_cvt_pk_bf16_f32 v84, v86, v84
            v_lshlrev_b32 v86, 16, v84
            v_and_b32 v84, 0xffff0000, v84
            v_lshlrev_b32 v87, 16, v{xr}
            v_and_b32 v85, 0xffff0000, v{xr}
            v_add_f32 v86, v86, v87
            v_add_f32 v84, v84, v85
            v_cvt_pk_bf16_f32 v{88 + 2*na + p}, v86, v84
            """)
    k(f"""
    s_add_u32 s25, s24, {WS_HT}
    buffer_store_dwordx2 v[88:89], v6, s[44:47], s25 offen
    buffer_store_dwordx2 v[90:91], v6, s[44:47], s25 offen offset:2048
    """)

def gen_ka(name="ka_kernel", opts=None):
    opts = opts or {}
    k = K(name)
    k(f"""
    s_cmp_ge_u32 s2, {NP+NV+NB}
    s_cbranch_scc1 L{name}_end
    s_cmp_ge_u32 s2, {NP+NV}
    s_cbranch_scc1 L{name}_B
    s_cmp_ge_u32 s2, {NP}
    s_cbranch_scc1 L{name}_V
    """)
    role_P(k, name, opts)
    k.label(f"L{name}_B")
    role_B(k, name, opts)
    k.label(f"L{name}_V")
    role_V(k, name, opts)
    k.label(f"L{name}_end")
    k("s_endpgm")
    return k
if __name__ == "__main__":
    from asmlib import build_file
    k = gen_ka()
    build_file("mb/ka.s", [(k, 160, 64, 160)], [("ka_kernel", NP+NV+NB, 256, KA_LDS)])
```

```python
from gen_k3 import WS_DBG, WS_END
def instrument(k, slot, sreg=90):
    name = k.name
    lines = k.lines
    lines.insert(0, f"    s_memrealtime s[{sreg}:{sreg+1}]")
    lines.insert(1, f"    s_mov_b32 s{sreg+6}, s2")
    idx = max(i for i, l in enumerate(lines) if l.startswith(f"L{name}_end:"))
    tail = f"""
    s_mov_b64 exec, -1
    s_waitcnt vmcnt(0) lgkmcnt(0)
    s_memrealtime s[{sreg+2}:{sreg+3}]
    s_load_dwordx2 s[{sreg+4}:{sreg+5}], s[0:1], 104
    s_waitcnt lgkmcnt(0)
    v_mov_b32 v6, s{sreg}
    v_mov_b32 v7, s{sreg+2}
    v_lshrrev_b32 v3, 6, v0
    v_and_b32 v4, 63, v0
    s_lshl_b32 s{sreg+7}, s{sreg+6}, 5
    s_add_u32 s{sreg+7}, s{sreg+7}, {WS_END + slot*65536}
    s_add_u32 s{sreg+4}, s{sreg+4}, s{sreg+7}
    s_addc_u32 s{sreg+5}, s{sreg+5}, 0
    v_lshlrev_b32 v3, 3, v3
    v_lshrrev_b32 v5, 8, v0
    v_or_b32 v4, v4, v5
    v_cmp_eq_u32 vcc, 0, v4
    s_and_saveexec_b64 s[{sreg+8}:{sreg+9}], vcc
    global_store_dwordx2 v3, v[6:7], s[{sreg+4}:{sreg+5}]
    s_waitcnt vmcnt(0)
    """
    new = ["    " + l.strip() for l in tail.strip().split("\n")]
    lines[idx+1:idx+1] = new
```

```python
import sys
from asmlib import build_file
from gen_ka import gen_ka, NP, NV, NB, KA_LDS
from gen_k3b import gen_k3b, LDS_BYTES
from gen_k4 import gen_k4
from instr import instrument
HEADER = """; sequential_preLN -> S4D conv -> preLN -> GEGLU FFN, gfx950.  Generated by a hand-written generator.
"""
def build(fn, instr=False, k3opts=None, kaopts=None):
    ka = gen_ka(opts=kaopts); k3 = gen_k3b(opts=k3opts); k4 = gen_k4(v2=True)
    k3.lines = [l + ' sc1' if 'buffer_store_dwordx4' in l else l for l in k3.lines]
    sg = 80
    if instr:
        for i, k in enumerate((ka, k3, k4)): instrument(k, i)
        sg = 102
    ks = [(ka, 160, sg, 160), (k3, 512, 102, 256), (k4, 104, 102 if instr else 32, 104)]
    launches = [("ka_kernel", NP+NV+NB, 256, KA_LDS), ("k3_kernel", 256, 256, LDS_BYTES), ("k4_kernel", 576, 256, 0)]
    build_file(fn, ks, launches, header=HEADER)
if __name__ == "__main__":
    build("mb/all2.s"); build("mb/all2_i.s", instr=True)
    build("mb/all2_nb_i.s", instr=True, kaopts={"bwait": False})
    if len(sys.argv) > 1: build("sequential_preLN__ssm_conv_s4d__geglu_ffn__prompt.s")
```

```python
from asmlib import K
import math, struct
from gen_k3 import (WS_HT, WS_CS, WS_PART, WS_DBG, WS_END, K0C, K1C, f2u, VmTracker)

UNIT = 12288
NUNIT = 12
LDS_BYTES = UNIT*NUNIT

def gen_k3b(name="k3_kernel", LA=6, RING=8, opts=None):
    opts = opts or {}
    k = K(name)
    vm = VmTracker(63); lg = VmTracker(15)
    vLANE = 0
    vDA = [1, 2, 3]
    vDH = [4, 5, 6]
    vDD = [7, 8, 9]
    vC0, vC1, vS2 = [10, 11], [12, 13], [14, 15]
    vST = 16
    vRB = list(range(17, 33))
    vLH = 33
    vLH1 = 34
    vTMP = list(range(35, 48))
    vACC = [48, 112]
    vH = 176
    vT = 248
    vX = list(range(112, 118))
    vXL = [118, 119]
    vXB = [120, 121]
    vS1 = [122, 123]; vS2s = [124, 125]; vONE = 126; vTA = [127, 128, 129, 130]
    aX = 0; aR = 144; aCS = 176; aBM = 214
    aONE = 232
    sWM = 8; sWD = 12; sWS = 16
    sW, sJ, sMT = 20, 21, 22
    sW1F, sW1H, sM1 = 23, 24, 25
    sD, sMD = 26, 27
    sDw = 28
    sSO = 32; sPART = 33; sXO, sMX = 34, 35
    sT0, sT1, sT2, sT3 = 36, 37, 38, 39
    nst = [0]
    def stamp():
        if not opts.get("stamps"): return
        k("s_memrealtime s[60:61]" if opts.get("rt") else "s_memtime s[60:61]")
        k("s_waitcnt lgkmcnt(0)")
        k(f"s_mov_b32 s{62 + nst[0]}, s60")
        lg.done = len(lg.q)
        nst[0] += 1
    k(f"""
    s_cmp_ge_u32 s2, 256
    s_cbranch_scc1 L{name}_end
    s_load_dwordx4 s[4:7], s[0:1], 64
    s_load_dwordx2 s[40:41], s[0:1], 80        ; w_down
    s_load_dwordx2 s[42:43], s[0:1], 104       ; ws
    v_lshrrev_b32 v{vTMP[0]}, 6, v0
    v_and_b32 v{vLANE}, 63, v0
    s_nop 0
    v_readfirstlane_b32 s{sW}, v{vTMP[0]}
    s_and_b32 s{sT0}, s2, 7
    s_lshr_b32 s{sT1}, s2, 3
    s_and_b32 s{sT2}, s{sT1}, 1                 ; parity
    s_lshl_b32 s{sJ}, s{sT0}, 1
    s_add_u32 s{sJ}, s{sJ}, s{sT2}              ; split j
    s_lshr_b32 s{sMT}, s{sT1}, 1                ; m tile
    """)
    t0, t1, t2, t3, t4, t5, t6 = vTMP[0:7]
    k(f"""
    v_lshrrev_b32 v{t0}, 4, v{vLANE}            ; row 0..3
    v_bfe_u32 v{t1}, v{vLANE}, 1, 3             ; unit32
    v_and_b32 v{t2}, 1, v{vLANE}
    v_lshlrev_b32 v{t2}, 4, v{t2}               ; (sigma16&1)*16
    v_lshlrev_b32 v{t3}, 12, v{t0}              ; row*4096
    v_add_u32 v{t3}, v{t3}, v{t2}
    v_xor_b32 v{t4}, v{t1}, v{t0}               ; par 0
    v_xor_b32 v{t5}, 4, v{t4}                   ; par 1
    v_lshl_add_u32 v{t4}, v{t4}, 5, v{t3}
    v_lshl_add_u32 v{t5}, v{t5}, 5, v{t3}
    """)
    for tp in range(6):
        src = t4 if tp % 2 == 0 else t5
        k(f"v_add_u32 v{vX[tp]}, {(tp % 3)*(4*4096-1024)}, v{src}")
    k(f"""
    v_lshrrev_b32 v{t0}, 3, v{vLANE}
    v_bfe_u32 v{t1}, v{vLANE}, 1, 2
    v_bfe_u32 v{t2}, v{vLANE}, 4, 2
    v_xor_b32 v{t1}, v{t1}, v{t2}
    v_and_b32 v{t2}, 1, v{vLANE}
    v_lshlrev_b32 v{t2}, 4, v{t2}
    v_lshl_add_u32 v{t1}, v{t1}, 5, v{t2}
    v_mul_u32_u24 v{t2}, 9216, v{t0}
    v_add_u32 v{vDA[0]}, v{t2}, v{t1}
    v_mul_u32_u24 v{t2}, 1152, v{t0}
    v_add_u32 v{vDD[0]}, v{t2}, v{t1}
    v_lshrrev_b32 v{t0}, 2, v{vLANE}
    v_bfe_u32 v{t1}, v{vLANE}, 1, 1
    v_bfe_u32 v{t2}, v{vLANE}, 4, 1
    v_xor_b32 v{t1}, v{t1}, v{t2}
    v_and_b32 v{t2}, 1, v{vLANE}
    v_lshlrev_b32 v{t2}, 4, v{t2}
    v_lshl_add_u32 v{t1}, v{t1}, 5, v{t2}
    v_mul_u32_u24 v{t2}, 9216, v{t0}
    v_add_u32 v{vDH[0]}, v{t2}, v{t1}
    """)
    for i in range(1, 3):
        k(f"v_add_u32 v{vDA[i]}, {i*(8*9216-1024)}, v{vDA[0]}")
        k(f"v_add_u32 v{vDD[i]}, {i*(8*1152-1024)}, v{vDD[0]}")
        k(f"v_add_u32 v{vDH[i]}, {i*(16*9216-1024)}, v{vDH[0]}")
    k("s_waitcnt lgkmcnt(0)")
    k(f"""
    s_cmp_ge_u32 s{sW}, 2
    s_cselect_b32 s{sWM}, s6, s4
    s_cselect_b32 s{sWM+1}, s7, s5
    s_mov_b32 s{sWM+2}, {576*4608*2}
    s_mov_b32 s{sWM+3}, 0x20000
    s_mov_b32 s{sWD}, s40
    s_mov_b32 s{sWD+1}, s41
    s_mov_b32 s{sWD+2}, {4608*576*2}
    s_mov_b32 s{sWD+3}, 0x20000
    s_mov_b32 s{sWS}, s42
    s_mov_b32 s{sWS+1}, s43
    s_mov_b32 s{sWS+2}, {WS_END}
    s_mov_b32 s{sWS+3}, 0x20000
    """)
    stamp()
    k(f"""
    s_mul_i32 s{sXO}, s{sW}, {24*4096}
    s_lshl_b32 s{sT0}, s{sMT}, 8
    s_add_u32 s{sXO}, s{sXO}, s{sT0}
    s_add_u32 s{sXO}, s{sXO}, {WS_HT}           ; X: + (96p + 24w + 12u)*4096
    s_mul_i32 s{sMX}, s{sW}, {6*1024}
    s_and_b32 s{sT2}, s{sJ}, 1                  ; parity
    s_mul_i32 s{sT0}, s{sJ}, 288                ; F0
    s_lshl_b32 s{sT1}, s{sT2}, 5
    s_add_u32 s{sT1}, s{sT0}, s{sT1}            ; FG0
    s_xor_b32 s{sT3}, s{sT2}, 1
    s_lshl_b32 s{sT3}, s{sT3}, 8
    s_add_u32 s{sT3}, s{sT0}, s{sT3}            ; FH
    s_and_b32 s46, s{sW}, 1
    s_lshr_b32 s47, s{sW}, 1
    ; phase 1: waves 0,1 -> gate unit, waves 2,3 -> up unit. each wave 6 instr: rows 48*(w&1) + 8*t (full) ; rows 96*(w&1)+16t (half)
    s_mul_i32 s{sW1F}, s46, {48*9216}
    s_lshl_b32 s48, s{sT1}, 1
    s_add_u32 s{sW1F}, s{sW1F}, s48
    s_mul_i32 s{sW1H}, s46, {96*9216}
    s_lshl_b32 s48, s{sT3}, 1
    s_add_u32 s{sW1H}, s{sW1H}, s48
    s_mul_i32 s{sM1}, s47, {UNIT}
    s_mul_i32 s48, s46, 6144
    s_add_u32 s{sM1}, s{sM1}, s48
    """)
    sDb = [50, 51, 52, 53, 54]
    for n, (rho_add, tcomp) in enumerate(((0, 0), (96, 0), (192, 0), (200, 1), (208, 2))):
        k(f"""
        s_mul_i32 s48, s{sW}, 24
        s_add_u32 s48, s48, {rho_add}
        s_lshl_b32 s49, s{sT2}, 5
        s_add_u32 s48, s48, s49
        s_cmp_ge_u32 s48, 288
        s_cselect_b32 s49, 288, 0
        s_sub_u32 s48, s48, s49
        s_add_u32 s48, s48, s{sT0}
        s_mul_i32 s{sDb[n]}, s48, 1152
        """)
        if tcomp: k(f"s_sub_u32 s{sDb[n]}, s{sDb[n]}, {tcomp*8*1152}")
    k(f"s_mul_i32 s{sMD}, s{sW}, 3072")
    k(f"""
    s_lshl_b32 s48, s{sJ}, 4
    s_add_u32 s48, s48, s{sMT}
    s_lshl_b32 s48, s48, 2
    s_add_u32 s48, s48, s{sW}
    s_mul_i32 s{sPART}, s48, {36*1024}
    s_add_u32 s{sPART}, s{sPART}, {WS_PART}
    v_lshlrev_b32 v{vST}, 4, v{vLANE}
    s_lshl_b32 s44, s{sT1}, 2
    s_add_u32 s44, s44, {WS_CS}
    s_lshl_b32 s45, s{sT3}, 2
    s_add_u32 s45, s45, {WS_CS}
    """)
    def dma(voff, srd, i):
        off = f" offset:{i*1024}" if i else ""
        return f"buffer_load_dwordx4 v{voff}, s[{srd}:{srd+3}], s{sSO} offen{off} lds"
    items = []
    for p in range(6): items += [("X", p), ("W", p)]
    items += [("W", p) for p in range(6, 27)]
    items += [("D", p) for p in range(9)]
    upos = {}; u = 0
    for it in items:
        n = 3 if it[0] == "D" else 2
        upos[it] = u % NUNIT
        assert (u % NUNIT) + n <= NUNIT
        u += n
    uabs = {}; u = 0
    for it in items:
        n = 3 if it[0] == "D" else 2
        uabs[it] = (u, u + n); u += n
    def dma_ops(it):
        ty, p = it; base = upos[it]*UNIT
        ops = []
        if ty == "X":
            for g in range(2):
                ops.append(("s", [f"s_add_u32 s{sSO}, s{sXO}, {(96*p + 12*g)*4096}", f"s_add_u32 m0, s{sMX}, {base + g*3072}"]))
                for t in range(3): ops.append(("d", dma(vX[3*g+t], sWS, t)))
        elif ty == "W" and p < 24:
            grp, q = p // 6, p % 6
            for g in range(2):
                ops.append(("s", [f"s_add_u32 s{sSO}, s{sW1F}, {(96*q + 24*g)*9216 + grp*128}", f"s_add_u32 m0, s{sM1}, {base + g*3072}"]))
                for t in range(3): ops.append(("d", dma(vDA[t], sWM, t)))
        elif ty == "W":
            q = p - 24
            for g in range(2):
                ops.append(("s", [f"s_add_u32 s{sSO}, s{sW1H}, {(192*q + 48*g)*9216}", f"s_add_u32 m0, s{sM1}, {base + g*3072}"]))
                for t in range(3): ops.append(("d", dma(vDH[t], sWM, t)))
        else:
            for u3 in range(2):
                ops.append(("s", [f"s_add_u32 s{sSO}, s{sDb[u3]}, {p*128}", f"s_add_u32 m0, s{sMD}, {base + u3*UNIT}"]))
                for t in range(3): ops.append(("d", dma(vDD[t], sWD, t)))
            for t in range(3):
                l = [f"s_add_u32 s{sSO}, s{sDb[2+t]}, {p*128}"]
                if t == 0: l.append(f"s_add_u32 m0, s{sMD}, {base + 2*UNIT}")
                ops.append(("s", l))
                ops.append(("d", dma(vDD[t], sWD, t)))
        return ops
    def emit_dma_all(it):
        for kind, x in dma_ops(it):
            if kind == "s":
                for l in x: k(l)
                k("s_nop 0")
            else:
                k(x); vm.issue(it)
    issued = []
    for it in items[:2]:
        emit_dma_all(it); issued.append(it)
    def cs_ops():
        L = [(1, f"v_and_b32 v{vTMP[10]}, 15, v{vLANE}"), (1, f"v_mul_u32_u24 v{vTMP[10]}, 144, v{vTMP[10]}"),
             (1, f"s_mul_i32 s44, s{sJ}, {16*144}"), (1, f"s_add_u32 s44, s44, {WS_CS}")]
        for n in range(9):
            off = f" offset:{16*n}" if n else ""
            L.append((1, ("load", f"buffer_load_dwordx4 a[{aCS+4*n}:{aCS+4*n+3}], v{vTMP[10]}, s[{sWS}:{sWS+3}], s44 offen{off}")))
        return L
    k(f"""
    v_bfe_u32 v{t0}, v{vLANE}, 2, 2             ; r'
    v_lshrrev_b32 v{t1}, 4, v{vLANE}            ; q
    v_lshl_add_u32 v{t2}, v{t1}, 2, v{t0}       ; rr = 4q + r'
    v_and_b32 v{t3}, 3, v{vLANE}
    v_lshlrev_b32 v{t3}, 3, v{t3}               ; 8c
    v_bfe_u32 v{t4}, v{t2}, 1, 2                ; g = (rr>>1)&3
    v_lshlrev_b32 v{t5}, 7, v{t2}
    v_add_u32 v{t5}, v{t5}, v{t3}
    v_lshl_add_u32 v{t5}, v{t4}, 5, v{t5}
    """)
    vLC0 = vTMP[7]
    k(f"v_mov_b32 v{vLC0}, v{t5}")
    def set_bases_p1():
        L = []
        for wdw in range(3):
            for ft in range(4):
                L.append(f"v_xor_b32 v{vRB[4*wdw+ft]}, {ft*32}, v{vLC0}")
                if wdw: L.append(f"v_add_u32 v{vRB[4*wdw+ft]}, {wdw*49152}, v{vRB[4*wdw+ft]}")
        return L
    def set_bases_p2():
        L = []
        for sl in range(4):
            for nt in range(4):
                L.append(f"v_xor_b32 v{vRB[4*sl+nt]}, {nt*32}, v{vLC0}")
                if sl: L.append(f"v_add_u32 v{vRB[4*sl+nt]}, {sl*36864}, v{vRB[4*sl+nt]}")
        return L
    for l in set_bases_p1(): k(l)
    k(f"""
    ; half lane const: rr*64 + ((q&1)*32) + 8c
    v_lshlrev_b32 v{t5}, 6, v{t2}
    v_add_u32 v{t5}, v{t5}, v{t3}
    v_and_b32 v{t6}, 1, v{t1}
    v_lshl_add_u32 v{vLH}, v{t6}, 5, v{t5}
    v_xor_b32 v{vLH1}, 32, v{vLH}
    ; X lane consts: rr*256 + (((2w+j) ^ (rr&7))*32) + 8c
    v_lshlrev_b32 v{t5}, 8, v{t2}
    v_add_u32 v{t5}, v{t5}, v{t3}
    v_and_b32 v{t6}, 7, v{t2}
    s_lshl_b32 s48, s{sW}, 1
    v_xor_b32 v{t6}, s48, v{t6}
    v_lshl_add_u32 v{vXL[0]}, v{t6}, 5, v{t5}
    v_xor_b32 v{vXL[1]}, 32, v{vXL[0]}
    v_mov_b32 v{vONE}, 0x3f803f80
    """)
    for e in range(4): k(f"v_accvgpr_write_b32 a{aONE+e}, v{vONE}")
    vD1 = [132, 136]; vD2 = [140, 144]
    def stats_mf(p):
        L = []
        for s_ in range(3):
            for j in range(2):
                xs = aX + 4*(2*(3*p+s_) + j)
                first = (p == 0 and s_ == 0)
                L.append(dict(fr=None, acc=vD1[j], A=f"a[{aONE}:{aONE+3}]", B=f"a[{xs}:{xs+3}]", first=first))
                L.append(dict(fr=None, acc=vD2[j], A=f"a[{xs}:{xs+3}]", B=f"a[{xs}:{xs+3}]", first=first))
        return L
    NS1 = 27; NS = 36
    def stage_item(st): return ("W", st) if st < NS1 else ("D", st - NS1)
    def acc_reg(st, tile):
        if st < 24: return vACC[(st // 6) % 2] + 4*tile
        if st < 27: return vACC[0] + 4*tile
        return vACC[1] + 32*((st - 27) % 2) + 4*tile
    mf = []; frags = []
    for st in range(NS):
        it = stage_item(st); base = upos[it]*UNIT
        if st < 24:
            grp, q = st // 6, st % 6
            wdw, rel = base // 49152, base % 49152
            for s in range(3):
                for ft in range(4):
                    for mat in range(2):
                        rd = [(vRB[4*wdw+ft], rel + mat*UNIT + s*4096 + i*2048) for i in range(2)]
                        fr = dict(st=st, rd=rd); frags.append(fr)
                        for j in range(2):
                            xs = aX + 4*(2*(3*q+s) + j)
                            mf.append(dict(st=st, fr=fr, acc=acc_reg(st, (ft*2+mat)*2+j), B=f"a[{xs}:{xs+3}]", first=(q == 0 and s == 0), needX=q))
            if grp == 0:
                sm = stats_mf(q)
                start = len(mf) - 48
                blk = mf[start:]; del mf[start:]
                if q == 5:
                    for x in sm: x["st"] = st
                    mf.extend(sm); mf.extend(blk)
                else:
                    for n_, b in enumerate(blk):
                        mf.append(b)
                        if n_ % 4 == 3 and sm:
                            x = sm.pop(0); x["st"] = st; mf.append(x)
                    assert not sm
            if q == 5:
                for ft in range(4):
                    for mat in range(2):
                        idx = 2*(4*grp + ft) + mat; w0 = aCS + (idx & ~1)
                        for j in range(2):
                            bm = aBM + 8*j + 4*(idx & 1)
                            mf.append(dict(st=st, fr=None, acc=acc_reg(st, (ft*2+mat)*2+j), A=f"a[{w0}:{w0+3}]", B=f"a[{bm}:{bm+3}]", first=False))
        elif st < 27:
            q = st - 24
            for s in range(6):
                for ft in range(2):
                    for mat in range(2):
                        rd = [("H%d" % ft, base + mat*UNIT + s*2048 + i*1024) for i in range(2)]
                        fr = dict(st=st, rd=rd); frags.append(fr)
                        for j in range(2):
                            xs = aX + 4*(2*(6*q+s) + j)
                            mf.append(dict(st=st, fr=fr, acc=acc_reg(st, (ft*2+mat)*2+j), B=f"a[{xs}:{xs+3}]", first=(q == 0 and s == 0)))
            if q == 2:
                for ft in range(2):
                    for mat in range(2):
                        idx = 2*(16 + ft) + mat; w0 = aCS + (idx & ~1)
                        for j in range(2):
                            bm = aBM + 8*j + 4*(idx & 1)
                            mf.append(dict(st=st, fr=None, acc=acc_reg(st, (ft*2+mat)*2+j), A=f"a[{w0}:{w0+3}]", B=f"a[{bm}:{bm+3}]", first=False))
        else:
            sl = upos[it] // 3
            for t in range(9):
                for nt in range(4):
                    rd = [(vRB[4*sl+nt], t*4096 + i*2048) for i in range(2)]
                    fr = dict(st=st, rd=rd); frags.append(fr)
                    for j in range(2):
                        h = vH + 8*t + 4*j
                        mf.append(dict(st=st, fr=fr, acc=acc_reg(st, nt*2+j), B=f"v[{h}:{h+3}]", first=(t == 0), needH=t))
    for n, fr in enumerate(frags):
        fr["n"] = n; fr["reg"] = aR + 4*(n % RING)
    vHB = [vTMP[8], vTMP[9]]
    def lg_room():
        if len(lg.q) - lg.done >= 15:
            k("s_waitcnt lgkmcnt(11)")
            lg.done = len(lg.q) - 11
    def emit_reads(fr, part=None):
        for i, (sel, off) in enumerate(fr["rd"]):
            if part is not None and i != part: continue
            if isinstance(sel, str):
                reg = vHB[int(sel[1])]; base = upos[stage_item(fr["st"])]*UNIT; off = off - base
            else: reg = sel
            assert 0 <= off < 65536, off
            r0 = fr["reg"] + 2*i
            lg_room()
            if not opts.get("noread"): k(f"ds_read_b64_tr_b16 a[{r0}:{r0+1}], v{reg} offset:{off}")
            lg.issue(("f", fr["n"]))
    def x_read_ops(p):
        base = upos[("X", p)]*UNIT
        L = [("v", f"v_add_u32 v{vXB[0]}, {base}, v{vXL[0]}"), ("v", f"v_add_u32 v{vXB[1]}, {base}, v{vXL[1]}")]
        for s in range(3):
            for j in range(2):
                for i in range(2):
                    r = aX + 4*(2*(3*p+s) + j) + 2*i
                    L.append(("x", f"ds_read_b64_tr_b16 a[{r}:{r+1}], v{vXB[j]} offset:{s*8192 + i*4096}"))
        return L
    def finalize_ops():
        ops = []
        m, va, tb, z = vTA[0], vTA[1], vTA[2], vTA[3]
        A = lambda s: ops.append((1, s))
        A("s_nop 7")
        A(f"v_bfe_u32 v{vS1[0]}, v{vLANE}, 2, 2")
        A(f"v_lshrrev_b32 v{vS1[1]}, 4, v{vLANE}")
        A(f"v_cmp_eq_u32 s[56:57], v{vS1[0]}, v{vS1[1]}")
        A(f"v_and_b32 v{vS1[0]}, 3, v{vLANE}")
        A(f"v_cmp_eq_u32 s[58:59], 1, v{vS1[0]}")
        A(f"v_cmp_eq_u32 s[30:31], 2, v{vS1[0]}")
        A(f"v_cmp_eq_u32 vcc, 3, v{vS1[0]}")
        A("s_nop 1")
        for j in range(2):
            s1, s2 = vD1[j], vS2s[j]
            d = vD2[j]
            A(f"v_cndmask_b32 v{s2}, v{d}, v{d+1}, s[58:59]")
            A(f"v_cndmask_b32 v{s2}, v{s2}, v{d+2}, s[30:31]")
            A(f"v_cndmask_b32 v{s2}, v{s2}, v{d+3}, vcc")
            A(f"v_cndmask_b32 v{s2}, 0, v{s2}, s[56:57]")
        for j in range(2):
            s1, s2 = vD1[j], vS2s[j]
            for r in (s2,):
                A(f"v_mov_b32 v{z}, v{r}"); A("s_nop 1"); A(f"v_permlane16_swap_b32 v{r}, v{z}"); A("s_nop 1"); A(f"v_add_f32 v{r}, v{r}, v{z}")
                A(f"v_mov_b32 v{z}, v{r}"); A("s_nop 1"); A(f"v_permlane32_swap_b32 v{r}, v{z}"); A("s_nop 1"); A(f"v_add_f32 v{r}, v{r}, v{z}")
            A(f"v_mul_f32 v{m}, {f2u(1.0/576):#x}, v{s1}")
            A(f"v_mul_f32 v{va}, {f2u(1.0/576):#x}, v{s2}")
            A(f"v_fma_f32 v{va}, -v{m}, v{m}, v{va}")
            A(f"v_max_f32 v{va}, 0, v{va}")
            A(f"v_cvt_pk_bf16_f32 v{tb}, v{m}, v{va}")
            A(f"v_and_b32 v{va}, 0xffff0000, v{tb}")
            A(f"v_add_f32 v{va}, {f2u(1e-5):#x}, v{va}")
            A(f"v_cvt_pk_bf16_f32 v{va}, v{va}, v{va}")
            A(f"v_and_b32 v{va}, 0xffff0000, v{va}")
            A(f"v_sqrt_f32 v{va}, v{va}"); A("s_nop 0")
            A(f"v_cvt_pk_bf16_f32 v{va}, v{va}, v{va}")
            A(f"v_and_b32 v{va}, 0xffff0000, v{va}")
            A(f"v_mul_f32 v{vS2[j]}, v{va}, v{va}")
            A(f"v_rcp_f32 v{va}, v{va}"); A("s_nop 0")
            A(f"v_mul_f32 v{vC0[j]}, {f2u(K0C):#x}, v{va}")
            A(f"v_mul_f32 v{vC1[j]}, v{va}, v{va}")
            A(f"v_mul_f32 v{vC1[j]}, v{vC1[j]}, v{va}")
            A(f"v_mul_f32 v{vC1[j]}, {f2u(K1C):#x}, v{vC1[j]}")
            A(f"v_and_b32 v{tb}, 0xffff, v{tb}")
            A(f"v_xor_b32 v{tb}, 0x8000, v{tb}")
            A(f"v_lshl_or_b32 v{tb}, v{tb}, 16, v{tb}")
            A(f"v_cmp_gt_u32 vcc, 16, v{vLANE}"); A("s_nop 1")
            A(f"v_cndmask_b32 v{tb}, 0, v{tb}, vcc")
            A(f"v_mov_b32 v{m}, 0"); A("s_nop 0")
            b0 = aBM + 8*j
            for e, src in enumerate((tb, m, m, m, m, tb, m, m)):
                A(f"v_accvgpr_write_b32 a{b0+e}, v{src}")
        A(f"v_accvgpr_write_b32 a{aCS+36}, v{m}"); A(f"v_accvgpr_write_b32 a{aCS+37}, v{m}")
        A("s_nop 1")
        return ops
    def gelu_ops(buf, nft, Hbase):
        ops = []
        n = 0
        for ft in range(nft):
            for j in range(2):
                for p in range(2):
                    T = vT + 4*(n % 2); n += 1
                    a0 = buf + 4*((ft*2+0)*2 + j) + 2*p; a1 = a0 + 1
                    b0 = buf + 4*((ft*2+1)*2 + j) + 2*p; b1 = b0 + 1
                    x0, x1, y0, y1 = T, T+1, T+2, T+3
                    hd = Hbase + 8*(ft >> 1) + 4*j + 2*(ft & 1) + p
                    ops += [(1, f"v_mul_f32 v{x0}, v{a0}, v{a0}"), (1, f"v_mul_f32 v{x1}, v{a1}, v{a1}"),
                            (1, f"v_fma_f32 v{x0}, v{x0}, v{vC1[j]}, v{vC0[j]}"), (1, f"v_fma_f32 v{x1}, v{x1}, v{vC1[j]}, v{vC0[j]}"),
                            (1, f"v_mul_f32 v{x0}, v{a0}, v{x0}"), (1, f"v_mul_f32 v{x1}, v{a1}, v{x1}"),
                            (2, f"v_exp_f32 v{x0}, v{x0}"), (2, f"v_exp_f32 v{x1}, v{x1}"),
                            (1, f"v_mul_f32 v{y0}, v{a0}, v{b0}"), (1, f"v_mul_f32 v{y1}, v{a1}, v{b1}"),
                            (1, f"v_fma_f32 v{x0}, v{x0}, v{vS2[j]}, v{vS2[j]}"), (1, f"v_fma_f32 v{x1}, v{x1}, v{vS2[j]}, v{vS2[j]}"),
                            (2, f"v_rcp_f32 v{x0}, v{x0}"), (2, f"v_rcp_f32 v{x1}, v{x1}"),
                            (1, f"v_mul_f32 v{y0}, v{y0}, v{x0}"), (1, f"v_mul_f32 v{y1}, v{y1}, v{x1}"),
                            (1, f"v_cvt_pk_bf16_f32 v{hd}, v{y0}, v{y1}")]
        return ops
    def epi_ops(st):
        a = st - 27
        ops = []
        P = vACC[0]
        for ntp in range(2):
            for j in range(2):
                q = P + 4*(2*ntp + j)
                for h2 in range(2):
                    A = acc_reg(st, (2*ntp + h2)*2 + j)
                    ops.append((1, f"v_cvt_pk_bf16_f32 v{q+2*h2}, v{A}, v{A+1}"))
                    ops.append((1, f"v_cvt_pk_bf16_f32 v{q+2*h2+1}, v{A+2}, v{A+3}"))
                ops.append((1, "s_nop 1"))
                ops.append((1, f"v_permlane16_swap_b32 v{q}, v{q+2}"))
                ops.append((1, f"v_permlane16_swap_b32 v{q+1}, v{q+3}"))
                ops.append((1, f"s_add_u32 s{sT0}, s{sPART}, {(a*4 + ntp*2 + j)*1024}"))
                ops.append((1, ("store", f"buffer_store_dwordx4 v[{q}:{q+3}], v{vST}, s[{sWS}:{sWS+3}], s{sT0} offen")))
        return ops

    for it in items[2:4]:
        emit_dma_all(it)
    if opts.get("selfpf", True):
        k(f"""
        s_getpc_b64 s[56:57]
        L{name}_pc0:
        s_sub_u32 s56, s56, L{name}_pc0-{name}
        s_subb_u32 s57, s57, 0
        s_lshl_b32 s58, s{sW}, 13
        v_lshlrev_b32 v{vTMP[11]}, 7, v{vLANE}
        v_add_u32 v{vTMP[11]}, s58, v{vTMP[11]}
        global_load_dword v{vTMP[12]}, v{vTMP[11]}, s[56:57]
        v_add_u32 v{vTMP[11]}, 32768, v{vTMP[11]}
        v_min_u32 v{vTMP[11]}, {opts.get("selfpf_bytes", 54*1024)}, v{vTMP[11]}
        global_load_dword v{vTMP[12]}, v{vTMP[11]}, s[56:57]
        """)
        vm.issue("PF"); vm.issue("PF")
    n = vm.need(("W", 0)); k(f"s_waitcnt vmcnt({n})")
    k("s_barrier")
    stamp()
    for kind, l in x_read_ops(0): k(l)
    k("s_waitcnt lgkmcnt(0)")
    freed = {("X", 0): False}
    next_item = 4
    done_items = set()
    def can_issue(idx):
        it = items[idx]; lo, hi = uabs[it]
        for other in items[:idx]:
            a, b = uabs[other]
            if a < hi - NUNIT and b > lo - NUNIT and other not in done_items: return False
        return True
    stage_first = {}
    for idx, d in enumerate(mf): stage_first.setdefault(d["st"], idx)
    stage_len = {st: sum(1 for d in mf if d["st"] == st) for st in range(NS)}
    for f in range(LA): emit_reads(frags[f])
    fillers = []; rate = 0.0; credit = 0.0
    xq = []; dmaq = []
    seen_frag = set()
    for idx, d in enumerate(mf):
        st = d["st"]; pos = idx - stage_first[st]
        if pos == 0:
            if opts.get("stamps") and (st % 3 == 0 or st < 7 or st >= 24): stamp()
            need = []
            if st + 1 < NS: need.append(stage_item(st + 1))
            if st + 1 < 6: need.append(("X", st + 1))
            ns = [vm.need(x) for x in need if x in vm.q]
            assert all(x in vm.q for x in need), (st, need)
            assert not any(it in need for it, _ in dmaq), (st, need)
            ns = [x for x in ns if x is not None]
            if st >= 1 or True:
                if ns: k(f"s_waitcnt vmcnt({min(ns)})")
                if st >= 1 and st <= 5:
                    nn = lg.need(("x", st))
                    if nn is not None: k(f"s_waitcnt lgkmcnt({nn})")
                k("s_barrier")
            if st >= 1: done_items.add(stage_item(st - 1))
            if st <= 5: done_items.add(("X", st))
            while next_item < len(items) and can_issue(next_item):
                for op in dma_ops(items[next_item]): dmaq.append((items[next_item], op))
                next_item += 1
            if st + 1 < 6: xq = x_read_ops(st + 1)
            if st < 6:
                if st >= 1 and False: pass
                assert not fillers, st
                fillers = []
                if st == 1: fillers = cs_ops()
                if st == 5: fillers = finalize_ops()
                span = stage_len[st] - (36 if st == 5 else 8)
                rate = sum(c for c, _ in fillers) / span; credit = -14*rate if st == 5 else 0
            elif st < 24 and st % 6 == 0:
                assert not fillers, st
                g = st // 6
                fillers = gelu_ops(vACC[(g-1) % 2], 4, vH + 16*(g-1))
                if g == 1 and opts.get("wdpf", True):
                    pf = [(1, f"s_mul_i32 s44, s{sMT}, 162"), (1, f"s_lshl_b32 s45, s{sW}, 6"), (1, f"s_add_u32 s44, s44, s45"),
                          (1, f"v_add_u32 v{vTMP[11]}, s45, v{vLANE}"), (1, f"v_cmp_gt_u32 vcc, 162, v{vTMP[11]}"),
                          (1, f"v_add_u32 v{vTMP[11]}, s44, v{vLANE}"), (1, f"v_lshlrev_b32 v{vTMP[11]}, 7, v{vTMP[11]}"),
                          (1, f"v_mov_b32 v{vTMP[12]}, 0x7fffffff"), (1, f"v_cndmask_b32 v{vTMP[11]}, v{vTMP[12]}, v{vTMP[11]}, vcc"),
                          (1, f"s_mul_i32 s44, s{sJ}, {288*1152}"),
                          (1, ("load", f"buffer_load_dword v{vTMP[12]}, v{vTMP[11]}, s[{sWD}:{sWD+3}], s44 offen"))]
                    fillers = pf + fillers
                span = sum(stage_len[s] for s in range(st, st + 6)) - 12
                rate = sum(c for c, _ in fillers) / span; credit = -6*rate
            elif st == 24:
                assert not fillers
                fillers = gelu_ops(vACC[1], 4, vH + 48)
                span = sum(stage_len[s] for s in range(24, 27)) - 12
                rate = sum(c for c, _ in fillers) / span; credit = -6*rate
            elif st == 27:
                assert not fillers
                fillers = gelu_ops(vACC[0], 2, vH + 64)
                span = 56; rate = sum(c for c, _ in fillers) / span; credit = -6*rate
            elif st > 27:
                assert not fillers, (st, len(fillers))
                fillers = epi_ops(st - 1)
                span = stage_len[st] - 16
                rate = sum(c for c, _ in fillers) / span; credit = -6*rate
            if st == 24:
                for l in [f"v_add_u32 v{vHB[0]}, PLACE, v{vLH}"]: pass
        def flush_fillers():
            nonlocal fillers
            for c, l in fillers:
                if isinstance(l, tuple): k(l[1]); vm.issue("ST" if l[0] == "store" else "CS")
                else: k(l)
            fillers = []
        if st == 5 and d["fr"] is None and pos >= 12 and fillers: flush_fillers()
        if d.get("needH") == 8 and st == 27 and fillers:
            flush_fillers(); k("s_nop 1")
        fr = d["fr"]
        if fr is not None and fr["n"] not in seen_frag:
            seen_frag.add(fr["n"])
            f = fr["n"]
            if f % 2 == 0:
                tgt = min(f + 1, len(frags) - 1)
                nn = lg.need(("f", tgt)) if ("f", tgt) in lg.q else lg.need(("f", f))
            else: nn = lg.need(("f", f))
            if nn is not None: k(f"s_waitcnt lgkmcnt({nn})")
            firstuse = True
        else: firstuse = False
        A = d["A"] if fr is None else f"a[{fr['reg']}:{fr['reg']+3}]"
        C = "0" if d["first"] else f"v[{d['acc']}:{d['acc']+3}]"
        k(f"v_mfma_f32_16x16x32_bf16 v[{d['acc']}:{d['acc']+3}], {A}, {d['B']}, {C}")
        if st == 23 and pos == 4 or (st in (24, 25) and pos == 4):
            nb = upos[stage_item(st + 1)]*UNIT
            pass
        if fr is not None:
            nf = fr["n"] + LA
            if nf < len(frags):
                nfr = frags[nf]
                if firstuse:
                    if nfr["st"] != frags[nf-1]["st"]:
                        ns_ = nfr["st"]
                        if 24 <= ns_ < 27:
                            nb = upos[stage_item(ns_)]*UNIT
                            k(f"v_add_u32 v{vHB[0]}, {nb}, v{vLH}"); k(f"v_add_u32 v{vHB[1]}, {nb}, v{vLH1}")
                        if ns_ == 27:
                            for l in set_bases_p2(): k(l)
                    emit_reads(nfr, 0)
                else:
                    emit_reads(nfr, 1)
        if xq and pos >= 2:
            kind, l = xq.pop(0)
            if kind == "x": lg_room()
            k(l)
            if kind == "x": lg.issue(("x", st + 1))
            elif xq and xq[0][0] == "v":
                kind, l = xq.pop(0); k(l)
        if dmaq and pos % 3 == 1:
            while dmaq:
                it, (kind, x) = dmaq.pop(0)
                if kind == "s":
                    for l in x: k(l)
                    k("s_nop 0")
                else:
                    if not opts.get("nodma"): k(x)
                    vm.issue(it); break
        credit += rate
        while fillers and credit >= fillers[0][0]:
            c, l = fillers.pop(0); credit -= c
            if isinstance(l, tuple):
                if not (opts.get("nostore") and l[0] == "store"): k(l[1])
                vm.issue("ST" if l[0] == "store" else "CS")
            elif not opts.get("nofill"): k(l)
    assert not dmaq and next_item == len(items), (len(dmaq), next_item)
    flush_fillers()
    k("s_nop 7")
    for c, l in epi_ops(NS - 1):
        if isinstance(l, tuple): k(l[1])
        else: k(l)
    k("s_waitcnt vmcnt(0)")
    stamp()
    if opts.get("stamps"):
        k("v_mov_b32 v1, 0")
        for i in range(nst[0]): k(f"v_writelane_b32 v1, s{62+i}, {i}")
        k(f"v_lshlrev_b32 v2, 2, v{vLANE}")
        k(f"s_lshl_b32 s60, s2, 2\ns_add_u32 s60, s60, s{sW}\ns_lshl_b32 s60, s60, 8\ns_add_u32 s60, s60, {WS_DBG}")
        k(f"buffer_store_dword v1, v2, s[{sWS}:{sWS+3}], s60 offen")
        k("s_waitcnt vmcnt(0)")
    k.label(f"L{name}_end")
    k("s_endpgm")
    return k

if __name__ == "__main__":
    from asmlib import build_file
    V = {"k3b": {}, "k3b_rt": {"stamps": 1, "rt": 1}, "k3b_cy": {"stamps": 1}}
    for nm, o in (("nostore", {"nostore":1}), ("nostore_nodma", {"nostore":1, "nodma":1}), ("sc1", {"sc1":1}), ("nodma", {"nodma":1}), ("nofill", {"nofill":1}), ("noread", {"noread":1}), ("bare", {"nodma":1,"nofill":1,"noread":1}), ("onlyread", {"nodma":1,"nofill":1})):
        V["k3b_rt_"+nm] = dict(o, stamps=1, rt=1); V["k3b_cy_"+nm] = dict(o, stamps=1)
    for nm, o in V.items():
        k = gen_k3b(opts=o)
        if o.get("sc1"): k.lines = [l + ' sc1' if 'buffer_store_dwordx4' in l else l for l in k.lines]
        build_file(f"mb/{nm}.s", [(k, 512, 102, 256)], [("k3_kernel", 256, 256, LDS_BYTES)])
        print(nm, len(k.lines))
```

```python
from asmlib import K
from gen_k3 import WS_HT, WS_PART, WS_END
PSZ = 2048*576*2
def gen_k4(name="k4_kernel", v2=False, nine=False):
    k = K(name)
    k(f"""
    s_getpc_b64 s[4:5]
    v_lshlrev_b32 v1, 7, v0
    v_min_u32 v1, 3328, v1
    global_load_dword v100, v1, s[4:5]
    s_cmp_ge_u32 s2, {256 if nine else 576}
    s_cbranch_scc1 L{name}_end
    s_load_dwordx2 s[4:5], s[0:1], 88          ; out
    s_load_dwordx2 s[6:7], s[0:1], 104         ; ws
    v_lshrrev_b32 v1, 6, v0
    v_and_b32 v2, 63, v0                       ; lane
    s_nop 0
    v_readfirstlane_b32 s16, v1
    s_mul_i32 s17, s2, {9 if nine else 4}
    s_add_u32 s17, s17, s16
    s_mul_hi_u32 s18, s17, 119304648           ; rowblk = q/36
    s_mul_i32 s19, s18, 36
    s_sub_u32 s19, s17, s19                    ; rem
    s_waitcnt lgkmcnt(0)
    s_mov_b32 s8, s6
    s_mov_b32 s9, s7
    s_mov_b32 s10, {WS_END}
    s_mov_b32 s11, 0x20000
    s_mov_b32 s12, s4
    s_mov_b32 s13, s5
    s_mov_b32 s14, {PSZ}
    s_mov_b32 s15, 0x20000
    v_lshlrev_b32 v3, 4, v2                    ; lane*16
    s_lshl_b32 s20, s17, 10
    s_add_u32 s20, s20, {WS_PART}
    """)
    for j in range(16):
        k(f"buffer_load_dwordx4 v[{16+4*j}:{16+4*j+3}], v3, s[8:11], s20 offen")
        if j < 15: k(f"s_add_u32 s20, s20, {PSZ}")
    if not v2:
        k(f"""
        v_and_b32 v4, 31, v2
        v_lshrrev_b32 v5, 5, v2
        v_lshlrev_b32 v6, 15, v5                   ; 8*(lane>>5)*4096
        v_lshl_add_u32 v6, v4, 1, v6               ; + (lane&31)*2
        s_lshl_b32 s21, s18, 6                     ; 32*rowblk*2
        s_lshl_b32 s22, s19, 16                    ; 16*rem*4096
        s_add_u32 s21, s21, s22
        s_add_u32 s21, s21, {WS_HT}
        """)
    else:
        k(f"""
        v_and_b32 v4, 15, v2
        v_bfe_u32 v5, v2, 4, 1
        v_lshlrev_b32 v5, 1, v5
        v_lshrrev_b32 v8, 5, v2
        v_add_u32 v5, v5, v8                       ; (n offset)/8 = 2*(R&1) + (R>>1)
        v_lshlrev_b32 v6, 15, v5
        v_lshl_add_u32 v6, v4, 1, v6
        s_and_b32 s24, s19, 1                      ; jm
        s_lshr_b32 s25, s19, 1
        s_lshl_b32 s21, s18, 6
        s_lshl_b32 s22, s24, 5
        s_add_u32 s21, s21, s22
        s_lshl_b32 s22, s25, 17                    ; 32*blk*4096
        s_add_u32 s21, s21, s22
        s_add_u32 s21, s21, {WS_HT}
        """)
    for i in range(8):
        k(f"buffer_load_ushort v{92+i}, v6, s[8:11], s21 offen")
        if i < 7: k("s_add_u32 s21, s21, 4096")
    if not v2:
        k(f"""
        v_mul_u32_u24 v7, 1152, v4
        v_lshl_add_u32 v7, v5, 4, v7
        s_mul_i32 s23, s18, {32*1152}
        s_lshl_b32 s24, s19, 5
        s_add_u32 s23, s23, s24
        """)
    else:
        k(f"""
        v_mul_u32_u24 v7, 1152, v4
        v_lshl_add_u32 v7, v5, 4, v7
        s_mul_i32 s23, s18, {32*1152}
        s_mul_i32 s24, s24, {16*1152}
        s_add_u32 s23, s23, s24
        s_lshl_b32 s25, s25, 6
        s_add_u32 s23, s23, s25
        """)
    for j in range(16):
        k(f"s_waitcnt vmcnt({min(63, 15 - j + 8)})")
        for d in range(4):
            r = 16 + 4*j + d
            if j == 0:
                k(f"v_lshlrev_b32 v{80+2*d}, 16, v{r}")
                k(f"v_and_b32 v{81+2*d}, 0xffff0000, v{r}")
            else:
                k(f"v_lshlrev_b32 v12, 16, v{r}")
                k(f"v_and_b32 v13, 0xffff0000, v{r}")
                k(f"v_add_f32 v{80+2*d}, v{80+2*d}, v12")
                k(f"v_add_f32 v{81+2*d}, v{81+2*d}, v13")
    k("s_waitcnt vmcnt(0)")
    for d in range(4):
        k(f"""
        v_cvt_pk_bf16_f32 v12, v{80+2*d}, v{81+2*d}
        v_lshlrev_b32 v13, 16, v12
        v_and_b32 v12, 0xffff0000, v12
        v_lshlrev_b32 v14, 16, v{92+2*d}
        v_lshlrev_b32 v15, 16, v{93+2*d}
        v_add_f32 v13, v13, v14
        v_add_f32 v12, v12, v15
        v_cvt_pk_bf16_f32 v{88+d}, v13, v12
        """)
    k(f"""
    buffer_store_dwordx4 v[88:91], v7, s[12:15], s23 offen
    s_waitcnt vmcnt(0)
    """)
    k.label(f"L{name}_end")
    k("s_endpgm")
    return k
```

```python
from asmlib import K
from gen_k3 import WS_XT, WS_UT, WS_HT, WS_CS, WS_END, f2u
from gen_k3 import WS_KG
WS_FL = WS_KG
WS_UX = WS_XT
from gen_k1 import srd, bf16r, cmul, LOG2E
import gen_k1, math
NP, NV, NB = 256, 576, 144
KA_LDS = 40960
TP = 544; TA = 0; TB = 16*TP; KT = TB + 41*TP
UZ = 2560; UD = UZ; KB = UD + 5120; CS = 4416; RED = KB
assert KB + 4*CS <= KA_LDS and RED + 24576 <= KA_LDS and KT + 2101*4 <= KA_LDS

def role_P(k, name, opts):
    PITCH = 1216
    R = opts.get("R", 8)
    k(f"""
    s_setprio 3
    s_load_dwordx2 s[4:5], s[0:1], 0           ; x
    s_load_dwordx4 s[24:27], s[0:1], 96
    s_and_b32 s16, s2, 7
    s_lshl_b32 s16, s16, 5
    s_lshr_b32 s17, s2, 3
    s_add_u32 s16, s16, s17
    v_and_b32 v1, 63, v0                       ; lane
    v_lshrrev_b32 v2, 6, v0                    ; wave
    v_lshrrev_b32 v3, 5, v1                    ; r (0..1)
    v_and_b32 v4, 31, v1                       ; c
    v_lshl_add_u32 v5, v2, 1, v3
    v_mul_u32_u24 v6, 1152, v5
    v_lshl_add_u32 v6, v4, 4, v6               ; row*1152 + c*16
    s_mul_i32 s17, s16, {8*1152}
    v_cmp_gt_u32 vcc, 8, v4
    v_add_u32 v7, 1024, v6
    v_mov_b32 v8, 0x7fffffff
    v_cndmask_b32 v7, v8, v7, vcc
    v_readfirstlane_b32 s21, v2
    s_waitcnt lgkmcnt(0)
    """)
    srd(k, 8, 4, 5, 2048*1152)
    X = 16
    for i in range(2):
        k(f"buffer_load_dwordx4 v[{X+4*i}:{X+4*i+3}], v6, s[8:11], s17 offen offset:{512*i}")
    k(f"buffer_load_dwordx4 v[{X+8}:{X+11}], v7, s[8:11], s17 offen")
    srd(k, 12, 26, 27, WS_END); srd(k, 28, 24, 25, 256)
    k(f"""
    s_or_b32 s34, s21, s2
    s_cmp_lg_u32 s34, 0
    s_cbranch_scc1 L{name}_P_nononce
    s_memrealtime s[32:33]
    s_waitcnt lgkmcnt(0)
    s_or_b32 s32, s32, 1
    v_mov_b32 v12, s32
    v_mov_b32 v13, 0
    buffer_store_dword v12, v13, s[28:31], 0 offen sc1
    """)
    k.label(f"L{name}_P_nononce")
    F = 40
    UOFF = 8*PITCH
    k(f"""
    v_mul_u32_u24 v6, {PITCH}, v5
    v_lshl_add_u32 v6, v4, 4, v6
    v_mov_b32 v9, 0x3f803f80
    v_mov_b32 v10, 0
    v_mov_b32 v11, 0
    s_waitcnt vmcnt(0)
    """)
    for i in range(12):
        k(f"v_dot2_f32_bf16 v{10+(i&1)}, v{X+i}, v9, v{10+(i&1)}")
        k(f"v_lshlrev_b32 v{F+2*i}, 16, v{X+i}")
        k(f"v_and_b32 v{F+2*i+1}, 0xffff0000, v{X+i}")
    for i in range(2): k(f"ds_write_b128 v6, v[{X+4*i}:{X+4*i+3}] offset:{512*i}")
    k("s_nop 0\nv_add_f32 v10, v10, v11")
    def reduce32(reg):
        k(f"""
        s_nop 1
        v_add_f32_dpp v{reg}, v{reg}, v{reg} quad_perm:[1,0,3,2] row_mask:0xf bank_mask:0xf
        s_nop 1
        v_add_f32_dpp v{reg}, v{reg}, v{reg} quad_perm:[2,3,0,1] row_mask:0xf bank_mask:0xf
        s_nop 1
        v_add_f32_dpp v{reg}, v{reg}, v{reg} row_half_mirror row_mask:0xf bank_mask:0xf
        s_nop 1
        v_add_f32_dpp v{reg}, v{reg}, v{reg} row_mirror row_mask:0xf bank_mask:0xf
        v_mov_b32 v14, v{reg}
        s_nop 1
        v_permlane16_swap_b32 v{reg}, v14
        s_nop 1
        v_add_f32 v{reg}, v{reg}, v14
        """)
    k("v_mov_b32 v14, v10") if False else None
    reduce32(10)
    k(f"v_mul_f32 v10, {f2u(1.0/576):#x}, v10        ; mean")
    k("v_mov_b32 v11, 0\nv_mov_b32 v12, 0\nv_mov_b32 v15, 0")
    for i in range(16):
        t = 13 + (i & 1)
        k(f"v_sub_f32 v{t}, v{F+i}, v10")
        k(f"v_fmac_f32 v{11+(i&1)}, v{t}, v{t}")
    for i in range(16, 24):
        t = 13 + (i & 1)
        k(f"v_sub_f32 v{t}, v{F+i}, v10")
        k(f"v_fmac_f32 v15, v{t}, v{t}")
    k("""
    v_add_f32 v11, v11, v12
    v_cndmask_b32 v15, 0, v15, vcc
    v_add_f32 v11, v11, v15
    """)
    reduce32(11)
    k(f"""
    v_mul_f32 v11, {f2u(1.0/576):#x}, v11        ; var
    v_cvt_pk_bf16_f32 v12, v10, v11
    v_lshlrev_b32 v10, 16, v12                   ; m (bf16)
    v_and_b32 v11, 0xffff0000, v12
    v_add_f32 v11, {f2u(1e-5):#x}, v11
    """)
    bf16r(k, 11, 11)
    k("v_sqrt_f32 v11, v11\ns_nop 0")
    bf16r(k, 11, 11)
    k("v_rcp_f32 v11, v11\ns_nop 0")
    U = 80
    for i in range(12):
        a_, b_ = F+2*i, F+2*i+1
        t = 13 + (i & 1)
        k(f"""
        v_sub_f32 v{a_}, v{a_}, v10
        v_sub_f32 v{b_}, v{b_}, v10
        v_cvt_pk_bf16_f32 v{t}, v{a_}, v{b_}
        v_lshlrev_b32 v{a_}, 16, v{t}
        v_and_b32 v{b_}, 0xffff0000, v{t}
        v_mul_f32 v{a_}, v{a_}, v11
        v_mul_f32 v{b_}, v{b_}, v11
        v_cvt_pk_bf16_f32 v{t}, v{a_}, v{b_}
        v_lshlrev_b32 v{a_}, 16, v{t}
        v_and_b32 v{b_}, 0xffff0000, v{t}
        v_cvt_pk_f16_f32 v{U+i}, v{a_}, v{b_}
        """)
        if i % 4 == 3 and i < 8:
            k(f"ds_write_b128 v6, v[{U+i-3}:{U+i}] offset:{UOFF+512*(i//4)}")
    k("s_and_saveexec_b64 s[18:19], vcc")
    k(f"ds_write_b128 v6, v[{X+8}:{X+11}] offset:1024")
    k(f"ds_write_b128 v6, v[{U+8}:{U+11}] offset:{UOFF+1024}")
    k("s_mov_b64 exec, s[18:19]")
    k(f"""
    v_bfe_u32 v6, v1, 2, 2                       ; r'
    v_mul_u32_u24 v6, {PITCH}, v6
    v_and_b32 v7, 3, v1
    v_lshl_add_u32 v6, v7, 3, v6                 ; + 8c
    v_bfe_u32 v7, v1, 4, 1                       ; array
    v_xor_b32 v8, 1, v7
    v_mul_u32_u24 v8, {UOFF}, v8
    v_add_u32 v6, v6, v8
    v_lshrrev_b32 v8, 5, v1                      ; dsub
    v_lshl_add_u32 v6, v8, 5, v6                 ; + dsub*16 d*2B
    v_lshl_add_u32 v6, v2, 6, v6                 ; + wave*32 d*2B
    v_and_b32 v9, 15, v1
    v_lshl_add_u32 v9, v8, 4, v9
    v_lshl_add_u32 v9, v2, 5, v9                 ; d local
    v_lshlrev_b32 v9, 5, v9                      ; d*32
    v_lshl_add_u32 v8, v7, 4, v9                 ; + array*16
    s_mul_i32 s18, s16, {576*32}
    s_add_u32 s18, s18, {WS_UX}
    v_mov_b32 v13, 0
    s_waitcnt lgkmcnt(0)
    s_barrier
    """)
    for it in range(5):
        Rg = 16 + 4*it
        if it == 4: k(f"s_cmp_ge_u32 s21, 2\ns_cbranch_scc1 L{name}_P_st")
        k(f"ds_read_b64_tr_b16 v[{Rg}:{Rg+1}], v6 offset:{it*256}")
        k(f"ds_read_b64_tr_b16 v[{Rg+2}:{Rg+3}], v6 offset:{it*256 + 4*PITCH}")
    k("s_waitcnt lgkmcnt(0)")
    k(f"s_add_u32 s22, s18, {4*128*32}")
    k(f"buffer_store_dwordx4 v[32:35], v8, s[12:15], s22 offen sc1")
    k.label(f"L{name}_P_st")
    for it in range(4):
        Rg = 16 + 4*it
        k(f"s_waitcnt lgkmcnt({max(0, 6 - 2*it)})" if False else "s_waitcnt lgkmcnt(0)") if it == 0 else None
        k(f"buffer_store_dwordx4 v[{Rg}:{Rg+3}], v8, s[12:15], s18 offen sc1")
        k(f"s_add_u32 s18, s18, {128*32}")
    k.label(f"L{name}_P_sig")
    k(f"""
    s_cmp_lg_u32 s21, 0
    s_cbranch_scc1 L{name}_P_w
    s_mov_b32 s22, 0
    """)
    k.label(f"L{name}_P_np")
    k(f"""
    buffer_load_dword v12, v13, s[28:31], 0 offen sc1
    s_waitcnt vmcnt(0)
    v_readfirstlane_b32 s23, v12
    s_cmp_lg_u32 s23, 0
    s_cbranch_scc1 L{name}_P_w
    s_add_u32 s22, s22, 1
    s_cmp_lt_u32 s22, 0x40000
    s_cbranch_scc0 L{name}_P_w
    s_sleep 4
    s_branch L{name}_P_np
    """)
    k.label(f"L{name}_P_w")
    k(f"""
    s_waitcnt vmcnt(0)
    s_barrier
    s_cmp_lg_u32 s21, 0
    s_cbranch_scc1 L{name}_end
    v_cmp_gt_u32 vcc, {R}, v1
    s_and_saveexec_b64 s[18:19], vcc
    v_lshlrev_b32 v6, 10, v1                     ; replica*1024
    s_lshl_b32 s22, s2, 2
    s_add_u32 s22, s22, {WS_FL}
    buffer_store_dword v12, v6, s[12:15], s22 offen sc1
    s_branch L{name}_end
    """)

def poll_flags(k, name, tag, srd_dbg, srd_ws, sleep, vA, vB, sT, R=8):
    k(f"""
    v_mov_b32 v{vB}, 0
    s_mov_b32 s{sT}, 0
    """)
    k.label(f"L{name}_{tag}_np")
    k(f"""
    buffer_load_dword v{vA}, v{vB}, s[{srd_dbg}:{srd_dbg+3}], 0 offen sc1
    s_waitcnt vmcnt(0)
    v_readfirstlane_b32 s{sT+1}, v{vA}
    s_cmp_lg_u32 s{sT+1}, 0
    s_cbranch_scc1 L{name}_{tag}_gotn
    s_add_u32 s{sT}, s{sT}, 1
    s_cmp_lt_u32 s{sT}, 0x40000
    s_cbranch_scc0 L{name}_{tag}_gotn
    s_sleep 4
    s_branch L{name}_{tag}_np
    """)
    k.label(f"L{name}_{tag}_gotn")
    k(f"""
    s_and_b32 s{sT+2}, s2, {R-1}
    s_lshl_b32 s{sT+2}, s{sT+2}, 10
    s_add_u32 s{sT+2}, s{sT+2}, {WS_FL}
    v_lshlrev_b32 v{vB}, 4, v1
    """)
    k.label(f"L{name}_{tag}_poll")
    k(f"""
    buffer_load_dwordx4 v[{vA}:{vA+3}], v{vB}, s[{srd_ws}:{srd_ws+3}], s{sT+2} offen sc1
    s_waitcnt vmcnt(0)
    v_cmp_ne_u32 vcc, s{sT+1}, v{vA}
    v_cmp_ne_u32 s[{sT+4}:{sT+5}], s{sT+1}, v{vA+1}
    s_or_b64 vcc, vcc, s[{sT+4}:{sT+5}]
    v_cmp_ne_u32 s[{sT+4}:{sT+5}], s{sT+1}, v{vA+2}
    s_or_b64 vcc, vcc, s[{sT+4}:{sT+5}]
    v_cmp_ne_u32 s[{sT+4}:{sT+5}], s{sT+1}, v{vA+3}
    s_or_b64 vcc, vcc, s[{sT+4}:{sT+5}]
    s_cbranch_vccz L{name}_{tag}_go
    s_add_u32 s{sT}, s{sT}, 1
    s_cmp_lt_u32 s{sT}, 0x40000
    s_cbranch_scc0 L{name}_{tag}_go
    s_sleep {sleep}
    s_branch L{name}_{tag}_poll
    """)
    k.label(f"L{name}_{tag}_go")

def role_B(k, name, opts):
    k(f"""
    s_load_dwordx4 s[4:7], s[0:1], 64
    s_load_dwordx2 s[24:25], s[0:1], 80         ; w_down
    s_load_dwordx4 s[32:35], s[0:1], 96
    s_sub_u32 s26, s2, {NP+NV}
    s_cmp_ge_u32 s26, 72
    s_cselect_b32 s19, 72, 0
    s_cselect_b32 s20, 1, 0
    s_sub_u32 s18, s26, s19                     ; cidx
    v_lshrrev_b32 v1, 3, v0                     ; rg
    v_and_b32 v2, 7, v0                         ; c
    v_mul_u32_u24 v3, 9216, v1
    v_lshl_add_u32 v3, v2, 4, v3
    s_waitcnt lgkmcnt(0)
    s_cmp_eq_u32 s20, 1
    s_cselect_b32 s8, s6, s4
    s_cselect_b32 s9, s7, s5
    s_mov_b32 s10, {576*9216}
    s_mov_b32 s11, 0x20000
    """)
    srd(k, 12, 34, 35, WS_END)
    if opts.get("codepf"):
        k(f"""
        s_getpc_b64 s[44:45]
        L{name}_pc:
        s_add_u32 s44, s44, k3_kernel-L{name}_pc
        s_addc_u32 s45, s45, 0
        s_lshr_b32 s46, s26, 3
        s_min_u32 s46, s46, {opts.get("codepf")-1}
        s_lshl_b32 s46, s46, 13
        v_and_b32 v60, 63, v0
        v_lshlrev_b32 v60, 7, v60
        v_add_u32 v60, s46, v60
        global_load_dword v92, v60, s[44:45]
        """)
    if opts.get("bwait", True):
        srd(k, 36, 32, 33, 256)
        k(f"v_and_b32 v1, 63, v0\nv_lshrrev_b32 v60, 6, v0\ns_nop 0\nv_readfirstlane_b32 s40, v60\ns_nop 3\ns_cmp_lg_u32 s40, 0\ns_cbranch_scc1 L{name}_B_nopoll")
        poll_flags(k, name, "B", 36, 12, 16, 60, 64, 40, opts.get("R", 8))
        k.label(f"L{name}_B_nopoll")
        k("s_barrier\nv_lshrrev_b32 v1, 3, v0")
    k("s_lshl_b32 s21, s18, 7")
    for i in range(18):
        k(f"buffer_load_dwordx4 v[{16+4*i}:{16+4*i+3}], v3, s[8:11], s21 offen")
        if i < 17: k(f"s_add_u32 s21, s21, {32*9216}")
    NPF = 0
    if opts.get("wdpf"):
        NPF = 2
        srd(k, 28, 24, 25, 4608*1152)
        k(f"""
        s_mul_i32 s27, s26, {288*128}
        v_lshlrev_b32 v14, 7, v0
        buffer_load_dword v90, v14, s[28:31], s27 offen
        v_cmp_gt_u32 vcc, 32, v0
        v_add_u32 v15, {256*128}, v14
        v_mov_b32 v91, 0x7fffffff
        v_cndmask_b32 v15, v91, v15, vcc
        buffer_load_dword v91, v15, s[28:31], s27 offen
        """)
    for i in range(18):
        k(f"s_waitcnt vmcnt({17-i+NPF})")
        for d in range(4):
            r = 16+4*i+d
            if i == 0:
                k(f"v_lshlrev_b32 v{4+2*d}, 16, v{r}\nv_and_b32 v{5+2*d}, 0xffff0000, v{r}")
            else:
                k(f"v_lshlrev_b32 v12, 16, v{r}\nv_and_b32 v13, 0xffff0000, v{r}\nv_add_f32 v{4+2*d}, v{4+2*d}, v12\nv_add_f32 v{5+2*d}, v{5+2*d}, v13")
    k(f"""
    v_lshlrev_b32 v12, 8, v1
    v_lshl_add_u32 v12, v2, 5, v12
    ds_write_b128 v12, v[4:7]
    ds_write_b128 v12, v[8:11] offset:16
    s_waitcnt lgkmcnt(0)
    s_barrier
    v_cmp_gt_u32 vcc, 64, v0
    s_and_saveexec_b64 s[22:23], vcc
    s_cbranch_execz L{name}_end
    v_lshlrev_b32 v12, 2, v0
    """)
    for i in range(32):
        k(f"ds_read_b32 v{16+i}, v12 offset:{256*i}")
        if i in (14, 29): k("s_waitcnt lgkmcnt(0)")
    k("s_waitcnt lgkmcnt(0)")
    for st in (16, 8, 4, 2, 1):
        for i in range(st): k(f"v_add_f32 v{16+i}, v{16+i}, v{16+i+st}")
    k(f"""
    v_cvt_pk_bf16_f32 v13, v16, v16
    v_and_b32 v14, 0xffff0000, v13
    v_sub_f32 v14, v16, v14
    v_cvt_pk_bf16_f32 v14, v14, v14
    v_and_b32 v13, 0xffff, v13
    v_and_b32 v14, 0xffff0000, v14
    v_or_b32 v13, v13, v14
    s_lshl_b32 s22, s18, 6
    v_add_u32 v15, s22, v0                      ; f
    s_mov_b32 s22, 14913081
    v_mul_hi_u32 v16, v15, s22                  ; j
    v_mul_u32_u24 v17, 288, v16
    v_sub_u32 v17, v15, v17                     ; local
    v_and_b32 v18, 1, v16
    v_lshlrev_b32 v19, 5, v18
    v_sub_u32 v19, v17, v19
    v_cmp_gt_i32 vcc, 0, v19
    v_add_u32 v20, 288, v19
    s_nop 0
    v_cndmask_b32 v19, v19, v20, vcc
    v_lshrrev_b32 v20, 4, v19
    v_and_b32 v19, 15, v19
    v_lshl_add_u32 v19, v16, 4, v19
    v_mul_u32_u24 v19, 36, v19
    v_lshl_add_u32 v19, v20, 1, v19
    v_add_u32 v19, s20, v19
    v_lshlrev_b32 v12, 2, v19
    s_mov_b32 s21, {WS_CS}
    buffer_store_dword v13, v12, s[12:15], s21 offen
    s_branch L{name}_end
    """)

def role_V(k, name, opts):
    k(f"""
    s_load_dwordx4 s[4:7], s[0:1], 8
    s_load_dwordx4 s[24:27], s[0:1], 24
    s_load_dwordx4 s[28:31], s[0:1], 40
    s_load_dwordx4 s[48:51], s[0:1], 96
    s_sub_u32 s16, s2, {NP}
    s_and_b32 s18, s16, 7
    s_mul_i32 s18, s18, 72
    s_lshr_b32 s16, s16, 3
    s_add_u32 s16, s16, s18
    v_and_b32 v1, 63, v0                        ; lane
    v_lshrrev_b32 v2, 6, v0                     ; wave
    v_and_b32 v3, 1, v2
    v_lshl_add_u32 v4, v3, 6, v1                ; n
    v_lshlrev_b32 v5, 1, v4                     ; n*2
    v_xor_b32 v6, 128, v5
    v_readfirstlane_b32 s17, v2
    s_lshl_b32 s18, s16, 8                      ; d*256
    s_lshl_b32 s19, s16, 1
    v_mov_b32 v7, s19
    s_waitcnt lgkmcnt(0)
    """)
    srd(k, 8, 4, 5, 576*256); srd(k, 12, 6, 7, 576*256); srd(k, 32, 24, 25, 576*256); srd(k, 36, 26, 27, 576*256)
    srd(k, 40, 28, 29, 576*2); srd(k, 52, 30, 31, 576*2); srd(k, 44, 50, 51, WS_END); srd(k, 56, 48, 49, 256)
    k("""
    buffer_load_ushort v8, v5, s[8:11], s18 offen
    buffer_load_ushort v14, v7, s[40:43], 0 offen
    buffer_load_ushort v9, v5, s[12:15], s18 offen
    buffer_load_ushort v10, v5, s[32:35], s18 offen
    buffer_load_ushort v11, v5, s[36:39], s18 offen
    buffer_load_ushort v12, v6, s[32:35], s18 offen
    buffer_load_ushort v13, v6, s[36:39], s18 offen
    buffer_load_ushort v62, v7, s[52:55], 0 offen       ; D_skip
    """)
    for i in range(8):
        sh = {0: 0, 1: 1, 2: 2, 3: 2}.get(i, 3)
        r = 40 + i
        if sh == 0: k(f"v_lshlrev_b32 v{r}, 2, v0")
        else:
            k(f"""
            v_add_u32 v38, {256*i}, v0
            v_bfe_u32 v39, v38, {sh}, 1
            v_add_u32 v38, v38, v39
            v_add_u32 v38, {(1 << (sh-1)) - 1}, v38
            v_lshrrev_b32 v38, {sh}, v38
            v_lshlrev_b32 v{r}, {sh+2}, v38
            """)
    k("s_waitcnt vmcnt(0)")
    for r in (8, 9, 10, 11, 12, 13, 14, 62): k(f"v_lshlrev_b32 v{r}, 16, v{r}")
    k(f"""
    v_mul_f32 v14, {f2u(LOG2E):#x}, v14
    v_mul_f32 v8, {f2u(LOG2E):#x}, v8
    v_exp_f32 v14, v14
    v_exp_f32 v8, v8
    v_add_f32 v15, |v10|, |v11|
    v_add_f32 v16, |v12|, |v13|
    v_add_f32 v15, v15, v16
    """)
    bf16r(k, 14, 14); bf16r(k, 8, 8)
    k("""
    s_nop 1
    v_add_f32_dpp v15, v15, v15 quad_perm:[1,0,3,2] row_mask:0xf bank_mask:0xf
    s_nop 1
    v_add_f32_dpp v15, v15, v15 quad_perm:[2,3,0,1] row_mask:0xf bank_mask:0xf
    s_nop 1
    v_add_f32_dpp v15, v15, v15 row_half_mirror row_mask:0xf bank_mask:0xf
    s_nop 1
    v_add_f32_dpp v15, v15, v15 row_mirror row_mask:0xf bank_mask:0xf
    s_nop 1
    v_readlane_b32 s20, v15, 0
    v_readlane_b32 s21, v15, 16
    v_readlane_b32 s22, v15, 32
    v_readlane_b32 s23, v15, 48
    s_nop 1
    v_mov_b32 v15, s20
    v_add_f32 v15, s21, v15
    v_add_f32 v15, s22, v15
    v_add_f32 v15, s23, v15
    v_mul_f32 v15, v15, v14
    v_add_f32 v15, v15, v15
    v_frexp_exp_i32_f32 v16, v15
    v_sub_u32 v17, 13, v16
    v_mov_b32 v18, 1.0
    v_ldexp_f32 v19, v18, v17                    ; S
    v_sub_u32 v17, 0, v17
    v_ldexp_f32 v63, v18, v17
    """)
    k(f"""
    v_mul_f32 v8, v8, v14
    v_mul_f32 v9, v9, v14
    v_mul_f32 v8, {f2u(-LOG2E):#x}, v8
    v_mul_f32 v9, 0.15915494, v9
    """)
    AL, BE = 8, 9
    def direct(dr, di, p, t0=21, t1=22):
        k(f"""
        v_mul_f32 v{t0}, {f2u(float(p)):#x}, v{AL}
        v_mul_f32 v{t1}, {f2u(float(p)):#x}, v{BE}
        v_exp_f32 v{t0}, v{t0}
        v_fract_f32 v{t1}, v{t1}
        s_nop 0
        v_cos_f32 v{dr}, v{t1}
        v_sin_f32 v{di}, v{t1}
        s_nop 0
        v_mul_f32 v{dr}, v{dr}, v{t0}
        v_mul_f32 v{di}, v{di}, v{t0}
        """)
    k("v_lshlrev_b32 v23, 2, v4")
    def put(tab, row, re, im, neg=False, tmp=24):
        if neg: k(f"v_cvt_pk_f16_f32 v{tmp}, v{re}, -v{im}")
        else: k(f"v_cvt_pk_f16_f32 v{tmp}, v{re}, v{im}")
        k(f"ds_write_b32 v23, v{tmp} offset:{tab + row*TP}")
    k(f"s_cmp_ge_u32 s17, 2\ns_cbranch_scc1 L{name}_V_part1")
    direct(30, 31, 1); direct(32, 33, 16)
    k("""
    v_mul_f32 v25, v19, v14
    v_add_f32 v25, v25, v25
    v_mul_f32 v34, v10, v25
    v_mul_f32 v35, v11, v25
    v_mov_b32 v26, 1.0
    v_mov_b32 v27, 0
    """)
    fr, fi, er, ei = 34, 35, 26, 27
    for r in range(16):
        put(TA, r, fr, fi, neg=True, tmp=24)
        put(TB, r, er, ei, tmp=25)
        if r < 15:
            nf = 36 if fr == 34 else 34; ne = 28 if er == 26 else 26
            cmul(k, nf, nf+1, fr, fi, 32, 33)
            cmul(k, ne, ne+1, er, ei, 30, 31)
            fr, fi, er, ei = nf, nf+1, ne, ne+1
    k(f"s_branch L{name}_V_join")
    k.label(f"L{name}_V_part1")
    direct(30, 31, 2); direct(32, 33, 256)
    cmul(k, 34, 35, 30, 31, 30, 31)
    cmul(k, 36, 37, 34, 35, 34, 35)
    cmul(k, 38, 39, 32, 33, 32, 33)
    cmul(k, 48, 49, 38, 39, 38, 39)
    cmul(k, 50, 51, 48, 49, 48, 49)
    put(TB, 40, 50, 51)
    cr_, ci_ = 32, 33
    put(TB, 16, cr_, ci_)
    for c in range(1, 8):
        n_ = 52 if cr_ != 52 else 54
        cmul(k, n_, n_+1, cr_, ci_, 30, 31); cr_, ci_ = n_, n_+1
        put(TB, 16 + c, cr_, ci_, tmp=24 + (c & 1))
    cmul(k, 56, 57, 38, 39, 32, 33)
    for base, (b0, b1) in ((24, (38, 39)), (28, (56, 57))):
        cr_, ci_ = b0, b1
        put(TB, base, cr_, ci_)
        for c in range(1, 4):
            n_ = 52 if cr_ != 52 else 54
            cmul(k, n_, n_+1, cr_, ci_, 34, 35); cr_, ci_ = n_, n_+1
            put(TB, base + c, cr_, ci_, tmp=24 + (c & 1))
    cr_, ci_ = 48, 49
    for g in range(4):
        put(TB, 32 + 2*g, cr_, ci_)
        cmul(k, 58, 59, cr_, ci_, 36, 37)
        put(TB, 32 + 2*g + 1, 58, 59, tmp=25)
        if g < 3:
            n_ = 52 if cr_ != 52 else 54
            cmul(k, n_, n_+1, cr_, ci_, 32, 33); cr_, ci_ = n_, n_+1
    k.label(f"L{name}_V_join")
    k("s_waitcnt lgkmcnt(0)\ns_barrier")
    k(f"""
    v_and_b32 v4, 15, v1                          ; a / col / b
    v_lshrrev_b32 v5, 4, v1                       ; q
    s_cmp_ge_u32 s17, 3
    s_cbranch_scc1 L{name}_V_skipmm
    v_mul_u32_u24 v26, {TP}, v4
    v_lshl_add_u32 v26, v5, 4, v26
    s_mul_i32 s20, s17, {16*TP}
    v_add_u32 v27, s20, v26
    """)
    for t in range(8):
        k(f"ds_read_b128 v[{64+8*t}:{64+8*t+3}], v26 offset:{TA + 64*t}")
        k(f"ds_read_b128 v[{68+8*t}:{68+8*t+3}], v27 offset:{TB + 64*t}")
        if t == 6: k("s_waitcnt lgkmcnt(8)")
    k(f"""
    v_mov_b32 v32, v4
    s_cmp_eq_u32 s17, 0
    s_cbranch_scc1 L{name}_V_oready
    s_cmp_eq_u32 s17, 1
    s_cbranch_scc0 L{name}_V_t2
    v_lshlrev_b32 v33, 1, v4
    v_add_u32 v33, 256, v33
    v_and_b32 v34, 3, v4
    v_lshlrev_b32 v34, 2, v34
    v_bfe_u32 v35, v4, 2, 1
    v_lshlrev_b32 v35, 8, v35
    v_add_u32 v34, v34, v35
    v_add_u32 v34, 512, v34
    v_cmp_gt_u32 vcc, 8, v4
    s_nop 1
    v_cndmask_b32 v32, v34, v33, vcc
    s_branch L{name}_V_oready
    """)
    k.label(f"L{name}_V_t2")
    k(f"""
    v_lshrrev_b32 v33, 1, v4
    v_lshlrev_b32 v33, 8, v33
    v_and_b32 v34, 1, v4
    v_lshl_add_u32 v33, v34, 3, v33
    v_add_u32 v33, 1024, v33
    v_cmp_gt_u32 vcc, 9, v4
    v_mov_b32 v34, 2052
    s_nop 0
    v_cndmask_b32 v32, v34, v33, vcc
    """)
    k.label(f"L{name}_V_oready")
    k(f"""
    v_lshl_add_u32 v33, v5, 6, v32
    v_min_u32 v34, 2100, v33
    v_add_u32 v35, 16, v33
    v_min_u32 v35, 2100, v35
    v_add_u32 v36, 32, v33
    v_min_u32 v36, 2100, v36
    v_add_u32 v37, 48, v33
    v_min_u32 v37, 2100, v37
    v_lshlrev_b32 v34, 2, v34
    v_lshlrev_b32 v35, 2, v35
    v_lshlrev_b32 v36, 2, v36
    v_lshlrev_b32 v37, 2, v37
    """)
    for t in range(8):
        k(f"s_waitcnt lgkmcnt({min(15, 2*(7-t))})")
        C = "0" if t == 0 else "v[28:31]"
        k(f"v_mfma_f32_16x16x32_f16 v[28:31], v[{64+8*t}:{64+8*t+3}], v[{68+8*t}:{68+8*t+3}], {C}")
    k(f"""
    s_nop 7
    ds_write_b32 v34, v28 offset:{KT}
    ds_write_b32 v35, v29 offset:{KT}
    ds_write_b32 v36, v30 offset:{KT}
    ds_write_b32 v37, v31 offset:{KT}
    """)
    k.label(f"L{name}_V_skipmm")
    k("s_waitcnt lgkmcnt(0)\ns_barrier")
    for i in range(8): k(f"ds_read_b32 v{48+i}, v{40+i} offset:{KT}")
    k(f"""
    v_mov_b32 v16, 0
    v_mov_b32 v17, 0
    v_mov_b32 v18, 0
    v_mov_b32 v19, 0
    v_lshlrev_b32 v14, 4, v0                   ; tid*16
    v_cmp_gt_u32 vcc, 160, v0
    s_and_saveexec_b64 s[22:23], vcc
    ds_write_b128 v14, v[16:19]
    s_mov_b64 exec, s[22:23]
    v_cmp_gt_u32 vcc, 32, v0
    v_lshrrev_b32 v15, 3, v0
    v_mul_u32_u24 v15, {CS}, v15
    v_and_b32 v20, 7, v0
    v_lshl_add_u32 v15, v20, 4, v15
    s_and_saveexec_b64 s[22:23], vcc
    ds_write_b128 v15, v[16:19] offset:{KB}
    s_mov_b64 exec, s[22:23]
    v_lshlrev_b32 v15, 1, v0
    s_waitcnt lgkmcnt(0)
    """)
    for i in range(8):
        k(f"v_cvt_f16_f32 v{48+i}, v{48+i}")
        k(f"ds_write_b16 v15, v{48+i} offset:{KB + 128 + 512*i}")
    k("s_waitcnt lgkmcnt(0)\ns_barrier")
    k(f"""
    ds_read_b128 v[24:27], v14 offset:{KB + 128}
    ds_read_b64 v[22:23], v14 offset:{KB + 120}
    """)
    k(f"""
    s_cmp_lg_u32 s17, 0
    s_cbranch_scc1 L{name}_V_nopoll
    """)
    poll_flags(k, name, "V", 56, 44, opts.get("vsleep", 4), 56, 21, 60, opts.get("R", 8))
    k.label(f"L{name}_V_nopoll")
    k(f"""
    s_waitcnt lgkmcnt(0)
    v_alignbit_b32 v28, v23, v22, 16
    v_alignbit_b32 v29, v24, v23, 16
    v_alignbit_b32 v30, v25, v24, 16
    v_alignbit_b32 v31, v26, v25, 16
    v_alignbit_b32 v32, v27, v26, 16
    v_mov_b32 v36, v29
    v_mov_b32 v37, v30
    v_mov_b32 v38, v31
    v_mov_b32 v39, v32
    v_mov_b32 v40, v23
    v_mov_b32 v41, v24
    v_mov_b32 v42, v25
    v_mov_b32 v43, v26
    ds_write_b128 v14, v[28:31] offset:{KB + 3*CS + 128}
    ds_write_b128 v14, v[36:39] offset:{KB + 1*CS + 128}
    ds_write_b128 v14, v[40:43] offset:{KB + 2*CS + 128}
    s_barrier
    """)
    k(f"""
    v_mul_u32_u24 v20, {576*32}, v0
    s_lshl_b32 s19, s16, 5
    s_add_u32 s19, s19, {WS_UX}                ; + d*32
    buffer_load_dwordx4 v[44:47], v20, s[44:47], s19 offen sc1
    v_lshrrev_b32 v48, 3, v0
    v_mul_u32_u24 v48, 160, v48
    v_and_b32 v49, 7, v0
    v_lshl_add_u32 v48, v49, 4, v48
    v_lshlrev_b32 v7, 3, v4
    v_lshrrev_b32 v21, 1, v5
    v_add_u32 v7, v7, v21
    s_lshl_b32 s25, s17, 1
    v_add_u32 v7, s25, v7                      ; 8a + 2mb + (q>>1)
    v_mul_u32_u24 v7, {576*32}, v7
    v_and_b32 v21, 1, v5
    v_lshl_add_u32 v7, v21, 3, v7
    s_add_u32 s25, s19, 16
    buffer_load_dwordx2 v[8:9], v7, s[44:47], s25 offen sc1
    s_add_u32 s25, s25, {128*576*32}
    buffer_load_dwordx2 v[10:11], v7, s[44:47], s25 offen sc1
    v_lshlrev_b32 v6, 7, v4
    v_lshl_add_u32 v6, v5, 3, v6               ; h^T offset: a*128 + q*8
    s_lshl_b32 s23, s17, 5                     ; mb*32
    s_lshl_b32 s24, s16, 12
    s_add_u32 s24, s24, s23
    """)
    k(f"""
    v_bfe_u32 v52, v1, 2, 2
    v_mul_u32_u24 v52, {CS}, v52
    v_and_b32 v53, 3, v1
    v_lshl_add_u32 v52, v53, 3, v52
    v_lshlrev_b32 v53, 4, v5
    v_sub_u32 v52, v52, v53
    s_lshl_b32 s27, s17, 9
    s_add_u32 s27, s27, {KB + 128 - 64 - 8}
    v_add_u32 v12, s27, v52                    ; A base
    v_mul_u32_u24 v53, 160, v4
    v_lshl_add_u32 v53, v5, 4, v53
    s_mul_i32 s27, s17, {4*160}
    s_sub_u32 s27, {UD - 3*160}, s27
    v_add_u32 v13, s27, v53                    ; B base
    s_waitcnt vmcnt(2)
    ds_write_b128 v48, v[44:47] offset:{UD}
    s_waitcnt lgkmcnt(0)
    s_barrier
    """)
    ACC = 16; BSET = [48, 64]; A1, A2 = 80, 104; RNG = 6
    def loadsB(si):
        L = []
        for na in range(2):
            for kk in range(2):
                r = BSET[si & 1] + 4*(2*na + kk)
                L.append(f"ds_read_b128 v[{r}:{r+3}], v13 offset:{(16*na + 3 - si)*160 + 64*kk}")
        return L
    def loadsA(tas):
        L = []
        for ta in tas:
            for rng in range(2):
                base = (A1 if rng == 0 else A2) + 4*(ta % RNG)
                for i in range(2):
                    L.append(f"ds_read_b64_tr_b16 v[{base+2*i}:{base+2*i+1}], v12 offset:{32*ta + 8*(1-i) + (2048 if rng else 0)}")
        return L
    k("v_mov_b32 v14, v62\nv_mov_b32 v15, v63")
    L0 = loadsB(0) + loadsA(range(0, 6))
    for n, l in enumerate(L0):
        k(l)
        if n in (11, 19): k("s_waitcnt lgkmcnt(4)")
    first = {}
    def mfmas(si, kk, mbs):
        out = []
        Bb = BSET[si & 1]
        for mb in mbs:
            ta = 4*si + 2 + mb - 2*kk
            for rng, na, bsel in ((0, 0, 0), (0, 1, 1), (1, 1, 0)):
                acc = ACC + 8*mb + 4*na
                A = (A1 if rng == 0 else A2) + 4*(ta % RNG)
                B = Bb + 4*(2*bsel + kk)
                C = f"v[{acc}:{acc+3}]" if (mb, na) in first else "0"
                first[(mb, na)] = 1
                out.append(f"v_mfma_f32_16x16x32_f16 v[{acc}:{acc+3}], v[{A}:{A+3}], v[{B}:{B+3}], {C}")
        return out
    for si in range(4):
        k("s_waitcnt lgkmcnt(0)")
        for m in mfmas(si, 1, range(4)): k(m)
        if si < 3:
            for l in loadsB(si + 1) + loadsA([4*si + 6, 4*si + 7]): k(l)
        for m in mfmas(si, 0, range(2)): k(m)
        mm = mfmas(si, 0, range(2, 4))
        if si < 3:
            k("s_waitcnt lgkmcnt(6)")
            for l in loadsA([4*si + 8, 4*si + 9]): k(l)
        for m in mm: k(m)
    k(f"""
    s_barrier
    v_lshlrev_b32 v12, 4, v1
    s_mul_i32 s27, s17, {6*1024}
    v_add_u32 v12, s27, v12
    """)
    for mb in range(4):
        k(f"s_cmp_eq_u32 s17, {mb}\ns_cbranch_scc1 L{name}_skw{mb}")
        k(f"s_sub_u32 s28, {mb + 3}, s17\ns_and_b32 s28, s28, 3\ns_lshl_b32 s28, s28, 11\nv_add_u32 v13, s28, v12")
        for na in range(2):
            acc = ACC + 8*mb + 4*na
            k(f"ds_write_b128 v13, v[{acc}:{acc+3}] offset:{RED + na*1024}")
        k.label(f"L{name}_skw{mb}")
    for mb in range(4):
        k(f"s_cmp_lg_u32 s17, {mb}\ns_cbranch_scc1 L{name}_mv{mb}")
        for i in range(8): k(f"v_mov_b32 v{48+i}, v{ACC+8*mb+i}")
        k.label(f"L{name}_mv{mb}")
    k("s_waitcnt lgkmcnt(0)\ns_barrier")
    k("v_lshlrev_b32 v12, 4, v1")
    for t in range(3):
        k(f"""
        s_sub_u32 s28, s17, {1+t}
        s_and_b32 s28, s28, 3
        s_mul_i32 s28, s28, {6*1024}
        s_add_u32 s28, s28, {t*2048}
        v_add_u32 v13, s28, v12
        ds_read_b128 v[{56+8*t}:{56+8*t+3}], v13 offset:{RED}
        ds_read_b128 v[{60+8*t}:{60+8*t+3}], v13 offset:{RED+1024}
        """)
    k(f"""
    v_mul_u32_u24 v13, 160, v4
    v_lshl_add_u32 v13, v5, 3, v13
    v_add_u32 v13, s23, v13
    ds_read_b64 v[80:81], v13 offset:{UD}
    ds_read_b64 v[82:83], v13 offset:{UD + 16*160}
    s_waitcnt vmcnt(0) lgkmcnt(0)
    """)
    for t in range(3):
        for i in range(8): k(f"v_add_f32 v{48+i}, v{48+i}, v{56+8*t+i}")
    for na in range(2):
        Y = 48 + 4*na
        for p in range(2):
            y0, y1 = Y + 2*p, Y + 2*p + 1
            ur = 80 + 2*na + p; xr = 8 + 2*na + p
            k(f"""
            v_mul_f32 v{y0}, v{y0}, v15
            v_mul_f32 v{y1}, v{y1}, v15
            v_cvt_pk_bf16_f32 v84, v{y0}, v{y1}
            v_cvt_f32_f16 v85, v{ur}
            v_cvt_f32_f16_sdwa v86, v{ur} dst_sel:DWORD dst_unused:UNUSED_PAD src0_sel:WORD_1
            v_mul_f32 v85, v85, v14
            v_mul_f32 v86, v86, v14
            v_cvt_pk_bf16_f32 v85, v85, v86
            v_lshlrev_b32 v86, 16, v84
            v_and_b32 v84, 0xffff0000, v84
            v_lshlrev_b32 v87, 16, v85
            v_and_b32 v85, 0xffff0000, v85
            v_add_f32 v86, v86, v87
            v_add_f32 v84, v84, v85
            v_cvt_pk_bf16_f32 v84, v86, v84
            v_lshlrev_b32 v86, 16, v84
            v_and_b32 v84, 0xffff0000, v84
            v_lshlrev_b32 v87, 16, v{xr}
            v_and_b32 v85, 0xffff0000, v{xr}
            v_add_f32 v86, v86, v87
            v_add_f32 v84, v84, v85
            v_cvt_pk_bf16_f32 v{88 + 2*na + p}, v86, v84
            """)
    k(f"""
    s_add_u32 s25, s24, {WS_HT}
    buffer_store_dwordx2 v[88:89], v6, s[44:47], s25 offen
    buffer_store_dwordx2 v[90:91], v6, s[44:47], s25 offen offset:2048
    """)

def gen_ka(name="ka_kernel", opts=None):
    opts = opts or {}
    k = K(name)
    if opts.get("selfpf", True):
        k(f"""
        s_getpc_b64 s[4:5]
        L{name}_pc0:
        v_lshlrev_b32 v1, 7, v0
        v_min_u32 v1, {opts.get("selfpf_bytes", 14336) - 128}, v1
        global_load_dword v127, v1, s[4:5]
        """)
    k(f"""
    s_cmp_ge_u32 s2, {NP+NV+NB}
    s_cbranch_scc1 L{name}_end
    s_cmp_ge_u32 s2, {NP+NV}
    s_cbranch_scc1 L{name}_B
    s_cmp_ge_u32 s2, {NP}
    s_cbranch_scc1 L{name}_V
    """)
    role_P(k, name, opts)
    k.label(f"L{name}_B")
    role_B(k, name, opts)
    k.label(f"L{name}_V")
    role_V(k, name, opts)
    k.label(f"L{name}_end")
    k("s_endpgm")
    return k
if __name__ == "__main__":
    from asmlib import build_file
    k = gen_ka()
    build_file("mb/ka.s", [(k, 128, 80, 128)], [("ka_kernel", NP+NV+NB, 256, KA_LDS)])
```

```python
import sys
from asmlib import build_file
from gen_ka import gen_ka, NP, NV, NB, KA_LDS
from gen_k3b import gen_k3b, LDS_BYTES
from gen_k4 import gen_k4
from instr import instrument
HEADER = """; sequential_preLN -> S4D conv -> preLN -> GEGLU FFN, gfx950.  Generated by a hand-written generator.
"""
def build(fn, instr=False, k3opts=None, kaopts=None):
    ka = gen_ka(opts=kaopts); k3 = gen_k3b(opts=k3opts); k4 = gen_k4(v2=True)
    k3.lines = [l + ' sc1' if 'buffer_store_dwordx4' in l else l for l in k3.lines]
    sg = 80
    if instr:
        for i, k in enumerate((ka, k3, k4)): instrument(k, i)
        sg = 102
    ks = [(ka, 128, sg, 128), (k3, 512, 102, 256), (k4, 104, 102 if instr else 32, 104)]
    launches = [("ka_kernel", NP+NV+NB, 256, KA_LDS), ("k3_kernel", 256, 256, LDS_BYTES), ("k4_kernel", 576, 256, 0)]
    build_file(fn, ks, launches, header=HEADER)
if __name__ == "__main__":
    KO = {"bwait": True, "codepf": 7}
    build("mb/all2.s", kaopts=KO); build("mb/all2_i.s", instr=True, kaopts=KO)
    if len(sys.argv) > 1: build("sequential_preLN__ssm_conv_s4d__geglu_ffn__prompt.s", kaopts=KO)
```

```python
from asmlib import K
import math, struct
from gen_k3 import (WS_HT, WS_CS, WS_PART, WS_DBG, WS_END, K0C, K1C, f2u, VmTracker)

UNIT = 12288
NUNIT = 12
LDS_BYTES = UNIT*NUNIT

def gen_k3b(name="k3_kernel", LA=6, RING=8, opts=None):
    opts = opts or {}
    k = K(name)
    vm = VmTracker(63); lg = VmTracker(15)
    vLANE = 0
    vDA = [1, 2, 3]
    vDH = [4, 5, 6]
    vDD = [7, 8, 9]
    vC0, vC1, vS2 = [10, 11], [12, 13], [14, 15]
    vST = 16
    vRB = list(range(17, 33))
    vLH = 33
    vLH1 = 34
    vTMP = list(range(35, 48))
    vACC = [48, 112]
    vH = 176
    vT = 248
    vX = list(range(112, 118))
    vXL = [118, 119]
    vXB = [120, 121]
    vS1 = [122, 123]; vS2s = [124, 125]; vONE = 126; vTA = [127, 128, 129, 130]
    aX = 0; aR = 144; aCS = 176; aBM = 214
    aONE = 232
    sWM = 8; sWD = 12; sWS = 16
    sW, sJ, sMT = 20, 21, 22
    sW1F, sW1H, sM1 = 23, 24, 25
    sD, sMD = 26, 27
    sDw = 28
    sSO = 32; sPART = 33; sXO, sMX = 34, 35
    sT0, sT1, sT2, sT3 = 36, 37, 38, 39
    nst = [0]
    def stamp():
        if not opts.get("stamps"): return
        k("s_memrealtime s[60:61]" if opts.get("rt") else "s_memtime s[60:61]")
        k("s_waitcnt lgkmcnt(0)")
        k(f"s_mov_b32 s{62 + nst[0]}, s60")
        lg.done = len(lg.q)
        nst[0] += 1
    k(f"""
    s_cmp_ge_u32 s2, 256
    s_cbranch_scc1 L{name}_end
    s_load_dwordx4 s[4:7], s[0:1], 64
    s_load_dwordx2 s[40:41], s[0:1], 80        ; w_down
    s_load_dwordx2 s[42:43], s[0:1], 104       ; ws
    v_lshrrev_b32 v{vTMP[0]}, 6, v0
    v_and_b32 v{vLANE}, 63, v0
    s_nop 0
    v_readfirstlane_b32 s{sW}, v{vTMP[0]}
    s_and_b32 s{sT0}, s2, 7
    s_lshr_b32 s{sT1}, s2, 3
    s_and_b32 s{sT2}, s{sT1}, 1                 ; parity
    s_lshl_b32 s{sJ}, s{sT0}, 1
    s_add_u32 s{sJ}, s{sJ}, s{sT2}              ; split j
    s_lshr_b32 s{sMT}, s{sT1}, 1                ; m tile
    """)
    t0, t1, t2, t3, t4, t5, t6 = vTMP[0:7]
    k(f"""
    v_lshrrev_b32 v{t0}, 4, v{vLANE}            ; row 0..3
    v_bfe_u32 v{t1}, v{vLANE}, 1, 3             ; unit32
    v_and_b32 v{t2}, 1, v{vLANE}
    v_lshlrev_b32 v{t2}, 4, v{t2}               ; (sigma16&1)*16
    v_lshlrev_b32 v{t3}, 12, v{t0}              ; row*4096
    v_add_u32 v{t3}, v{t3}, v{t2}
    v_xor_b32 v{t4}, v{t1}, v{t0}               ; par 0
    v_xor_b32 v{t5}, 4, v{t4}                   ; par 1
    v_lshl_add_u32 v{t4}, v{t4}, 5, v{t3}
    v_lshl_add_u32 v{t5}, v{t5}, 5, v{t3}
    """)
    for tp in range(6):
        src = t4 if tp % 2 == 0 else t5
        k(f"v_add_u32 v{vX[tp]}, {(tp % 3)*(4*4096-1024)}, v{src}")
    k(f"""
    v_lshrrev_b32 v{t0}, 3, v{vLANE}
    v_bfe_u32 v{t1}, v{vLANE}, 1, 2
    v_bfe_u32 v{t2}, v{vLANE}, 4, 2
    v_xor_b32 v{t1}, v{t1}, v{t2}
    v_and_b32 v{t2}, 1, v{vLANE}
    v_lshlrev_b32 v{t2}, 4, v{t2}
    v_lshl_add_u32 v{t1}, v{t1}, 5, v{t2}
    v_mul_u32_u24 v{t2}, 9216, v{t0}
    v_add_u32 v{vDA[0]}, v{t2}, v{t1}
    v_mul_u32_u24 v{t2}, 1152, v{t0}
    v_add_u32 v{vDD[0]}, v{t2}, v{t1}
    v_lshrrev_b32 v{t0}, 2, v{vLANE}
    v_bfe_u32 v{t1}, v{vLANE}, 1, 1
    v_bfe_u32 v{t2}, v{vLANE}, 4, 1
    v_xor_b32 v{t1}, v{t1}, v{t2}
    v_and_b32 v{t2}, 1, v{vLANE}
    v_lshlrev_b32 v{t2}, 4, v{t2}
    v_lshl_add_u32 v{t1}, v{t1}, 5, v{t2}
    v_mul_u32_u24 v{t2}, 9216, v{t0}
    v_add_u32 v{vDH[0]}, v{t2}, v{t1}
    """)
    for i in range(1, 3):
        k(f"v_add_u32 v{vDA[i]}, {i*(8*9216-1024)}, v{vDA[0]}")
        k(f"v_add_u32 v{vDD[i]}, {i*(8*1152-1024)}, v{vDD[0]}")
        k(f"v_add_u32 v{vDH[i]}, {i*(16*9216-1024)}, v{vDH[0]}")
    k("s_waitcnt lgkmcnt(0)")
    k(f"""
    s_cmp_ge_u32 s{sW}, 2
    s_cselect_b32 s{sWM}, s6, s4
    s_cselect_b32 s{sWM+1}, s7, s5
    s_mov_b32 s{sWM+2}, {576*4608*2}
    s_mov_b32 s{sWM+3}, 0x20000
    s_mov_b32 s{sWD}, s40
    s_mov_b32 s{sWD+1}, s41
    s_mov_b32 s{sWD+2}, {4608*576*2}
    s_mov_b32 s{sWD+3}, 0x20000
    s_mov_b32 s{sWS}, s42
    s_mov_b32 s{sWS+1}, s43
    s_mov_b32 s{sWS+2}, {WS_END}
    s_mov_b32 s{sWS+3}, 0x20000
    """)
    stamp()
    k(f"""
    s_mul_i32 s{sXO}, s{sW}, {24*4096}
    s_lshl_b32 s{sT0}, s{sMT}, 8
    s_add_u32 s{sXO}, s{sXO}, s{sT0}
    s_add_u32 s{sXO}, s{sXO}, {WS_HT}           ; X: + (96p + 24w + 12u)*4096
    s_mul_i32 s{sMX}, s{sW}, {6*1024}
    s_and_b32 s{sT2}, s{sJ}, 1                  ; parity
    s_mul_i32 s{sT0}, s{sJ}, 288                ; F0
    s_lshl_b32 s{sT1}, s{sT2}, 5
    s_add_u32 s{sT1}, s{sT0}, s{sT1}            ; FG0
    s_xor_b32 s{sT3}, s{sT2}, 1
    s_lshl_b32 s{sT3}, s{sT3}, 8
    s_add_u32 s{sT3}, s{sT0}, s{sT3}            ; FH
    s_and_b32 s46, s{sW}, 1
    s_lshr_b32 s47, s{sW}, 1
    ; phase 1: waves 0,1 -> gate unit, waves 2,3 -> up unit. each wave 6 instr: rows 48*(w&1) + 8*t (full) ; rows 96*(w&1)+16t (half)
    s_mul_i32 s{sW1F}, s46, {48*9216}
    s_lshl_b32 s48, s{sT1}, 1
    s_add_u32 s{sW1F}, s{sW1F}, s48
    s_mul_i32 s{sW1H}, s46, {96*9216}
    s_lshl_b32 s48, s{sT3}, 1
    s_add_u32 s{sW1H}, s{sW1H}, s48
    s_mul_i32 s{sM1}, s47, {UNIT}
    s_mul_i32 s48, s46, 6144
    s_add_u32 s{sM1}, s{sM1}, s48
    """)
    ROT = opts.get("rot", False)
    sW1Fh, sXOh = 29, 55
    sW1Hq = [s_ for s_ in (92, 93, 94)]
    if ROT:
        k(f"""
        s_mul_i32 s48, s{sT2}, {288*9216}
        s_sub_u32 s{sW1Fh}, s{sW1F}, s48
        s_add_u32 s{sW1F}, s{sW1F}, s48
        s_mul_i32 s48, s{sT2}, {288*4096}
        s_sub_u32 s{sXOh}, s{sXO}, s48
        s_add_u32 s{sXO}, s{sXO}, s48
        """)
    else:
        k(f"s_mov_b32 s{sW1Fh}, s{sW1F}\ns_mov_b32 s{sXOh}, s{sXO}")
    for q in range(3):
        k(f"""
        s_add_u32 s48, s46, {2*q}
        s_mul_i32 s49, s{sT2}, {3 if ROT else 0}
        s_add_u32 s48, s48, s49
        s_cmp_ge_u32 s48, 6
        s_cselect_b32 s49, 6, 0
        s_sub_u32 s48, s48, s49
        s_mul_i32 s48, s48, {96*9216}
        s_lshl_b32 s49, s{sT3}, 1
        s_add_u32 s{sW1Hq[q]}, s48, s49
        """)
    sDb = [50, 51, 52, 53, 54]
    for n, (rho_add, tcomp) in enumerate(((0, 0), (96, 0), (192, 0), (200, 1), (208, 2))):
        k(f"""
        s_mul_i32 s48, s{sW}, 24
        s_add_u32 s48, s48, {rho_add}
        s_lshl_b32 s49, s{sT2}, 5
        s_add_u32 s48, s48, s49
        s_cmp_ge_u32 s48, 288
        s_cselect_b32 s49, 288, 0
        s_sub_u32 s48, s48, s49
        s_add_u32 s48, s48, s{sT0}
        s_mul_i32 s{sDb[n]}, s48, 1152
        """)
        if tcomp: k(f"s_sub_u32 s{sDb[n]}, s{sDb[n]}, {tcomp*8*1152}")
    k(f"s_mul_i32 s{sMD}, s{sW}, 3072")
    k(f"""
    s_lshl_b32 s48, s{sJ}, 4
    s_add_u32 s48, s48, s{sMT}
    s_lshl_b32 s48, s48, 2
    s_add_u32 s48, s48, s{sW}
    s_mul_i32 s{sPART}, s48, {36*1024}
    s_add_u32 s{sPART}, s{sPART}, {WS_PART}
    v_lshlrev_b32 v{vST}, 4, v{vLANE}
    s_lshl_b32 s44, s{sT1}, 2
    s_add_u32 s44, s44, {WS_CS}
    s_lshl_b32 s45, s{sT3}, 2
    s_add_u32 s45, s45, {WS_CS}
    """)
    def dma(voff, srd, i):
        off = f" offset:{i*1024}" if i else ""
        return f"buffer_load_dwordx4 v{voff}, s[{srd}:{srd+3}], s{sSO} offen{off} lds"
    items = []
    for p in range(6): items += [("X", p), ("W", p)]
    items += [("W", p) for p in range(6, 27)]
    items += [("D", p) for p in range(9)]
    upos = {}; u = 0
    for it in items:
        n = 3 if it[0] == "D" else 2
        upos[it] = u % NUNIT
        assert (u % NUNIT) + n <= NUNIT
        u += n
    uabs = {}; u = 0
    for it in items:
        n = 3 if it[0] == "D" else 2
        uabs[it] = (u, u + n); u += n
    def dma_ops(it):
        ty, p = it; base = upos[it]*UNIT
        ops = []
        if ty == "X":
            for g in range(2):
                ops.append(("s", [f"s_add_u32 s{sSO}, s{sXO if p < 3 else sXOh}, {(96*p + 12*g)*4096}", f"s_add_u32 m0, s{sMX}, {base + g*3072}"]))
                for t in range(3): ops.append(("d", dma(vX[3*g+t], sWS, t)))
        elif ty == "W" and p < 24:
            grp, q = p // 6, p % 6
            for g in range(2):
                ops.append(("s", [f"s_add_u32 s{sSO}, s{sW1F if q < 3 else sW1Fh}, {(96*q + 24*g)*9216 + grp*128}", f"s_add_u32 m0, s{sM1}, {base + g*3072}"]))
                for t in range(3): ops.append(("d", dma(vDA[t], sWM, t)))
        elif ty == "W":
            q = p - 24
            for g in range(2):
                ops.append(("s", [f"s_add_u32 s{sSO}, s{sW1Hq[q]}, {(48*g)*9216}", f"s_add_u32 m0, s{sM1}, {base + g*3072}"]))
                for t in range(3): ops.append(("d", dma(vDH[t], sWM, t)))
        else:
            for u3 in range(2):
                ops.append(("s", [f"s_add_u32 s{sSO}, s{sDb[u3]}, {p*128}", f"s_add_u32 m0, s{sMD}, {base + u3*UNIT}"]))
                for t in range(3): ops.append(("d", dma(vDD[t], sWD, t)))
            for t in range(3):
                l = [f"s_add_u32 s{sSO}, s{sDb[2+t]}, {p*128}"]
                if t == 0: l.append(f"s_add_u32 m0, s{sMD}, {base + 2*UNIT}")
                ops.append(("s", l))
                ops.append(("d", dma(vDD[t], sWD, t)))
        return ops
    def emit_dma_all(it):
        for kind, x in dma_ops(it):
            if kind == "s":
                for l in x: k(l)
                k("s_nop 0")
            else:
                k(x); vm.issue(it)
    issued = []
    for it in items[:2]:
        emit_dma_all(it); issued.append(it)
    def cs_ops():
        L = [(1, f"v_and_b32 v{vTMP[10]}, 15, v{vLANE}"), (1, f"v_mul_u32_u24 v{vTMP[10]}, 144, v{vTMP[10]}"),
             (1, f"s_mul_i32 s44, s{sJ}, {16*144}"), (1, f"s_add_u32 s44, s44, {WS_CS}")]
        for n in range(9):
            off = f" offset:{16*n}" if n else ""
            L.append((1, ("load", f"buffer_load_dwordx4 a[{aCS+4*n}:{aCS+4*n+3}], v{vTMP[10]}, s[{sWS}:{sWS+3}], s44 offen{off}")))
        return L
    k(f"""
    v_bfe_u32 v{t0}, v{vLANE}, 2, 2             ; r'
    v_lshrrev_b32 v{t1}, 4, v{vLANE}            ; q
    v_lshl_add_u32 v{t2}, v{t1}, 2, v{t0}       ; rr = 4q + r'
    v_and_b32 v{t3}, 3, v{vLANE}
    v_lshlrev_b32 v{t3}, 3, v{t3}               ; 8c
    v_bfe_u32 v{t4}, v{t2}, 1, 2                ; g = (rr>>1)&3
    v_lshlrev_b32 v{t5}, 7, v{t2}
    v_add_u32 v{t5}, v{t5}, v{t3}
    v_lshl_add_u32 v{t5}, v{t4}, 5, v{t5}
    """)
    vLC0 = vTMP[7]
    k(f"v_mov_b32 v{vLC0}, v{t5}")
    def set_bases_p1():
        L = []
        for wdw in range(3):
            for ft in range(4):
                L.append(f"v_xor_b32 v{vRB[4*wdw+ft]}, {ft*32}, v{vLC0}")
                if wdw: L.append(f"v_add_u32 v{vRB[4*wdw+ft]}, {wdw*49152}, v{vRB[4*wdw+ft]}")
        return L
    def set_bases_p2():
        L = []
        for sl in range(4):
            for nt in range(4):
                L.append(f"v_xor_b32 v{vRB[4*sl+nt]}, {nt*32}, v{vLC0}")
                if sl: L.append(f"v_add_u32 v{vRB[4*sl+nt]}, {sl*36864}, v{vRB[4*sl+nt]}")
        return L
    for l in set_bases_p1(): k(l)
    k(f"""
    ; half lane const: rr*64 + ((q&1)*32) + 8c
    v_lshlrev_b32 v{t5}, 6, v{t2}
    v_add_u32 v{t5}, v{t5}, v{t3}
    v_and_b32 v{t6}, 1, v{t1}
    v_lshl_add_u32 v{vLH}, v{t6}, 5, v{t5}
    v_xor_b32 v{vLH1}, 32, v{vLH}
    ; X lane consts: rr*256 + (((2w+j) ^ (rr&7))*32) + 8c
    v_lshlrev_b32 v{t5}, 8, v{t2}
    v_add_u32 v{t5}, v{t5}, v{t3}
    v_and_b32 v{t6}, 7, v{t2}
    s_lshl_b32 s48, s{sW}, 1
    v_xor_b32 v{t6}, s48, v{t6}
    v_lshl_add_u32 v{vXL[0]}, v{t6}, 5, v{t5}
    v_xor_b32 v{vXL[1]}, 32, v{vXL[0]}
    v_mov_b32 v{vONE}, 0x3f803f80
    """)
    for e in range(4): k(f"v_accvgpr_write_b32 a{aONE+e}, v{vONE}")
    vD1 = [132, 136]; vD2 = [140, 144]
    def stats_mf(p):
        L = []
        for s_ in range(3):
            for j in range(2):
                xs = aX + 4*(2*(3*p+s_) + j)
                first = (p == 0 and s_ == 0)
                L.append(dict(fr=None, acc=vD1[j], A=f"a[{aONE}:{aONE+3}]", B=f"a[{xs}:{xs+3}]", first=first))
                L.append(dict(fr=None, acc=vD2[j], A=f"a[{xs}:{xs+3}]", B=f"a[{xs}:{xs+3}]", first=first))
        return L
    NS1 = 27; NS = 36
    def stage_item(st): return ("W", st) if st < NS1 else ("D", st - NS1)
    def acc_reg(st, tile):
        if st < 24: return vACC[(st // 6) % 2] + 4*tile
        if st < 27: return vACC[0] + 4*tile
        return vACC[1] + 32*((st - 27) % 2) + 4*tile
    mf = []; frags = []
    for st in range(NS):
        it = stage_item(st); base = upos[it]*UNIT
        if st < 24:
            grp, q = st // 6, st % 6
            wdw, rel = base // 49152, base % 49152
            for s in range(3):
                for ft in range(4):
                    for mat in range(2):
                        rd = [(vRB[4*wdw+ft], rel + mat*UNIT + s*4096 + i*2048) for i in range(2)]
                        fr = dict(st=st, rd=rd); frags.append(fr)
                        for j in range(2):
                            xs = aX + 4*(2*(3*q+s) + j)
                            mf.append(dict(st=st, fr=fr, acc=acc_reg(st, (ft*2+mat)*2+j), B=f"a[{xs}:{xs+3}]", first=(q == 0 and s == 0), needX=q))
            if grp == 0:
                sm = stats_mf(q)
                start = len(mf) - 48
                blk = mf[start:]; del mf[start:]
                if q == 5:
                    for x in sm: x["st"] = st
                    mf.extend(sm); mf.extend(blk)
                else:
                    for n_, b in enumerate(blk):
                        mf.append(b)
                        if n_ % 4 == 3 and sm:
                            x = sm.pop(0); x["st"] = st; mf.append(x)
                    assert not sm
            if q == 5:
                for ft in range(4):
                    for mat in range(2):
                        idx = 2*(4*grp + ft) + mat; w0 = aCS + (idx & ~1)
                        for j in range(2):
                            bm = aBM + 8*j + 4*(idx & 1)
                            mf.append(dict(st=st, fr=None, acc=acc_reg(st, (ft*2+mat)*2+j), A=f"a[{w0}:{w0+3}]", B=f"a[{bm}:{bm+3}]", first=False))
        elif st < 27:
            q = st - 24
            for s in range(6):
                for ft in range(2):
                    for mat in range(2):
                        rd = [("H%d" % ft, base + mat*UNIT + s*2048 + i*1024) for i in range(2)]
                        fr = dict(st=st, rd=rd); frags.append(fr)
                        for j in range(2):
                            xs = aX + 4*(2*(6*q+s) + j)
                            mf.append(dict(st=st, fr=fr, acc=acc_reg(st, (ft*2+mat)*2+j), B=f"a[{xs}:{xs+3}]", first=(q == 0 and s == 0)))
            if q == 2:
                for ft in range(2):
                    for mat in range(2):
                        idx = 2*(16 + ft) + mat; w0 = aCS + (idx & ~1)
                        for j in range(2):
                            bm = aBM + 8*j + 4*(idx & 1)
                            mf.append(dict(st=st, fr=None, acc=acc_reg(st, (ft*2+mat)*2+j), A=f"a[{w0}:{w0+3}]", B=f"a[{bm}:{bm+3}]", first=False))
        else:
            sl = upos[it] // 3
            for t in range(9):
                for nt in range(4):
                    rd = [(vRB[4*sl+nt], t*4096 + i*2048) for i in range(2)]
                    fr = dict(st=st, rd=rd); frags.append(fr)
                    for j in range(2):
                        h = vH + 8*t + 4*j
                        mf.append(dict(st=st, fr=fr, acc=acc_reg(st, nt*2+j), B=f"v[{h}:{h+3}]", first=(t == 0), needH=t))
    for n, fr in enumerate(frags):
        fr["n"] = n; fr["reg"] = aR + 4*(n % RING)
    vHB = [vTMP[8], vTMP[9]]
    def lg_room():
        if len(lg.q) - lg.done >= 15:
            k("s_waitcnt lgkmcnt(11)")
            lg.done = len(lg.q) - 11
    def emit_reads(fr, part=None):
        for i, (sel, off) in enumerate(fr["rd"]):
            if part is not None and i != part: continue
            if isinstance(sel, str):
                reg = vHB[int(sel[1])]; base = upos[stage_item(fr["st"])]*UNIT; off = off - base
            else: reg = sel
            assert 0 <= off < 65536, off
            r0 = fr["reg"] + 2*i
            lg_room()
            if not opts.get("noread"): k(f"ds_read_b64_tr_b16 a[{r0}:{r0+1}], v{reg} offset:{off}")
            lg.issue(("f", fr["n"]))
    def x_read_ops(p):
        base = upos[("X", p)]*UNIT
        L = [("v", f"v_add_u32 v{vXB[0]}, {base}, v{vXL[0]}"), ("v", f"v_add_u32 v{vXB[1]}, {base}, v{vXL[1]}")]
        for s in range(3):
            for j in range(2):
                for i in range(2):
                    r = aX + 4*(2*(3*p+s) + j) + 2*i
                    L.append(("x", f"ds_read_b64_tr_b16 a[{r}:{r+1}], v{vXB[j]} offset:{s*8192 + i*4096}"))
        return L
    def finalize_ops():
        ops = []
        m, va, tb, z = vTA[0], vTA[1], vTA[2], vTA[3]
        A = lambda s: ops.append((1, s))
        A("s_nop 7")
        A(f"v_bfe_u32 v{vS1[0]}, v{vLANE}, 2, 2")
        A(f"v_lshrrev_b32 v{vS1[1]}, 4, v{vLANE}")
        A(f"v_cmp_eq_u32 s[56:57], v{vS1[0]}, v{vS1[1]}")
        A(f"v_and_b32 v{vS1[0]}, 3, v{vLANE}")
        A(f"v_cmp_eq_u32 s[58:59], 1, v{vS1[0]}")
        A(f"v_cmp_eq_u32 s[30:31], 2, v{vS1[0]}")
        A(f"v_cmp_eq_u32 vcc, 3, v{vS1[0]}")
        A("s_nop 1")
        for j in range(2):
            s1, s2 = vD1[j], vS2s[j]
            d = vD2[j]
            A(f"v_cndmask_b32 v{s2}, v{d}, v{d+1}, s[58:59]")
            A(f"v_cndmask_b32 v{s2}, v{s2}, v{d+2}, s[30:31]")
            A(f"v_cndmask_b32 v{s2}, v{s2}, v{d+3}, vcc")
            A(f"v_cndmask_b32 v{s2}, 0, v{s2}, s[56:57]")
        for j in range(2):
            s1, s2 = vD1[j], vS2s[j]
            for r in (s2,):
                A(f"v_mov_b32 v{z}, v{r}"); A("s_nop 1"); A(f"v_permlane16_swap_b32 v{r}, v{z}"); A("s_nop 1"); A(f"v_add_f32 v{r}, v{r}, v{z}")
                A(f"v_mov_b32 v{z}, v{r}"); A("s_nop 1"); A(f"v_permlane32_swap_b32 v{r}, v{z}"); A("s_nop 1"); A(f"v_add_f32 v{r}, v{r}, v{z}")
            A(f"v_mul_f32 v{m}, {f2u(1.0/576):#x}, v{s1}")
            A(f"v_mul_f32 v{va}, {f2u(1.0/576):#x}, v{s2}")
            A(f"v_fma_f32 v{va}, -v{m}, v{m}, v{va}")
            A(f"v_max_f32 v{va}, 0, v{va}")
            A(f"v_cvt_pk_bf16_f32 v{tb}, v{m}, v{va}")
            A(f"v_and_b32 v{va}, 0xffff0000, v{tb}")
            A(f"v_add_f32 v{va}, {f2u(1e-5):#x}, v{va}")
            A(f"v_cvt_pk_bf16_f32 v{va}, v{va}, v{va}")
            A(f"v_and_b32 v{va}, 0xffff0000, v{va}")
            A(f"v_sqrt_f32 v{va}, v{va}"); A("s_nop 0")
            A(f"v_cvt_pk_bf16_f32 v{va}, v{va}, v{va}")
            A(f"v_and_b32 v{va}, 0xffff0000, v{va}")
            A(f"v_mul_f32 v{vS2[j]}, v{va}, v{va}")
            A(f"v_rcp_f32 v{va}, v{va}"); A("s_nop 0")
            A(f"v_mul_f32 v{vC0[j]}, {f2u(K0C):#x}, v{va}")
            A(f"v_mul_f32 v{vC1[j]}, v{va}, v{va}")
            A(f"v_mul_f32 v{vC1[j]}, v{vC1[j]}, v{va}")
            A(f"v_mul_f32 v{vC1[j]}, {f2u(K1C):#x}, v{vC1[j]}")
            A(f"v_and_b32 v{tb}, 0xffff, v{tb}")
            A(f"v_xor_b32 v{tb}, 0x8000, v{tb}")
            A(f"v_lshl_or_b32 v{tb}, v{tb}, 16, v{tb}")
            A(f"v_cmp_gt_u32 vcc, 16, v{vLANE}"); A("s_nop 1")
            A(f"v_cndmask_b32 v{tb}, 0, v{tb}, vcc")
            A(f"v_mov_b32 v{m}, 0"); A("s_nop 0")
            b0 = aBM + 8*j
            for e, src in enumerate((tb, m, m, m, m, tb, m, m)):
                A(f"v_accvgpr_write_b32 a{b0+e}, v{src}")
        A(f"v_accvgpr_write_b32 a{aCS+36}, v{m}"); A(f"v_accvgpr_write_b32 a{aCS+37}, v{m}")
        A("s_nop 1")
        return ops
    def gelu_ops(buf, nft, Hbase):
        ops = []
        n = 0
        for ft in range(nft):
            for j in range(2):
                for p in range(2):
                    T = vT + 4*(n % 2); n += 1
                    a0 = buf + 4*((ft*2+0)*2 + j) + 2*p; a1 = a0 + 1
                    b0 = buf + 4*((ft*2+1)*2 + j) + 2*p; b1 = b0 + 1
                    x0, x1, y0, y1 = T, T+1, T+2, T+3
                    hd = Hbase + 8*(ft >> 1) + 4*j + 2*(ft & 1) + p
                    ops += [(1, f"v_mul_f32 v{x0}, v{a0}, v{a0}"), (1, f"v_mul_f32 v{x1}, v{a1}, v{a1}"),
                            (1, f"v_fma_f32 v{x0}, v{x0}, v{vC1[j]}, v{vC0[j]}"), (1, f"v_fma_f32 v{x1}, v{x1}, v{vC1[j]}, v{vC0[j]}"),
                            (1, f"v_mul_f32 v{x0}, v{a0}, v{x0}"), (1, f"v_mul_f32 v{x1}, v{a1}, v{x1}"),
                            (2, f"v_exp_f32 v{x0}, v{x0}"), (2, f"v_exp_f32 v{x1}, v{x1}"),
                            (1, f"v_mul_f32 v{y0}, v{a0}, v{b0}"), (1, f"v_mul_f32 v{y1}, v{a1}, v{b1}"),
                            (1, f"v_fma_f32 v{x0}, v{x0}, v{vS2[j]}, v{vS2[j]}"), (1, f"v_fma_f32 v{x1}, v{x1}, v{vS2[j]}, v{vS2[j]}"),
                            (2, f"v_rcp_f32 v{x0}, v{x0}"), (2, f"v_rcp_f32 v{x1}, v{x1}"),
                            (1, f"v_mul_f32 v{y0}, v{y0}, v{x0}"), (1, f"v_mul_f32 v{y1}, v{y1}, v{x1}"),
                            (1, f"v_cvt_pk_bf16_f32 v{hd}, v{y0}, v{y1}")]
        return ops
    def epi_ops(st):
        a = st - 27
        ops = []
        P = vACC[0]
        for ntp in range(2):
            for j in range(2):
                q = P + 4*(2*ntp + j)
                for h2 in range(2):
                    A = acc_reg(st, (2*ntp + h2)*2 + j)
                    ops.append((1, f"v_cvt_pk_bf16_f32 v{q+2*h2}, v{A}, v{A+1}"))
                    ops.append((1, f"v_cvt_pk_bf16_f32 v{q+2*h2+1}, v{A+2}, v{A+3}"))
                ops.append((1, "s_nop 1"))
                ops.append((1, f"v_permlane16_swap_b32 v{q}, v{q+2}"))
                ops.append((1, f"v_permlane16_swap_b32 v{q+1}, v{q+3}"))
                ops.append((1, f"s_add_u32 s{sT0}, s{sPART}, {(a*4 + ntp*2 + j)*1024}"))
                ops.append((1, ("store", f"buffer_store_dwordx4 v[{q}:{q+3}], v{vST}, s[{sWS}:{sWS+3}], s{sT0} offen")))
        return ops

    for it in items[2:4]:
        emit_dma_all(it)
    if opts.get("wpf", True):
        k(f"""
        s_mul_i32 s56, s{sMT}, 24
        s_mul_i32 s57, s46, 12
        s_add_u32 s56, s56, s57                      ; first line index in [0,384)
        v_add_u32 v{vTMP[11]}, s56, v{vLANE}
        v_add_u32 v{vTMP[11]}, 192, v{vTMP[11]}
        v_cmp_le_u32 vcc, 288, v{vTMP[11]}
        v_mul_u32_u24 v{vTMP[11]}, 9216, v{vTMP[11]}
        v_mov_b32 v{vTMP[12]}, s{sW1F}
        v_mov_b32 v{vTMP[10]}, s{sW1Fh}
        v_cndmask_b32 v{vTMP[12]}, v{vTMP[12]}, v{vTMP[10]}, vcc
        v_add_u32 v{vTMP[11]}, v{vTMP[11]}, v{vTMP[12]}
        s_mul_i32 s57, s46, {48*9216}
        v_subrev_u32 v{vTMP[11]}, s57, v{vTMP[11]}
        v_cmp_gt_u32 vcc, 12, v{vLANE}
        v_mov_b32 v{vTMP[12]}, 0x7fffffff
        s_nop 0
        v_cndmask_b32 v{vTMP[11]}, v{vTMP[12]}, v{vTMP[11]}, vcc
        buffer_load_dword v{vTMP[12]}, v{vTMP[11]}, s[{sWM}:{sWM+3}], 0 offen
        """)
        vm.issue("PF")
    if opts.get("selfpf", True):
        k(f"""
        s_getpc_b64 s[56:57]
        L{name}_pc0:
        s_sub_u32 s56, s56, L{name}_pc0-{name}
        s_subb_u32 s57, s57, 0
        s_lshl_b32 s58, s{sW}, 13
        v_lshlrev_b32 v{vTMP[11]}, 7, v{vLANE}
        v_add_u32 v{vTMP[11]}, s58, v{vTMP[11]}
        global_load_dword v{vTMP[12]}, v{vTMP[11]}, s[56:57]
        v_add_u32 v{vTMP[11]}, 32768, v{vTMP[11]}
        v_min_u32 v{vTMP[11]}, {opts.get("selfpf_bytes", 54*1024)}, v{vTMP[11]}
        global_load_dword v{vTMP[12]}, v{vTMP[11]}, s[56:57]
        """)
        vm.issue("PF"); vm.issue("PF")
    n = vm.need(("W", 0)); k(f"s_waitcnt vmcnt({n})")
    k("s_barrier")
    stamp()
    for kind, l in x_read_ops(0): k(l)
    k("s_waitcnt lgkmcnt(0)")
    freed = {("X", 0): False}
    next_item = 4
    done_items = set()
    def can_issue(idx):
        it = items[idx]; lo, hi = uabs[it]
        for other in items[:idx]:
            a, b = uabs[other]
            if a < hi - NUNIT and b > lo - NUNIT and other not in done_items: return False
        return True
    stage_first = {}
    for idx, d in enumerate(mf): stage_first.setdefault(d["st"], idx)
    stage_len = {st: sum(1 for d in mf if d["st"] == st) for st in range(NS)}
    for f in range(LA): emit_reads(frags[f])
    fillers = []; rate = 0.0; credit = 0.0
    xq = []; dmaq = []
    seen_frag = set()
    for idx, d in enumerate(mf):
        st = d["st"]; pos = idx - stage_first[st]
        if pos == 0:
            if opts.get("stamps") and (st % 3 == 0 or st < 7 or st >= 24): stamp()
            need = []
            if st + 1 < NS: need.append(stage_item(st + 1))
            if st + 1 < 6: need.append(("X", st + 1))
            ns = [vm.need(x) for x in need if x in vm.q]
            assert all(x in vm.q for x in need), (st, need)
            assert not any(it in need for it, _ in dmaq), (st, need)
            ns = [x for x in ns if x is not None]
            if st >= 1 or True:
                if ns: k(f"s_waitcnt vmcnt({min(ns)})")
                if st >= 1 and st <= 5:
                    nn = lg.need(("x", st))
                    if nn is not None: k(f"s_waitcnt lgkmcnt({nn})")
                k("s_barrier")
            if st >= 1: done_items.add(stage_item(st - 1))
            if st <= 5: done_items.add(("X", st))
            while next_item < len(items) and can_issue(next_item):
                for op in dma_ops(items[next_item]): dmaq.append((items[next_item], op))
                next_item += 1
            if st + 1 < 6: xq = x_read_ops(st + 1)
            if st < 6:
                if st >= 1 and False: pass
                assert not fillers, st
                fillers = []
                if st == 1: fillers = cs_ops()
                if st == 5: fillers = finalize_ops()
                span = stage_len[st] - (36 if st == 5 else 8)
                rate = sum(c for c, _ in fillers) / span; credit = -14*rate if st == 5 else 0
            elif st < 24 and st % 6 == 0:
                assert not fillers, st
                g = st // 6
                fillers = gelu_ops(vACC[(g-1) % 2], 4, vH + 16*(g-1))
                if g == 1 and opts.get("wdpf", True):
                    pf = [(1, f"s_mul_i32 s44, s{sMT}, 162"), (1, f"s_lshl_b32 s45, s{sW}, 6"), (1, f"s_add_u32 s44, s44, s45"),
                          (1, f"v_add_u32 v{vTMP[11]}, s45, v{vLANE}"), (1, f"v_cmp_gt_u32 vcc, 162, v{vTMP[11]}"),
                          (1, f"v_add_u32 v{vTMP[11]}, s44, v{vLANE}"), (1, f"v_lshlrev_b32 v{vTMP[11]}, 7, v{vTMP[11]}"),
                          (1, f"v_mov_b32 v{vTMP[12]}, 0x7fffffff"), (1, f"v_cndmask_b32 v{vTMP[11]}, v{vTMP[12]}, v{vTMP[11]}, vcc"),
                          (1, f"s_mul_i32 s44, s{sJ}, {288*1152}"),
                          (1, ("load", f"buffer_load_dword v{vTMP[12]}, v{vTMP[11]}, s[{sWD}:{sWD+3}], s44 offen"))]
                    fillers = pf + fillers
                span = sum(stage_len[s] for s in range(st, st + 6)) - 12
                rate = sum(c for c, _ in fillers) / span; credit = -6*rate
            elif st == 24:
                assert not fillers
                fillers = gelu_ops(vACC[1], 4, vH + 48)
                span = sum(stage_len[s] for s in range(24, 27)) - 12
                rate = sum(c for c, _ in fillers) / span; credit = -6*rate
            elif st == 27:
                assert not fillers
                fillers = gelu_ops(vACC[0], 2, vH + 64)
                span = 56; rate = sum(c for c, _ in fillers) / span; credit = -6*rate
            elif st > 27:
                assert not fillers, (st, len(fillers))
                fillers = epi_ops(st - 1)
                span = stage_len[st] - 16
                rate = sum(c for c, _ in fillers) / span; credit = -6*rate
            if st == 24:
                for l in [f"v_add_u32 v{vHB[0]}, PLACE, v{vLH}"]: pass
        def flush_fillers():
            nonlocal fillers
            for c, l in fillers:
                if isinstance(l, tuple): k(l[1]); vm.issue("ST" if l[0] == "store" else "CS")
                else: k(l)
            fillers = []
        if st == 5 and d["fr"] is None and pos >= 12 and fillers: flush_fillers()
        if d.get("needH") == 8 and st == 27 and fillers:
            flush_fillers(); k("s_nop 1")
        fr = d["fr"]
        if fr is not None and fr["n"] not in seen_frag:
            seen_frag.add(fr["n"])
            f = fr["n"]
            if f % 2 == 0:
                tgt = min(f + 1, len(frags) - 1)
                nn = lg.need(("f", tgt)) if ("f", tgt) in lg.q else lg.need(("f", f))
            else: nn = lg.need(("f", f))
            if nn is not None: k(f"s_waitcnt lgkmcnt({nn})")
            firstuse = True
        else: firstuse = False
        A = d["A"] if fr is None else f"a[{fr['reg']}:{fr['reg']+3}]"
        C = "0" if d["first"] else f"v[{d['acc']}:{d['acc']+3}]"
        k(f"v_mfma_f32_16x16x32_bf16 v[{d['acc']}:{d['acc']+3}], {A}, {d['B']}, {C}")
        if st == 23 and pos == 4 or (st in (24, 25) and pos == 4):
            nb = upos[stage_item(st + 1)]*UNIT
            pass
        if fr is not None:
            nf = fr["n"] + LA
            if nf < len(frags):
                nfr = frags[nf]
                if firstuse:
                    if nfr["st"] != frags[nf-1]["st"]:
                        ns_ = nfr["st"]
                        if 24 <= ns_ < 27:
                            nb = upos[stage_item(ns_)]*UNIT
                            k(f"v_add_u32 v{vHB[0]}, {nb}, v{vLH}"); k(f"v_add_u32 v{vHB[1]}, {nb}, v{vLH1}")
                        if ns_ == 27:
                            for l in set_bases_p2(): k(l)
                    emit_reads(nfr, 0)
                else:
                    emit_reads(nfr, 1)
        if xq and pos >= 2:
            kind, l = xq.pop(0)
            if kind == "x": lg_room()
            k(l)
            if kind == "x": lg.issue(("x", st + 1))
            elif xq and xq[0][0] == "v":
                kind, l = xq.pop(0); k(l)
        if dmaq and pos % 3 == 1:
            while dmaq:
                it, (kind, x) = dmaq.pop(0)
                if kind == "s":
                    for l in x: k(l)
                    k("s_nop 0")
                else:
                    if not opts.get("nodma"): k(x)
                    vm.issue(it); break
        credit += rate
        while fillers and credit >= fillers[0][0]:
            c, l = fillers.pop(0); credit -= c
            if isinstance(l, tuple):
                if not (opts.get("nostore") and l[0] == "store"): k(l[1])
                vm.issue("ST" if l[0] == "store" else "CS")
            elif not opts.get("nofill"): k(l)
    assert not dmaq and next_item == len(items), (len(dmaq), next_item)
    flush_fillers()
    k("s_nop 7")
    for c, l in epi_ops(NS - 1):
        if isinstance(l, tuple): k(l[1])
        else: k(l)
    k("s_waitcnt vmcnt(0)")
    stamp()
    if opts.get("stamps"):
        k("v_mov_b32 v1, 0")
        for i in range(nst[0]): k(f"v_writelane_b32 v1, s{62+i}, {i}")
        k(f"v_lshlrev_b32 v2, 2, v{vLANE}")
        k(f"s_lshl_b32 s60, s2, 2\ns_add_u32 s60, s60, s{sW}\ns_lshl_b32 s60, s60, 8\ns_add_u32 s60, s60, {WS_DBG}")
        k(f"buffer_store_dword v1, v2, s[{sWS}:{sWS+3}], s60 offen")
        k("s_waitcnt vmcnt(0)")
    k.label(f"L{name}_end")
    k("s_endpgm")
    return k

if __name__ == "__main__":
    from asmlib import build_file
    V = {"k3b": {}, "k3b_rt": {"stamps": 1, "rt": 1}, "k3b_cy": {"stamps": 1}, "k3b_rt_norot": {"stamps": 1, "rt": 1, "rot": False, "wpf": False},
         "k3b_rt_rot": {"stamps": 1, "rt": 1, "rot": True, "wpf": False}}
    for nm, o in (("nostore", {"nostore":1}), ("nostore_nodma", {"nostore":1, "nodma":1}), ("sc1", {"sc1":1}), ("nodma", {"nodma":1}), ("nofill", {"nofill":1}), ("noread", {"noread":1}), ("bare", {"nodma":1,"nofill":1,"noread":1}), ("onlyread", {"nodma":1,"nofill":1})):
        V["k3b_rt_"+nm] = dict(o, stamps=1, rt=1); V["k3b_cy_"+nm] = dict(o, stamps=1)
    for nm, o in V.items():
        k = gen_k3b(opts=o)
        if o.get("sc1"): k.lines = [l + ' sc1' if 'buffer_store_dwordx4' in l else l for l in k.lines]
        build_file(f"mb/{nm}.s", [(k, 512, 102, 256)], [("k3_kernel", 256, 256, LDS_BYTES)])
        print(nm, len(k.lines))
```

```python
import sys
from asmlib import build_file
from gen_ka import gen_ka, NP, NV, NB, KA_LDS
from gen_k3b import gen_k3b, LDS_BYTES
from gen_k4 import gen_k4
from instr import instrument
HEADER = """; sequential_preLN -> S4D conv -> preLN -> GEGLU FFN, gfx950.  Generated by a hand-written generator.
"""
K4LDS = 98304
def build(fn, instr=False, k3opts=None, kaopts=None):
    ka = gen_ka(opts=kaopts); k3 = gen_k3b(opts=k3opts); k4 = gen_k4(v2=True, nine=True)
    k3.lines = [l + ' sc1' if 'buffer_store_dwordx4' in l else l for l in k3.lines]
    sg = 80
    if instr:
        for i, k in enumerate((ka, k3, k4)): instrument(k, i)
        sg = 102
    ks = [(ka, 128, sg, 128), (k3, 512, 102, 256), (k4, 104, 102 if instr else 32, 104)]
    launches = [("ka_kernel", NP+NV+NB, 256, KA_LDS), ("k3_kernel", 256, 256, LDS_BYTES), ("k4_kernel", 256, 576, K4LDS)]
    build_file(fn, ks, launches, header=HEADER)
if __name__ == "__main__":
    KO = {"bwait": True, "codepf": 7}
    build("mb/all2.s", kaopts=KO); build("mb/all2_i.s", instr=True, kaopts=KO)
    if len(sys.argv) > 1: build("sequential_preLN__ssm_conv_s4d__geglu_ffn__prompt.s", kaopts=KO)
```

```python
from asmlib import K
import math, struct
from gen_k3 import (WS_HT, WS_CS, WS_PART, WS_DBG, WS_END, WS_SC, K0C, K1C, f2u, VmTracker)
WS_CNT = WS_SC
PSZ = 2048*576*2

UNIT = 12288
NUNIT = 12
LDS_BYTES = UNIT*NUNIT

def gen_k3b(name="k3_kernel", LA=6, RING=8, opts=None):
    opts = opts or {}
    LA = opts.get("LA", LA); RING = opts.get("RING", RING)
    k = K(name)
    vm = VmTracker(63); lg = VmTracker(15)
    vLANE = 0
    vDA = [1, 2, 3]
    vDH = [4, 5, 6]
    vDD = [7, 8, 9]
    vC0, vC1, vS2 = [10, 11], [12, 13], [14, 15]
    vST = 16
    vRB = list(range(17, 33))
    vLH = 33
    vLH1 = 34
    vTMP = list(range(35, 48))
    vACC = [48, 112]
    vH = 176
    vT = 248
    vX = list(range(112, 118))
    vXL = [118, 119]
    vXB = [120, 121]
    vS1 = [122, 123]; vS2s = [124, 125]; vONE = 126; vTA = [127, 128, 129, 130]
    aX = 0; aR = 144; aCS = aR + 4*RING; aBM = aCS + 38
    aONE = aBM + 16
    assert aONE + 4 <= 256 and aCS % 2 == 0 and aBM % 2 == 0
    sWM = 8; sWD = 12; sWS = 16
    sW, sJ, sMT = 20, 21, 22
    sW1F, sW1H, sM1 = 23, 24, 25
    sD, sMD = 26, 27
    sDw = 28
    sSO = 32; sPART = 33; sXO, sMX = 34, 35
    sT0, sT1, sT2, sT3 = 36, 37, 38, 39
    nst = [0]
    def stamp():
        if not opts.get("stamps"): return
        k("s_memrealtime s[60:61]" if opts.get("rt") else "s_memtime s[60:61]")
        k("s_waitcnt lgkmcnt(0)")
        k(f"s_mov_b32 s{62 + nst[0]}, s60")
        lg.done = len(lg.q)
        nst[0] += 1
    k(f"""
    s_cmp_ge_u32 s2, 256
    s_cbranch_scc1 L{name}_end
    s_load_dwordx4 s[4:7], s[0:1], 64
    s_load_dwordx2 s[40:41], s[0:1], 80        ; w_down
    s_load_dwordx2 s[42:43], s[0:1], 104       ; ws
    s_load_dwordx2 s[88:89], s[0:1], 88        ; out
    v_lshrrev_b32 v{vTMP[0]}, 6, v0
    v_and_b32 v{vLANE}, 63, v0
    s_nop 0
    v_readfirstlane_b32 s{sW}, v{vTMP[0]}
    """)
    MAP4 = opts.get("map4", False)
    sROT = 95
    if not MAP4:
        k(f"""
        s_and_b32 s{sT0}, s2, 7
        s_lshr_b32 s{sT1}, s2, 3
        s_and_b32 s{sT2}, s{sT1}, 1                 ; parity
        s_lshl_b32 s{sJ}, s{sT0}, 1
        s_add_u32 s{sJ}, s{sJ}, s{sT2}              ; split j
        s_lshr_b32 s{sMT}, s{sT1}, 1                ; m tile
        s_mov_b32 s{sROT}, 0
        """)
    else:
        k(f"""
        s_and_b32 s{sT0}, s2, 7
        s_lshr_b32 s{sT1}, s2, 3
        s_and_b32 s{sT2}, s{sT1}, 3                 ; js
        s_lshr_b32 s{sJ}, s{sT0}, 1
        s_lshl_b32 s{sJ}, s{sJ}, 2
        s_add_u32 s{sJ}, s{sJ}, s{sT2}
        s_and_b32 s{sMT}, s{sT0}, 1
        s_lshl_b32 s{sMT}, s{sMT}, 3
        s_lshr_b32 s{sT1}, s{sT1}, 2
        s_add_u32 s{sMT}, s{sMT}, s{sT1}
        s_lshl_b32 s{sT2}, s{sT2}, 2
        s_lshr_b32 s{sROT}, {opts.get("rotpat", 0x5320)}, s{sT2}
        s_and_b32 s{sROT}, s{sROT}, 15              ; rotation
        """)
    t0, t1, t2, t3, t4, t5, t6 = vTMP[0:7]
    k(f"""
    v_lshrrev_b32 v{t0}, 4, v{vLANE}            ; row 0..3
    v_bfe_u32 v{t1}, v{vLANE}, 1, 3             ; unit32
    v_and_b32 v{t2}, 1, v{vLANE}
    v_lshlrev_b32 v{t2}, 4, v{t2}               ; (sigma16&1)*16
    v_lshlrev_b32 v{t3}, 12, v{t0}              ; row*4096
    v_add_u32 v{t3}, v{t3}, v{t2}
    v_xor_b32 v{t4}, v{t1}, v{t0}               ; par 0
    v_xor_b32 v{t5}, 4, v{t4}                   ; par 1
    v_lshl_add_u32 v{t4}, v{t4}, 5, v{t3}
    v_lshl_add_u32 v{t5}, v{t5}, 5, v{t3}
    """)
    for tp in range(6):
        src = t4 if tp % 2 == 0 else t5
        k(f"v_add_u32 v{vX[tp]}, {(tp % 3)*(4*4096-1024)}, v{src}")
    k(f"""
    v_lshrrev_b32 v{t0}, 3, v{vLANE}
    v_bfe_u32 v{t1}, v{vLANE}, 1, 2
    v_bfe_u32 v{t2}, v{vLANE}, 4, 2
    v_xor_b32 v{t1}, v{t1}, v{t2}
    v_and_b32 v{t2}, 1, v{vLANE}
    v_lshlrev_b32 v{t2}, 4, v{t2}
    v_lshl_add_u32 v{t1}, v{t1}, 5, v{t2}
    v_mul_u32_u24 v{t2}, 9216, v{t0}
    v_add_u32 v{vDA[0]}, v{t2}, v{t1}
    v_mul_u32_u24 v{t2}, 1152, v{t0}
    v_add_u32 v{vDD[0]}, v{t2}, v{t1}
    v_lshrrev_b32 v{t0}, 2, v{vLANE}
    v_bfe_u32 v{t1}, v{vLANE}, 1, 1
    v_bfe_u32 v{t2}, v{vLANE}, 4, 1
    v_xor_b32 v{t1}, v{t1}, v{t2}
    v_and_b32 v{t2}, 1, v{vLANE}
    v_lshlrev_b32 v{t2}, 4, v{t2}
    v_lshl_add_u32 v{t1}, v{t1}, 5, v{t2}
    v_mul_u32_u24 v{t2}, 9216, v{t0}
    v_add_u32 v{vDH[0]}, v{t2}, v{t1}
    """)
    for i in range(1, 3):
        k(f"v_add_u32 v{vDA[i]}, {i*(8*9216-1024)}, v{vDA[0]}")
        k(f"v_add_u32 v{vDD[i]}, {i*(8*1152-1024)}, v{vDD[0]}")
        k(f"v_add_u32 v{vDH[i]}, {i*(16*9216-1024)}, v{vDH[0]}")
    k("s_waitcnt lgkmcnt(0)")
    k(f"""
    s_cmp_ge_u32 s{sW}, 2
    s_cselect_b32 s{sWM}, s6, s4
    s_cselect_b32 s{sWM+1}, s7, s5
    s_mov_b32 s{sWM+2}, {576*4608*2}
    s_mov_b32 s{sWM+3}, 0x20000
    s_mov_b32 s{sWD}, s40
    s_mov_b32 s{sWD+1}, s41
    s_mov_b32 s{sWD+2}, {4608*576*2}
    s_mov_b32 s{sWD+3}, 0x20000
    s_mov_b32 s{sWS}, s42
    s_mov_b32 s{sWS+1}, s43
    s_mov_b32 s{sWS+2}, {WS_END}
    s_mov_b32 s{sWS+3}, 0x20000
    s_mov_b32 s90, {PSZ}
    s_mov_b32 s91, 0x20000
    """)
    stamp()
    k(f"""
    s_mul_i32 s{sXO}, s{sW}, {24*4096}
    s_lshl_b32 s{sT0}, s{sMT}, 8
    s_add_u32 s{sXO}, s{sXO}, s{sT0}
    s_add_u32 s{sXO}, s{sXO}, {WS_HT}           ; X: + (96p + 24w + 12u)*4096
    s_mul_i32 s{sMX}, s{sW}, {6*1024}
    s_and_b32 s{sT2}, s{sJ}, 1                  ; parity
    s_mul_i32 s{sT0}, s{sJ}, 288                ; F0
    s_lshl_b32 s{sT1}, s{sT2}, 5
    s_add_u32 s{sT1}, s{sT0}, s{sT1}            ; FG0
    s_xor_b32 s{sT3}, s{sT2}, 1
    s_lshl_b32 s{sT3}, s{sT3}, 8
    s_add_u32 s{sT3}, s{sT0}, s{sT3}            ; FH
    s_and_b32 s46, s{sW}, 1
    s_lshr_b32 s47, s{sW}, 1
    ; phase 1: waves 0,1 -> gate unit, waves 2,3 -> up unit. each wave 6 instr: rows 48*(w&1) + 8*t (full) ; rows 96*(w&1)+16t (half)
    s_mul_i32 s{sW1F}, s46, {48*9216}
    s_lshl_b32 s48, s{sT1}, 1
    s_add_u32 s{sW1F}, s{sW1F}, s48
    s_mul_i32 s{sW1H}, s46, {96*9216}
    s_lshl_b32 s48, s{sT3}, 1
    s_add_u32 s{sW1H}, s{sW1H}, s48
    s_mul_i32 s{sM1}, s47, {UNIT}
    s_mul_i32 s48, s46, 6144
    s_add_u32 s{sM1}, s{sM1}, s48
    """)
    sWq = list(range(76, 82)); sXq = list(range(82, 88)); sW1Hq = [92, 93, 94]
    for q in range(6):
        k(f"""
        s_add_u32 s48, s{sROT}, {q}
        s_cmp_ge_u32 s48, 6
        s_cselect_b32 s49, 6, 0
        s_sub_u32 s48, s48, s49
        s_mul_i32 s49, s48, {96*9216}
        s_add_u32 s{sWq[q]}, s{sW1F}, s49
        s_mul_i32 s49, s48, {96*4096}
        s_add_u32 s{sXq[q]}, s{sXO}, s49
        """)
    for q in range(3):
        k(f"""
        s_add_u32 s48, s46, {2*q}
        s_add_u32 s48, s48, s{sROT}
        s_cmp_ge_u32 s48, 6
        s_cselect_b32 s49, 6, 0
        s_sub_u32 s48, s48, s49
        s_mul_i32 s48, s48, {96*9216}
        s_lshl_b32 s49, s{sT3}, 1
        s_add_u32 s{sW1Hq[q]}, s48, s49
        """)
    sDb = [50, 51, 52, 53, 54]
    for n, (rho_add, tcomp) in enumerate(((0, 0), (96, 0), (192, 0), (200, 1), (208, 2))):
        k(f"""
        s_mul_i32 s48, s{sW}, 24
        s_add_u32 s48, s48, {rho_add}
        s_lshl_b32 s49, s{sT2}, 5
        s_add_u32 s48, s48, s49
        s_cmp_ge_u32 s48, 288
        s_cselect_b32 s49, 288, 0
        s_sub_u32 s48, s48, s49
        s_add_u32 s48, s48, s{sT0}
        s_mul_i32 s{sDb[n]}, s48, 1152
        """)
        if tcomp: k(f"s_sub_u32 s{sDb[n]}, s{sDb[n]}, {tcomp*8*1152}")
    k(f"s_mul_i32 s{sMD}, s{sW}, 3072")
    k(f"""
    s_lshl_b32 s48, s{sJ}, 4
    s_add_u32 s48, s48, s{sMT}
    s_lshl_b32 s48, s48, 2
    s_add_u32 s48, s48, s{sW}
    s_mul_i32 s{sPART}, s48, {36*1024}
    s_add_u32 s{sPART}, s{sPART}, {WS_PART}
    v_lshlrev_b32 v{vST}, 4, v{vLANE}
    s_lshl_b32 s44, s{sT1}, 2
    s_add_u32 s44, s44, {WS_CS}
    s_lshl_b32 s45, s{sT3}, 2
    s_add_u32 s45, s45, {WS_CS}
    """)
    def dma(voff, srd, i):
        off = f" offset:{i*1024}" if i else ""
        return f"buffer_load_dwordx4 v{voff}, s[{srd}:{srd+3}], s{sSO} offen{off} lds"
    items = []
    for p in range(6): items += [("X", p), ("W", p)]
    items += [("W", p) for p in range(6, 27)]
    items += [("D", p) for p in range(9)]
    upos = {}; u = 0
    for it in items:
        n = 3 if it[0] == "D" else 2
        upos[it] = u % NUNIT
        assert (u % NUNIT) + n <= NUNIT
        u += n
    uabs = {}; u = 0
    for it in items:
        n = 3 if it[0] == "D" else 2
        uabs[it] = (u, u + n); u += n
    def dma_ops(it):
        ty, p = it; base = upos[it]*UNIT
        ops = []
        if ty == "X":
            for g in range(2):
                ops.append(("s", [f"s_add_u32 s{sSO}, s{sXq[p]}, {(12*g)*4096}", f"s_add_u32 m0, s{sMX}, {base + g*3072}"]))
                for t in range(3): ops.append(("d", dma(vX[3*g+t], sWS, t)))
        elif ty == "W" and p < 24:
            grp, q = p // 6, p % 6
            for g in range(2):
                ops.append(("s", [f"s_add_u32 s{sSO}, s{sWq[q]}, {(24*g)*9216 + grp*128}", f"s_add_u32 m0, s{sM1}, {base + g*3072}"]))
                for t in range(3): ops.append(("d", dma(vDA[t], sWM, t)))
        elif ty == "W":
            q = p - 24
            for g in range(2):
                ops.append(("s", [f"s_add_u32 s{sSO}, s{sW1Hq[q]}, {(48*g)*9216}", f"s_add_u32 m0, s{sM1}, {base + g*3072}"]))
                for t in range(3): ops.append(("d", dma(vDH[t], sWM, t)))
        else:
            for u3 in range(2):
                ops.append(("s", [f"s_add_u32 s{sSO}, s{sDb[u3]}, {p*128}", f"s_add_u32 m0, s{sMD}, {base + u3*UNIT}"]))
                for t in range(3): ops.append(("d", dma(vDD[t], sWD, t)))
            for t in range(3):
                l = [f"s_add_u32 s{sSO}, s{sDb[2+t]}, {p*128}"]
                if t == 0: l.append(f"s_add_u32 m0, s{sMD}, {base + 2*UNIT}")
                ops.append(("s", l))
                ops.append(("d", dma(vDD[t], sWD, t)))
        return ops
    def emit_dma_all(it):
        for kind, x in dma_ops(it):
            if kind == "s":
                for l in x: k(l)
                k("s_nop 0")
            else:
                k(x); vm.issue(it)
    issued = []
    for it in items[:2]:
        emit_dma_all(it); issued.append(it)
    def cs_ops():
        L = [(1, f"v_and_b32 v{vTMP[10]}, 15, v{vLANE}"), (1, f"v_mul_u32_u24 v{vTMP[10]}, 144, v{vTMP[10]}"),
             (1, f"s_mul_i32 s44, s{sJ}, {16*144}"), (1, f"s_add_u32 s44, s44, {WS_CS}")]
        for n in range(9):
            off = f" offset:{16*n}" if n else ""
            L.append((1, ("load", f"buffer_load_dwordx4 a[{aCS+4*n}:{aCS+4*n+3}], v{vTMP[10]}, s[{sWS}:{sWS+3}], s44 offen{off}")))
        return L
    k(f"""
    v_bfe_u32 v{t0}, v{vLANE}, 2, 2             ; r'
    v_lshrrev_b32 v{t1}, 4, v{vLANE}            ; q
    v_lshl_add_u32 v{t2}, v{t1}, 2, v{t0}       ; rr = 4q + r'
    v_and_b32 v{t3}, 3, v{vLANE}
    v_lshlrev_b32 v{t3}, 3, v{t3}               ; 8c
    v_bfe_u32 v{t4}, v{t2}, 1, 2                ; g = (rr>>1)&3
    v_lshlrev_b32 v{t5}, 7, v{t2}
    v_add_u32 v{t5}, v{t5}, v{t3}
    v_lshl_add_u32 v{t5}, v{t4}, 5, v{t5}
    """)
    vLC0 = vTMP[7]
    k(f"v_mov_b32 v{vLC0}, v{t5}")
    def set_bases_p1():
        L = []
        for wdw in range(3):
            for ft in range(4):
                L.append(f"v_xor_b32 v{vRB[4*wdw+ft]}, {ft*32}, v{vLC0}")
                if wdw: L.append(f"v_add_u32 v{vRB[4*wdw+ft]}, {wdw*49152}, v{vRB[4*wdw+ft]}")
        return L
    def set_bases_p2():
        L = []
        for sl in range(4):
            for nt in range(4):
                L.append(f"v_xor_b32 v{vRB[4*sl+nt]}, {nt*32}, v{vLC0}")
                if sl: L.append(f"v_add_u32 v{vRB[4*sl+nt]}, {sl*36864}, v{vRB[4*sl+nt]}")
        return L
    for l in set_bases_p1(): k(l)
    k(f"""
    ; half lane const: rr*64 + ((q&1)*32) + 8c
    v_lshlrev_b32 v{t5}, 6, v{t2}
    v_add_u32 v{t5}, v{t5}, v{t3}
    v_and_b32 v{t6}, 1, v{t1}
    v_lshl_add_u32 v{vLH}, v{t6}, 5, v{t5}
    v_xor_b32 v{vLH1}, 32, v{vLH}
    ; X lane consts: rr*256 + (((2w+j) ^ (rr&7))*32) + 8c
    v_lshlrev_b32 v{t5}, 8, v{t2}
    v_add_u32 v{t5}, v{t5}, v{t3}
    v_and_b32 v{t6}, 7, v{t2}
    s_lshl_b32 s48, s{sW}, 1
    v_xor_b32 v{t6}, s48, v{t6}
    v_lshl_add_u32 v{vXL[0]}, v{t6}, 5, v{t5}
    v_xor_b32 v{vXL[1]}, 32, v{vXL[0]}
    v_mov_b32 v{vONE}, 0x3f803f80
    """)
    for e in range(4): k(f"v_accvgpr_write_b32 a{aONE+e}, v{vONE}")
    vD1 = [132, 136]; vD2 = [140, 144]
    def stats_mf(p):
        L = []
        for s_ in range(3):
            for j in range(2):
                xs = aX + 4*(2*(3*p+s_) + j)
                first = (p == 0 and s_ == 0)
                L.append(dict(fr=None, acc=vD1[j], A=f"a[{aONE}:{aONE+3}]", B=f"a[{xs}:{xs+3}]", first=first))
                L.append(dict(fr=None, acc=vD2[j], A=f"a[{xs}:{xs+3}]", B=f"a[{xs}:{xs+3}]", first=first))
        return L
    NS1 = 27; NS = 36
    def stage_item(st): return ("W", st) if st < NS1 else ("D", st - NS1)
    def acc_reg(st, tile):
        if st < 24: return vACC[(st // 6) % 2] + 4*tile
        if st < 27: return vACC[0] + 4*tile
        return vACC[1] + 32*((st - 27) % 2) + 4*tile
    mf = []; frags = []
    for st in range(NS):
        it = stage_item(st); base = upos[it]*UNIT
        if st < 24:
            grp, q = st // 6, st % 6
            wdw, rel = base // 49152, base % 49152
            for s in range(3):
                for ft in range(4):
                    for mat in range(2):
                        rd = [(vRB[4*wdw+ft], rel + mat*UNIT + s*4096 + i*2048) for i in range(2)]
                        fr = dict(st=st, rd=rd); frags.append(fr)
                        for j in range(2):
                            xs = aX + 4*(2*(3*q+s) + j)
                            mf.append(dict(st=st, fr=fr, acc=acc_reg(st, (ft*2+mat)*2+j), B=f"a[{xs}:{xs+3}]", first=(q == 0 and s == 0), needX=q))
            if grp == 0:
                sm = stats_mf(q)
                start = len(mf) - 48
                blk = mf[start:]; del mf[start:]
                if q == 5:
                    for x in sm: x["st"] = st
                    mf.extend(sm); mf.extend(blk)
                else:
                    for n_, b in enumerate(blk):
                        mf.append(b)
                        if n_ % 4 == 3 and sm:
                            x = sm.pop(0); x["st"] = st; mf.append(x)
                    assert not sm
            if q == 5:
                for ft in range(4):
                    for mat in range(2):
                        idx = 2*(4*grp + ft) + mat; w0 = aCS + (idx & ~1)
                        for j in range(2):
                            bm = aBM + 8*j + 4*(idx & 1)
                            mf.append(dict(st=st, fr=None, acc=acc_reg(st, (ft*2+mat)*2+j), A=f"a[{w0}:{w0+3}]", B=f"a[{bm}:{bm+3}]", first=False))
        elif st < 27:
            q = st - 24
            for s in range(6):
                for ft in range(2):
                    for mat in range(2):
                        rd = [("H%d" % ft, base + mat*UNIT + s*2048 + i*1024) for i in range(2)]
                        fr = dict(st=st, rd=rd); frags.append(fr)
                        for j in range(2):
                            xs = aX + 4*(2*(6*q+s) + j)
                            mf.append(dict(st=st, fr=fr, acc=acc_reg(st, (ft*2+mat)*2+j), B=f"a[{xs}:{xs+3}]", first=(q == 0 and s == 0)))
            if q == 2:
                for ft in range(2):
                    for mat in range(2):
                        idx = 2*(16 + ft) + mat; w0 = aCS + (idx & ~1)
                        for j in range(2):
                            bm = aBM + 8*j + 4*(idx & 1)
                            mf.append(dict(st=st, fr=None, acc=acc_reg(st, (ft*2+mat)*2+j), A=f"a[{w0}:{w0+3}]", B=f"a[{bm}:{bm+3}]", first=False))
        else:
            sl = upos[it] // 3
            for t in range(9):
                for nt in range(4):
                    rd = [(vRB[4*sl+nt], t*4096 + i*2048) for i in range(2)]
                    fr = dict(st=st, rd=rd); frags.append(fr)
                    for j in range(2):
                        h = vH + 8*t + 4*j
                        mf.append(dict(st=st, fr=fr, acc=acc_reg(st, nt*2+j), B=f"v[{h}:{h+3}]", first=(t == 0), needH=t))
    for n, fr in enumerate(frags):
        fr["n"] = n; fr["reg"] = aR + 4*(n % RING)
    vHB = [vTMP[8], vTMP[9]]
    def lg_room():
        if len(lg.q) - lg.done >= 15:
            k("s_waitcnt lgkmcnt(11)")
            lg.done = len(lg.q) - 11
    def emit_reads(fr, part=None):
        for i, (sel, off) in enumerate(fr["rd"]):
            if part is not None and i != part: continue
            if isinstance(sel, str):
                reg = vHB[int(sel[1])]; base = upos[stage_item(fr["st"])]*UNIT; off = off - base
            else: reg = sel
            assert 0 <= off < 65536, off
            r0 = fr["reg"] + 2*i
            lg_room()
            if not opts.get("noread"): k(f"ds_read_b64_tr_b16 a[{r0}:{r0+1}], v{reg} offset:{off}")
            lg.issue(("f", fr["n"]))
    def x_read_ops(p):
        base = upos[("X", p)]*UNIT
        L = [("v", f"v_add_u32 v{vXB[0]}, {base}, v{vXL[0]}"), ("v", f"v_add_u32 v{vXB[1]}, {base}, v{vXL[1]}")]
        for s in range(3):
            for j in range(2):
                for i in range(2):
                    r = aX + 4*(2*(3*p+s) + j) + 2*i
                    L.append(("x", f"ds_read_b64_tr_b16 a[{r}:{r+1}], v{vXB[j]} offset:{s*8192 + i*4096}"))
        return L
    def finalize_ops():
        ops = []
        m, va, tb, z = vTA[0], vTA[1], vTA[2], vTA[3]
        A = lambda s: ops.append((1, s))
        A("s_nop 7")
        A(f"v_bfe_u32 v{vS1[0]}, v{vLANE}, 2, 2")
        A(f"v_lshrrev_b32 v{vS1[1]}, 4, v{vLANE}")
        A(f"v_cmp_eq_u32 s[56:57], v{vS1[0]}, v{vS1[1]}")
        A(f"v_and_b32 v{vS1[0]}, 3, v{vLANE}")
        A(f"v_cmp_eq_u32 s[58:59], 1, v{vS1[0]}")
        A(f"v_cmp_eq_u32 s[30:31], 2, v{vS1[0]}")
        A(f"v_cmp_eq_u32 vcc, 3, v{vS1[0]}")
        A("s_nop 1")
        for j in range(2):
            s1, s2 = vD1[j], vS2s[j]
            d = vD2[j]
            A(f"v_cndmask_b32 v{s2}, v{d}, v{d+1}, s[58:59]")
            A(f"v_cndmask_b32 v{s2}, v{s2}, v{d+2}, s[30:31]")
            A(f"v_cndmask_b32 v{s2}, v{s2}, v{d+3}, vcc")
            A(f"v_cndmask_b32 v{s2}, 0, v{s2}, s[56:57]")
        for j in range(2):
            s1, s2 = vD1[j], vS2s[j]
            for r in (s2,):
                A(f"v_mov_b32 v{z}, v{r}"); A("s_nop 1"); A(f"v_permlane16_swap_b32 v{r}, v{z}"); A("s_nop 1"); A(f"v_add_f32 v{r}, v{r}, v{z}")
                A(f"v_mov_b32 v{z}, v{r}"); A("s_nop 1"); A(f"v_permlane32_swap_b32 v{r}, v{z}"); A("s_nop 1"); A(f"v_add_f32 v{r}, v{r}, v{z}")
            A(f"v_mul_f32 v{m}, {f2u(1.0/576):#x}, v{s1}")
            A(f"v_mul_f32 v{va}, {f2u(1.0/576):#x}, v{s2}")
            A(f"v_fma_f32 v{va}, -v{m}, v{m}, v{va}")
            A(f"v_max_f32 v{va}, 0, v{va}")
            A(f"v_cvt_pk_bf16_f32 v{tb}, v{m}, v{va}")
            A(f"v_and_b32 v{va}, 0xffff0000, v{tb}")
            A(f"v_add_f32 v{va}, {f2u(1e-5):#x}, v{va}")
            A(f"v_cvt_pk_bf16_f32 v{va}, v{va}, v{va}")
            A(f"v_and_b32 v{va}, 0xffff0000, v{va}")
            A(f"v_sqrt_f32 v{va}, v{va}"); A("s_nop 0")
            A(f"v_cvt_pk_bf16_f32 v{va}, v{va}, v{va}")
            A(f"v_and_b32 v{va}, 0xffff0000, v{va}")
            A(f"v_mul_f32 v{vS2[j]}, v{va}, v{va}")
            A(f"v_rcp_f32 v{va}, v{va}"); A("s_nop 0")
            A(f"v_mul_f32 v{vC0[j]}, {f2u(K0C):#x}, v{va}")
            A(f"v_mul_f32 v{vC1[j]}, v{va}, v{va}")
            A(f"v_mul_f32 v{vC1[j]}, v{vC1[j]}, v{va}")
            A(f"v_mul_f32 v{vC1[j]}, {f2u(K1C):#x}, v{vC1[j]}")
            A(f"v_and_b32 v{tb}, 0xffff, v{tb}")
            A(f"v_xor_b32 v{tb}, 0x8000, v{tb}")
            A(f"v_lshl_or_b32 v{tb}, v{tb}, 16, v{tb}")
            A(f"v_cmp_gt_u32 vcc, 16, v{vLANE}"); A("s_nop 1")
            A(f"v_cndmask_b32 v{tb}, 0, v{tb}, vcc")
            A(f"v_mov_b32 v{m}, 0"); A("s_nop 0")
            b0 = aBM + 8*j
            for e, src in enumerate((tb, m, m, m, m, tb, m, m)):
                A(f"v_accvgpr_write_b32 a{b0+e}, v{src}")
        A(f"v_accvgpr_write_b32 a{aCS+36}, v{m}"); A(f"v_accvgpr_write_b32 a{aCS+37}, v{m}")
        A("s_nop 1")
        return ops
    def gelu_ops(buf, nft, Hbase):
        ops = []
        n = 0
        for ft in range(nft):
            for j in range(2):
                for p in range(2):
                    T = vT + 4*(n % 2); n += 1
                    a0 = buf + 4*((ft*2+0)*2 + j) + 2*p; a1 = a0 + 1
                    b0 = buf + 4*((ft*2+1)*2 + j) + 2*p; b1 = b0 + 1
                    x0, x1, y0, y1 = T, T+1, T+2, T+3
                    hd = Hbase + 8*(ft >> 1) + 4*j + 2*(ft & 1) + p
                    ops += [(1, f"v_mul_f32 v{x0}, v{a0}, v{a0}"), (1, f"v_mul_f32 v{x1}, v{a1}, v{a1}"),
                            (1, f"v_fma_f32 v{x0}, v{x0}, v{vC1[j]}, v{vC0[j]}"), (1, f"v_fma_f32 v{x1}, v{x1}, v{vC1[j]}, v{vC0[j]}"),
                            (1, f"v_mul_f32 v{x0}, v{a0}, v{x0}"), (1, f"v_mul_f32 v{x1}, v{a1}, v{x1}"),
                            (2, f"v_exp_f32 v{x0}, v{x0}"), (2, f"v_exp_f32 v{x1}, v{x1}"),
                            (1, f"v_mul_f32 v{y0}, v{a0}, v{b0}"), (1, f"v_mul_f32 v{y1}, v{a1}, v{b1}"),
                            (1, f"v_fma_f32 v{x0}, v{x0}, v{vS2[j]}, v{vS2[j]}"), (1, f"v_fma_f32 v{x1}, v{x1}, v{vS2[j]}, v{vS2[j]}"),
                            (2, f"v_rcp_f32 v{x0}, v{x0}"), (2, f"v_rcp_f32 v{x1}, v{x1}"),
                            (1, f"v_mul_f32 v{y0}, v{y0}, v{x0}"), (1, f"v_mul_f32 v{y1}, v{y1}, v{x1}"),
                            (1, f"v_cvt_pk_bf16_f32 v{hd}, v{y0}, v{y1}")]
        return ops
    def epi_ops(st):
        a = st - 27
        ops = []
        P = vACC[0]
        for ntp in range(2):
            for j in range(2):
                q = P + 4*(2*ntp + j)
                for h2 in range(2):
                    A = acc_reg(st, (2*ntp + h2)*2 + j)
                    ops.append((1, f"v_cvt_pk_bf16_f32 v{q+2*h2}, v{A}, v{A+1}"))
                    ops.append((1, f"v_cvt_pk_bf16_f32 v{q+2*h2+1}, v{A+2}, v{A+3}"))
                ops.append((1, "s_nop 1"))
                ops.append((1, f"v_permlane16_swap_b32 v{q}, v{q+2}"))
                ops.append((1, f"v_permlane16_swap_b32 v{q+1}, v{q+3}"))
                ops.append((1, f"s_add_u32 s{sT0}, s{sPART}, {(a*4 + ntp*2 + j)*1024}"))
                ops.append((1, ("store", f"buffer_store_dwordx4 v[{q}:{q+3}], v{vST}, s[{sWS}:{sWS+3}], s{sT0} offen", a)))
        return ops

    sCH, sHB, sOB, sCNT = 64, 65, 66, 45
    vZ, vCN, vHO, vOO = 3, 4, 5, 6
    def red_setup():
        t0_, t1_ = vTMP[11], vTMP[12]
        return f"""
        s_lshr_b32 s68, s{sJ}, 2                     ; w_src
        s_lshl_b32 s69, s{sMT}, 2
        s_add_u32 s68, s68, s69                      ; rowblk
        s_and_b32 s69, s{sJ}, 3                      ; r
        s_mul_i32 s{sCH}, s68, {36*1024}
        s_lshl_b32 s70, s69, 10
        s_add_u32 s{sCH}, s{sCH}, s70
        s_add_u32 s{sCH}, s{sCH}, {WS_PART}          ; + b*4096 + i*PSZ
        s_and_b32 s70, s69, 1                        ; jm
        s_lshr_b32 s71, s69, 1                       ; ntp
        s_lshl_b32 s72, s68, 1
        s_add_u32 s72, s72, s70
        s_lshl_b32 s{sHB}, s72, 5
        s_lshl_b32 s73, s71, 17
        s_add_u32 s{sHB}, s{sHB}, s73
        s_add_u32 s{sHB}, s{sHB}, {WS_HT}            ; + b*64*4096
        s_mul_i32 s{sOB}, s72, {16*1152}
        s_lshl_b32 s73, s71, 6
        s_add_u32 s{sOB}, s{sOB}, s73                ; + b*128
        v_and_b32 v{t0_}, 15, v{vLANE}
        v_bfe_u32 v{t1_}, v{vLANE}, 4, 1
        v_lshlrev_b32 v{t1_}, 1, v{t1_}
        v_lshrrev_b32 v{vHO}, 5, v{vLANE}
        v_add_u32 v{t1_}, v{t1_}, v{vHO}
        v_lshlrev_b32 v{vHO}, 15, v{t1_}
        v_lshl_add_u32 v{vHO}, v{t0_}, 1, v{vHO}
        v_mul_u32_u24 v{vOO}, 1152, v{t0_}
        v_lshl_add_u32 v{vOO}, v{t1_}, 4, v{vOO}
        v_mov_b32 v{vZ}, 0
        v_lshlrev_b32 v{vCN}, 2, v{vLANE}
        v_min_u32 v{vCN}, 32, v{vCN}
        """
    def early_loads():
        L = [("s", f"s_lshl_b32 s74, s{sW}, 12"), ("s", f"s_add_u32 s74, s74, s{sCH}")]
        for i in range(16):
            L.append(("l", f"buffer_load_dwordx4 a[{4*i}:{4*i+3}], v{vST}, s[{sWS}:{sWS+3}], s74 offen sc1"))
            if i < 15: L.append(("s", f"s_add_u32 s74, s74, {PSZ}"))
        L += [("s", f"s_lshl_b32 s74, s{sW}, 18"), ("s", f"s_add_u32 s74, s74, s{sHB}")]
        for i in range(8):
            L.append(("l", f"buffer_load_ushort a{64+i}, v{vHO}, s[{sWS}:{sWS+3}], s74 offen"))
            if i < 7: L.append(("s", "s_add_u32 s74, s74, 4096"))
        return L
    NINIT = opts.get("ninit", 4)
    for it in items[2:NINIT]:
        emit_dma_all(it)
    if opts.get("wpf", True):
        NMT = 8 if MAP4 else 16
        per = 384 // NMT // 2
        k(f"""
        s_and_b32 s56, s{sMT}, {NMT-1}
        s_mul_i32 s56, s56, {2*per}
        s_mul_i32 s57, s46, {per}
        s_add_u32 s56, s56, s57                      ; first line index in [0,384)
        s_mul_hi_u32 s57, s56, 44739243              ; /96
        s_mul_i32 s58, s57, 96
        s_sub_u32 s56, s56, s58
        s_cmp_eq_u32 s57, 0
        s_cselect_b32 s58, s{sWq[2]}, s{sWq[3]}
        s_cmp_eq_u32 s57, 2
        s_cselect_b32 s58, s{sWq[4]}, s58
        s_cmp_eq_u32 s57, 3
        s_cselect_b32 s58, s{sWq[5]}, s58
        s_mul_i32 s57, s46, {48*9216}
        s_sub_u32 s58, s58, s57
        s_mul_i32 s56, s56, 9216
        s_add_u32 s58, s58, s56
        v_mul_u32_u24 v{vTMP[11]}, 9216, v{vLANE}
        v_cmp_gt_u32 vcc, {per}, v{vLANE}
        v_mov_b32 v{vTMP[12]}, 0x7fffffff
        s_nop 0
        v_cndmask_b32 v{vTMP[11]}, v{vTMP[12]}, v{vTMP[11]}, vcc
        buffer_load_dword v{vTMP[12]}, v{vTMP[11]}, s[{sWM}:{sWM+3}], s58 offen
        """)
        vm.issue("PF")
    if opts.get("selfpf", True):
        k(f"""
        s_getpc_b64 s[56:57]
        L{name}_pc0:
        s_sub_u32 s56, s56, L{name}_pc0-{name}
        s_subb_u32 s57, s57, 0
        s_lshl_b32 s58, s{sW}, 13
        v_lshlrev_b32 v{vTMP[11]}, 7, v{vLANE}
        v_add_u32 v{vTMP[11]}, s58, v{vTMP[11]}
        global_load_dword v{vTMP[12]}, v{vTMP[11]}, s[56:57]
        v_add_u32 v{vTMP[11]}, 32768, v{vTMP[11]}
        v_min_u32 v{vTMP[11]}, {opts.get("selfpf_bytes", 54*1024)}, v{vTMP[11]}
        global_load_dword v{vTMP[12]}, v{vTMP[11]}, s[56:57]
        """)
        vm.issue("PF"); vm.issue("PF")
    n = vm.need(("W", 0)); k(f"s_waitcnt vmcnt({n})")
    k("s_barrier")
    stamp()
    for kind, l in x_read_ops(0): k(l)
    k("s_waitcnt lgkmcnt(0)")
    freed = {("X", 0): False}
    next_item = NINIT
    done_items = set()
    def can_issue(idx):
        it = items[idx]; lo, hi = uabs[it]
        for other in items[:idx]:
            a, b = uabs[other]
            if a < hi - NUNIT and b > lo - NUNIT and other not in done_items: return False
        return True
    stage_first = {}
    for idx, d in enumerate(mf): stage_first.setdefault(d["st"], idx)
    stage_len = {st: sum(1 for d in mf if d["st"] == st) for st in range(NS)}
    for f in range(LA): emit_reads(frags[f])
    fillers = []; rate = 0.0; credit = 0.0
    eq = []
    xq = []; dmaq = []
    seen_frag = set()
    for idx, d in enumerate(mf):
        st = d["st"]; pos = idx - stage_first[st]
        if pos == 0:
            if opts.get("stamps") and (st < 7 or st in (18, 24, 27, 33)): stamp()
            need = []
            if st + 1 < NS: need.append(stage_item(st + 1))
            if st + 1 < 6: need.append(("X", st + 1))
            FUSE = opts.get("fuse", False)
            if FUSE and 30 <= st <= 35: need.append(("ST", st - 30))
            ns = [vm.need(x) for x in need if x in vm.q]
            assert all(x in vm.q for x in need), (st, need)
            assert not any(it in need for it, _ in dmaq), (st, need)
            ns = [x for x in ns if x is not None]
            if st >= 1 or True:
                if ns: k(f"s_waitcnt vmcnt({min(ns)})")
                if st >= 1 and st <= 5:
                    nn = lg.need(("x", st))
                    if nn is not None: k(f"s_waitcnt lgkmcnt({nn})")
                k("s_barrier")
            if FUSE and st == 29:
                k(f"v_mov_b32 v1, 0\nv_mov_b32 v2, 1")
                k(f"s_lshl_b32 s45, s{sMT}, 7\ns_add_u32 s45, s45, {WS_CNT}")
            if FUSE and 30 <= st <= 35:
                k(f"s_cmp_lg_u32 s{sW}, 0\ns_cbranch_scc1 L{name}_sg{st}")
                k(f"s_add_u32 s44, s45, {4*(st-30)}\ns_mov_b64 exec, 1")
                k(f"buffer_atomic_add v2, v1, s[{sWS}:{sWS+3}], s44 offen")
                k("s_mov_b64 exec, -1")
                k.label(f"L{name}_sg{st}")
            if st >= 1: done_items.add(stage_item(st - 1))
            if st <= 5: done_items.add(("X", st))
            while next_item < len(items) and can_issue(next_item):
                for op in dma_ops(items[next_item]): dmaq.append((items[next_item], op))
                next_item += 1
            if st + 1 < 6: xq = x_read_ops(st + 1)
            if st < 6:
                if st >= 1 and False: pass
                assert not fillers, st
                fillers = []
                if st == 1: fillers = cs_ops()
                if st == 5: fillers = finalize_ops()
                span = stage_len[st] - (36 if st == 5 else 8)
                rate = sum(c for c, _ in fillers) / span; credit = -14*rate if st == 5 else 0
            elif st < 24 and st % 6 == 0:
                assert not fillers, st
                g = st // 6
                fillers = gelu_ops(vACC[(g-1) % 2], 4, vH + 16*(g-1))
                if g == 1 and opts.get("wdpf", True):
                    NMT = 8 if MAP4 else 16
                    perw = 2592 // NMT // 4 + (1 if (2592 // NMT) % 4 else 0)
                    pf = [(1, f"s_and_b32 s44, s{sMT}, {NMT-1}"), (1, f"s_mul_i32 s44, s44, {2592 // NMT}"), (1, f"s_mul_i32 s45, s{sW}, {perw}"),
                          (1, f"s_add_u32 s44, s44, s45"), (1, f"s_lshl_b32 s44, s44, 7"), (1, f"s_mul_i32 s45, s{sJ}, {288*1152}"), (1, f"s_add_u32 s44, s44, s45")]
                    for part in range((perw + 63) // 64):
                        pf += [(1, f"v_add_u32 v{vTMP[11]}, {64*part}, v{vLANE}"), (1, f"v_cmp_gt_u32 vcc, {perw}, v{vTMP[11]}"),
                               (1, f"v_lshlrev_b32 v{vTMP[11]}, 7, v{vTMP[11]}"), (1, f"v_mov_b32 v{vTMP[12]}, 0x7fffffff"), (1, "s_nop 0"),
                               (1, f"v_cndmask_b32 v{vTMP[11]}, v{vTMP[12]}, v{vTMP[11]}, vcc"),
                               (1, ("load", f"buffer_load_dword v{vTMP[10]}, v{vTMP[11]}, s[{sWD}:{sWD+3}], s44 offen"))]
                    fillers = pf + fillers
                span = sum(stage_len[s] for s in range(st, st + 6)) - 12
                rate = sum(c for c, _ in fillers) / span; credit = -6*rate
            elif st == 24:
                assert not fillers
                fillers = gelu_ops(vACC[1], 4, vH + 48)
                span = sum(stage_len[s] for s in range(24, 27)) - 12
                rate = sum(c for c, _ in fillers) / span; credit = -6*rate
            elif st == 27:
                assert not fillers
                fillers = gelu_ops(vACC[0], 2, vH + 64)
                span = 56; rate = sum(c for c, _ in fillers) / span; credit = -6*rate
            elif st > 27:
                assert not fillers, (st, len(fillers))
                fillers = epi_ops(st - 1)
                span = stage_len[st] - 16
                rate = sum(c for c, _ in fillers) / span; credit = -6*rate
            if st == 24:
                for l in [f"v_add_u32 v{vHB[0]}, PLACE, v{vLH}"]: pass
        EARLY = opts.get("fuse", False) and opts.get("early", True)
        if opts.get("fuse", False) and st == 33 and pos == 1:
            k(red_setup())
        if EARLY and st == 34 and pos == 50:
            k(f"buffer_load_dword v{vTMP[10]}, v{vCN}, s[{sWS}:{sWS+3}], s{sCNT} offen sc1"); vm.issue("SNAP")
        if EARLY and st == 35 and pos == 24:
            nn = vm.need("SNAP")
            if nn is not None: k(f"s_waitcnt vmcnt({nn})")
            k(f"v_readlane_b32 s59, v{vTMP[10]}, s{sW}")
            eq = early_loads()
        if EARLY and st == 35 and pos > 24 and eq:
            while eq:
                kind, l = eq.pop(0); k(l)
                if kind == "l":
                    vm.issue("EARLY"); break
        def flush_fillers():
            nonlocal fillers
            for c, l in fillers:
                if isinstance(l, tuple): k(l[1]); vm.issue(("ST", l[2]) if l[0] == "store" else "CS")
                else: k(l)
            fillers = []
        if st == 5 and d["fr"] is None and pos >= 12 and fillers: flush_fillers()
        if d.get("needH") == 8 and st == 27 and fillers:
            flush_fillers(); k("s_nop 1")
        fr = d["fr"]
        if fr is not None and fr["n"] not in seen_frag:
            seen_frag.add(fr["n"])
            f = fr["n"]
            WG = opts.get("wgran", 2)
            if f % WG == 0:
                tgt = min(f + WG - 1, len(frags) - 1)
                while tgt > f and not (lg.q.count(("f", tgt)) == 2): tgt -= 1
                nn = lg.need(("f", tgt))
            else: nn = lg.need(("f", f))
            if nn is not None: k(f"s_waitcnt lgkmcnt({nn})")
            firstuse = True
        else: firstuse = False
        A = d["A"] if fr is None else f"a[{fr['reg']}:{fr['reg']+3}]"
        C = "0" if d["first"] else f"v[{d['acc']}:{d['acc']+3}]"
        k(f"v_mfma_f32_16x16x32_bf16 v[{d['acc']}:{d['acc']+3}], {A}, {d['B']}, {C}")
        if st == 23 and pos == 4 or (st in (24, 25) and pos == 4):
            nb = upos[stage_item(st + 1)]*UNIT
            pass
        if fr is not None:
            nf = fr["n"] + LA
            if nf < len(frags):
                nfr = frags[nf]
                if firstuse:
                    if nfr["st"] != frags[nf-1]["st"]:
                        ns_ = nfr["st"]
                        if 24 <= ns_ < 27:
                            nb = upos[stage_item(ns_)]*UNIT
                            k(f"v_add_u32 v{vHB[0]}, {nb}, v{vLH}"); k(f"v_add_u32 v{vHB[1]}, {nb}, v{vLH1}")
                        if ns_ == 27:
                            for l in set_bases_p2(): k(l)
                    emit_reads(nfr, 0)
                else:
                    emit_reads(nfr, 1)
        if xq and pos >= 2:
            kind, l = xq.pop(0)
            if kind == "x": lg_room()
            k(l)
            if kind == "x": lg.issue(("x", st + 1))
            elif xq and xq[0][0] == "v":
                kind, l = xq.pop(0); k(l)
        if dmaq and (pos % (2 if (st < 6 and opts.get("fastdma", False)) else 3) == 1):
            while dmaq:
                it, (kind, x) = dmaq.pop(0)
                if kind == "s":
                    xs = sorted(x, key=lambda l: 0 if " m0," in l else 1)
                    for l in xs: k(l)
                    if not (opts.get("nonop", True) and len(xs) == 2): k("s_nop 0")
                else:
                    if not opts.get("nodma"): k(x)
                    vm.issue(it); break
        credit += rate
        while fillers and credit >= fillers[0][0]:
            c, l = fillers.pop(0); credit -= c
            if isinstance(l, tuple):
                if not (opts.get("nostore") and l[0] == "store"): k(l[1])
                vm.issue(("ST", l[2]) if l[0] == "store" else "CS")
            elif not opts.get("nofill"): k(l)
    assert not dmaq and next_item == len(items), (len(dmaq), next_item)
    flush_fillers()
    if not opts.get("fuse", False):
        k("s_nop 7")
        for c, l in epi_ops(NS - 1):
            if isinstance(l, tuple): k(l[1])
            else: k(l)
        k("s_waitcnt vmcnt(0)")
    else:
        N = name
        SA, HA, SB, HB, SC_, HC = 48, 112, 120, 184, 192, 8
        vT0_, vT1_, ACCR = 22, 23, 32
        EARLY = opts.get("early", True)
        for kind, l in eq: k(l)
        k(f"""
        buffer_load_dword v7, v{vCN}, s[{sWS}:{sWS+3}], s{sCNT} offen sc1
        s_nop 4
        """)
        eo = epi_ops(NS - 1)
        stores = []
        pend_s = None
        for c, l in eo:
            if isinstance(l, tuple): stores.append((pend_s, l[1]))
            elif l.startswith("s_add_u32"): pend_s = l
            else: k(l)
        def poll(tag, sb_expr_reg, spin=True):
            k.label(f"L{N}_{tag}_p")
            k(f"""
            s_lshl_b32 s74, s{sb_expr_reg}, 2
            s_add_u32 s74, s74, s{sCNT}
            buffer_load_dword v7, v{vZ}, s[{sWS}:{sWS+3}], s74 offen sc1
            s_waitcnt vmcnt(0)
            v_readfirstlane_b32 s75, v7
            s_cmp_ge_u32 s75, 16
            s_cbranch_scc1 L{N}_{tag}_ok
            s_add_u32 s63, s63, 1
            s_cmp_lt_u32 s63, 0x40000
            s_cbranch_scc0 L{N}_{tag}_ok
            s_sleep 2
            s_branch L{N}_{tag}_p
            """)
            k.label(f"L{N}_{tag}_ok")
        def loads(S, Hh, sb):
            k(f"s_lshl_b32 s74, s{sb}, 12\ns_add_u32 s74, s74, s{sCH}")
            for i in range(16):
                k(f"buffer_load_dwordx4 v[{S+4*i}:{S+4*i+3}], v{vST}, s[{sWS}:{sWS+3}], s74 offen sc1")
                if i < 15: k(f"s_add_u32 s74, s74, {PSZ}")
            k(f"s_lshl_b32 s74, s{sb}, 18\ns_add_u32 s74, s74, s{sHB}")
            for i in range(8):
                k(f"buffer_load_ushort v{Hh+i}, v{vHO}, s[{sWS}:{sWS+3}], s74 offen")
                if i < 7: k("s_add_u32 s74, s74, 4096")
        def reduce_store(S, Hh, sb, agpr=False):
            if agpr:
                for i in range(64): k(f"v_accvgpr_read_b32 v{S+i}, a{i}")
                for i in range(8): k(f"v_accvgpr_read_b32 v{Hh+i}, a{64+i}")
            for i in range(16):
                for d in range(4):
                    r = S + 4*i + d
                    if i == 0:
                        k(f"v_lshlrev_b32 v{ACCR+2*d}, 16, v{r}\nv_and_b32 v{ACCR+2*d+1}, 0xffff0000, v{r}")
                    else:
                        k(f"v_lshlrev_b32 v{vT0_}, 16, v{r}\nv_and_b32 v{vT1_}, 0xffff0000, v{r}\nv_add_f32 v{ACCR+2*d}, v{ACCR+2*d}, v{vT0_}\nv_add_f32 v{ACCR+2*d+1}, v{ACCR+2*d+1}, v{vT1_}")
            for d in range(4):
                k(f"""
                v_cvt_pk_bf16_f32 v18, v{ACCR+2*d}, v{ACCR+2*d+1}
                v_lshlrev_b32 v19, 16, v18
                v_and_b32 v18, 0xffff0000, v18
                v_lshlrev_b32 v20, 16, v{Hh+2*d}
                v_lshlrev_b32 v21, 16, v{Hh+2*d+1}
                v_add_f32 v19, v19, v20
                v_add_f32 v18, v18, v21
                v_cvt_pk_bf16_f32 v{ACCR+8+d}, v19, v18
                """)
            k(f"s_lshl_b32 s74, s{sb}, 7\ns_add_u32 s74, s74, s{sOB}")
            k(f"buffer_store_dwordx4 v[{ACCR+8}:{ACCR+11}], v{vOO}, s[88:91], s74 offen")
        def redA(tag):
            if EARLY:
                k(f"s_cmp_eq_u32 s58, 0\ns_cbranch_scc1 L{N}_ra{tag}")
                for i in range(64): k(f"v_accvgpr_read_b32 v{SA+i}, a{i}")
                for i in range(8): k(f"v_accvgpr_read_b32 v{HA+i}, a{64+i}")
                k.label(f"L{N}_ra{tag}")
            reduce_store(SA, HA, sB1)
        sB1, sB2, sB3 = 67, 62, 61
        k(f"""
        s_mov_b32 s63, 0
        s_mov_b32 s{sB1}, s{sW}
        s_add_u32 s{sB2}, s{sW}, 4
        s_mov_b32 s{sB3}, 8
        s_waitcnt vmcnt(0)
        v_readlane_b32 s75, v7, s{sB1}
        v_readlane_b32 s60, v7, s{sB2}
        s_nop 3
        s_cmp_ge_u32 s75, 16
        s_cbranch_scc1 L{N}_a_ok
        """)
        poll("a", sB1)
        k.lines.pop()
        k.label(f"L{N}_a_ok")
        for sl, st_ in stores:
            k(sl); k(st_)
        if EARLY:
            k(f"s_mov_b32 s58, 1\ns_cmp_ge_u32 s59, 16\ns_cbranch_scc1 L{N}_havea\ns_mov_b32 s58, 0")
            loads(SA, HA, sB1)
            k(f"s_waitcnt vmcnt(0)")
            k.label(f"L{N}_havea")
        else:
            loads(SA, HA, sB1)
        k(f"""
        s_cmp_ge_u32 s60, 16
        s_cbranch_scc0 L{N}_nob
        """)
        loads(SB, HB, sB2)
        k(f"s_waitcnt vmcnt({24 if EARLY else 48})\ns_branch L{N}_sig")
        k.label(f"L{N}_nob")
        k(f"s_waitcnt vmcnt({0 if EARLY else 24})")
        k.label(f"L{N}_sig")
        k(f"""
        s_barrier
        s_cmp_lg_u32 s{sW}, 0
        s_cbranch_scc1 L{N}_sg36
        v_lshlrev_b32 v1, 2, v{vLANE}
        v_add_u32 v1, 24, v1
        s_mov_b64 exec, 7
        buffer_atomic_add v2, v1, s[{sWS}:{sWS+3}], s{sCNT} offen
        s_mov_b64 exec, -1
        L{N}_sg36:
        """)
        if EARLY:
            k(f"s_cmp_eq_u32 s{sW}, 0\ns_cbranch_scc1 L{N}_skipra")
            redA("e")
            k.label(f"L{N}_skipra")
        k(f"""
        s_cmp_ge_u32 s60, 16
        s_cbranch_scc1 L{N}_hasb
        """)
        poll("b", sB2)
        loads(SB, HB, sB2)
        k.label(f"L{N}_hasb")
        k(f"s_cmp_lg_u32 s{sW}, 0\ns_cbranch_scc1 L{N}_noc")
        poll("c", sB3)
        loads(SC_, HC, sB3)
        k("s_waitcnt vmcnt(24)")
        redA("c")
        reduce_store(SB, HB, sB2)
        k("s_waitcnt vmcnt(2)")
        reduce_store(SC_, HC, sB3)
        k(f"s_branch L{N}_fin")
        k.label(f"L{N}_noc")
        k("s_waitcnt vmcnt(0)")
        if not EARLY: redA("n")
        reduce_store(SB, HB, sB2)
        k.label(f"L{N}_fin")
        k("s_waitcnt vmcnt(0)")
    stamp()
    if opts.get("stamps"):
        k("v_mov_b32 v1, 0")
        for i in range(nst[0]): k(f"v_writelane_b32 v1, s{62+i}, {i}")
        k(f"v_lshlrev_b32 v2, 2, v{vLANE}")
        k(f"s_lshl_b32 s60, s2, 2\ns_add_u32 s60, s60, s{sW}\ns_lshl_b32 s60, s60, 8\ns_add_u32 s60, s60, {WS_DBG}")
        k(f"buffer_store_dword v1, v2, s[{sWS}:{sWS+3}], s60 offen")
        k("s_waitcnt vmcnt(0)")
    k.label(f"L{name}_end")
    k("s_endpgm")
    return k

if __name__ == "__main__":
    from asmlib import build_file
    V = {"k3b": {}, "k3b_rt": {"stamps": 1, "rt": 1}, "k3b_rt_nop": {"stamps": 1, "rt": 1, "nonop": False},
         "k3b_rt_w4": {"stamps": 1, "rt": 1, "wgran": 4, "LA": 7, "RING": 12}, "k3b_rt_w3": {"stamps": 1, "rt": 1, "wgran": 3, "LA": 7, "RING": 10},
         "k3b_rt_la4": {"stamps": 1, "rt": 1, "LA": 4}, "k3b_rt_la7": {"stamps": 1, "rt": 1, "LA": 7, "RING": 10}, "k3b_cy": {"stamps": 1}, "k3b_rt_m4": {"stamps": 1, "rt": 1, "map4": True},
         "k3b_rt_m4n": {"stamps": 1, "rt": 1, "map4": True, "rotpat": 0}, "k3b_m4": {"map4": True}}
    for nm, o in (("nostore", {"nostore":1}), ("nostore_nodma", {"nostore":1, "nodma":1}), ("sc1", {"sc1":1}), ("nodma", {"nodma":1}), ("nofill", {"nofill":1}), ("noread", {"noread":1}), ("bare", {"nodma":1,"nofill":1,"noread":1}), ("onlyread", {"nodma":1,"nofill":1})):
        V["k3b_rt_"+nm] = dict(o, stamps=1, rt=1); V["k3b_cy_"+nm] = dict(o, stamps=1)
    for nm, o in V.items():
        k = gen_k3b(opts=o)
        if o.get("sc1"): k.lines = [l + ' sc1' if 'buffer_store_dwordx4' in l else l for l in k.lines]
        build_file(f"mb/{nm}.s", [(k, 512, 102, 256)], [("k3_kernel", 256, 256, LDS_BYTES)])
        print(nm, len(k.lines))
```

```python
from asmlib import K
from gen_k3 import WS_XT, WS_UT, WS_HT, WS_CS, WS_END, f2u
from gen_k3 import WS_KG, WS_SC
WS_FL = WS_KG
from gen_k3 import WS_PART
WS_UX2 = WS_PART
TAGX = 0x5bd1e995
WS_UX = WS_XT
from gen_k1 import srd, bf16r, cmul, LOG2E
import gen_k1, math
NP, NV, NB = 256, 576, 144
KA_LDS = 40960
TP = 544; TA = 0; TB = 16*TP; KT = TB + 41*TP
UZ = 2560; UD = UZ; KB = UD + 5120; CS = 4416; RED = KB
assert KB + 4*CS <= KA_LDS and RED + 24576 <= KA_LDS and KT + 2101*4 <= KA_LDS

def role_P(k, name, opts):
    PITCH = 1216
    R = opts.get("R", 8)
    k(f"""
    s_setprio 3
    s_load_dwordx2 s[4:5], s[0:1], 0           ; x
    s_load_dwordx4 s[24:27], s[0:1], 96
    s_and_b32 s16, s2, 7
    s_lshl_b32 s16, s16, 5
    s_lshr_b32 s17, s2, 3
    s_add_u32 s16, s16, s17
    v_and_b32 v1, 63, v0                       ; lane
    v_lshrrev_b32 v2, 6, v0                    ; wave
    v_lshrrev_b32 v3, 5, v1                    ; r (0..1)
    v_and_b32 v4, 31, v1                       ; c
    v_lshl_add_u32 v5, v2, 1, v3
    v_mul_u32_u24 v6, 1152, v5
    v_lshl_add_u32 v6, v4, 4, v6               ; row*1152 + c*16
    s_mul_i32 s17, s16, {8*1152}
    v_cmp_gt_u32 vcc, 8, v4
    v_add_u32 v7, 1024, v6
    v_mov_b32 v8, 0x7fffffff
    v_cndmask_b32 v7, v8, v7, vcc
    v_readfirstlane_b32 s21, v2
    s_waitcnt lgkmcnt(0)
    """)
    srd(k, 8, 4, 5, 2048*1152)
    X = 16
    for i in range(2):
        k(f"buffer_load_dwordx4 v[{X+4*i}:{X+4*i+3}], v6, s[8:11], s17 offen offset:{512*i}")
    k(f"buffer_load_dwordx4 v[{X+8}:{X+11}], v7, s[8:11], s17 offen")
    srd(k, 12, 26, 27, WS_END); srd(k, 28, 24, 25, 256)
    NPT = 0
    if opts.get("ptouch"):
        NPT = 5
        k(f"""
        s_load_dwordx4 s[36:39], s[0:1], 64
        s_load_dwordx4 s[40:43], s[0:1], 80
        v_lshlrev_b32 v96, {opts.get("ptouch_shift", 21)}, v1
        buffer_load_dword v97, v96, s[12:15], 0 offen
        s_waitcnt lgkmcnt(0)
        s_mov_b32 s44, s36
        s_mov_b32 s45, s37
        s_mov_b32 s46, {576*9216}
        s_mov_b32 s47, 0x20000
        buffer_load_dword v100, v96, s[44:47], 0 offen
        s_mov_b32 s48, s38
        s_mov_b32 s49, s39
        s_mov_b32 s50, {576*9216}
        s_mov_b32 s51, 0x20000
        buffer_load_dword v101, v96, s[48:51], 0 offen
        s_mov_b32 s52, s40
        s_mov_b32 s53, s41
        s_mov_b32 s54, {576*9216}
        s_mov_b32 s55, 0x20000
        buffer_load_dword v102, v96, s[52:55], 0 offen
        s_mov_b32 s56, s42
        s_mov_b32 s57, s43
        s_mov_b32 s58, {2048*1152}
        s_mov_b32 s59, 0x20000
        buffer_load_dword v103, v96, s[56:59], 0 offen
        """)
    k(f"""
    s_or_b32 s34, s21, s2
    s_cmp_lg_u32 s34, 0
    s_cbranch_scc1 L{name}_P_nononce
    s_memrealtime s[32:33]
    s_waitcnt lgkmcnt(0)
    s_or_b32 s32, s32, 1
    v_mov_b32 v12, s32
    v_mov_b32 v13, 0
    buffer_store_dword v12, v13, s[28:31], 0 offen sc1
    """)
    k.label(f"L{name}_P_nononce")
    k(f"""
    s_cmp_ge_u32 s2, 16
    s_cbranch_scc1 L{name}_P_nozero
    v_mov_b32 v12, 0
    v_and_b32 v13, 31, v0
    v_lshlrev_b32 v13, 2, v13
    s_lshl_b32 s34, s2, 7
    s_add_u32 s34, s34, {WS_SC}
    buffer_store_dword v12, v13, s[12:15], s34 offen
    """)
    k.label(f"L{name}_P_nozero")
    F = 40
    UOFF = 8*PITCH
    k(f"""
    v_mul_u32_u24 v6, {PITCH}, v5
    v_lshl_add_u32 v6, v4, 4, v6
    v_mov_b32 v9, 0x3f803f80
    v_mov_b32 v10, 0
    v_mov_b32 v11, 0
    v_mov_b32 v99, 0
    s_waitcnt vmcnt({NPT})
    """)
    if opts.get("tags"): k("buffer_load_dword v98, v99, s[28:31], 0 offen sc1")
    for i in range(12):
        k(f"v_dot2_f32_bf16 v{10+(i&1)}, v{X+i}, v9, v{10+(i&1)}")
        k(f"v_lshlrev_b32 v{F+2*i}, 16, v{X+i}")
        k(f"v_and_b32 v{F+2*i+1}, 0xffff0000, v{X+i}")
    for i in range(2): k(f"ds_write_b128 v6, v[{X+4*i}:{X+4*i+3}] offset:{512*i}")
    k("s_nop 0\nv_add_f32 v10, v10, v11")
    def reduce32(reg):
        k(f"""
        s_nop 1
        v_add_f32_dpp v{reg}, v{reg}, v{reg} quad_perm:[1,0,3,2] row_mask:0xf bank_mask:0xf
        s_nop 1
        v_add_f32_dpp v{reg}, v{reg}, v{reg} quad_perm:[2,3,0,1] row_mask:0xf bank_mask:0xf
        s_nop 1
        v_add_f32_dpp v{reg}, v{reg}, v{reg} row_half_mirror row_mask:0xf bank_mask:0xf
        s_nop 1
        v_add_f32_dpp v{reg}, v{reg}, v{reg} row_mirror row_mask:0xf bank_mask:0xf
        v_mov_b32 v14, v{reg}
        s_nop 1
        v_permlane16_swap_b32 v{reg}, v14
        s_nop 1
        v_add_f32 v{reg}, v{reg}, v14
        """)
    k("v_mov_b32 v14, v10") if False else None
    reduce32(10)
    k(f"v_mul_f32 v10, {f2u(1.0/576):#x}, v10        ; mean")
    k("v_mov_b32 v11, 0\nv_mov_b32 v12, 0\nv_mov_b32 v15, 0")
    for i in range(16):
        t = 13 + (i & 1)
        k(f"v_sub_f32 v{t}, v{F+i}, v10")
        k(f"v_fmac_f32 v{11+(i&1)}, v{t}, v{t}")
    for i in range(16, 24):
        t = 13 + (i & 1)
        k(f"v_sub_f32 v{t}, v{F+i}, v10")
        k(f"v_fmac_f32 v15, v{t}, v{t}")
    k("""
    v_add_f32 v11, v11, v12
    v_cndmask_b32 v15, 0, v15, vcc
    v_add_f32 v11, v11, v15
    """)
    reduce32(11)
    k(f"""
    v_mul_f32 v11, {f2u(1.0/576):#x}, v11        ; var
    v_cvt_pk_bf16_f32 v12, v10, v11
    v_lshlrev_b32 v10, 16, v12                   ; m (bf16)
    v_and_b32 v11, 0xffff0000, v12
    v_add_f32 v11, {f2u(1e-5):#x}, v11
    """)
    bf16r(k, 11, 11)
    k("v_sqrt_f32 v11, v11\ns_nop 0")
    bf16r(k, 11, 11)
    k("v_rcp_f32 v11, v11\ns_nop 0")
    U = 80
    for i in range(12):
        a_, b_ = F+2*i, F+2*i+1
        t = 13 + (i & 1)
        k(f"""
        v_sub_f32 v{a_}, v{a_}, v10
        v_sub_f32 v{b_}, v{b_}, v10
        v_cvt_pk_bf16_f32 v{t}, v{a_}, v{b_}
        v_lshlrev_b32 v{a_}, 16, v{t}
        v_and_b32 v{b_}, 0xffff0000, v{t}
        v_mul_f32 v{a_}, v{a_}, v11
        v_mul_f32 v{b_}, v{b_}, v11
        v_cvt_pk_bf16_f32 v{t}, v{a_}, v{b_}
        v_lshlrev_b32 v{a_}, 16, v{t}
        v_and_b32 v{b_}, 0xffff0000, v{t}
        v_cvt_pk_f16_f32 v{U+i}, v{a_}, v{b_}
        """)
        if i % 4 == 3 and i < 8:
            k(f"ds_write_b128 v6, v[{U+i-3}:{U+i}] offset:{UOFF+512*(i//4)}")
    k("s_and_saveexec_b64 s[18:19], vcc")
    k(f"ds_write_b128 v6, v[{X+8}:{X+11}] offset:1024")
    k(f"ds_write_b128 v6, v[{U+8}:{U+11}] offset:{UOFF+1024}")
    k("s_mov_b64 exec, s[18:19]")
    if opts.get("tags"):
        k(f"""
        v_bfe_u32 v6, v1, 2, 2                       ; r'
        v_bfe_u32 v7, v1, 4, 1                       ; g&1
        v_lshl_add_u32 v6, v7, 2, v6                 ; row
        v_mul_u32_u24 v6, {PITCH}, v6
        v_and_b32 v7, 3, v1
        v_lshl_add_u32 v6, v7, 3, v6                 ; + 8c
        v_lshrrev_b32 v7, 5, v1                      ; g>>1 : 0 -> u, 1 -> x
        v_xor_b32 v7, 1, v7
        v_mul_u32_u24 v7, {UOFF}, v7
        v_add_u32 v6, v6, v7
        v_lshl_add_u32 v6, v2, 5, v6                 ; + wave*16 d*2B
        v_and_b32 v9, 15, v1
        v_lshl_add_u32 v9, v2, 4, v9                 ; d local
        v_lshlrev_b32 v9, 6, v9                      ; d*64
        v_lshrrev_b32 v7, 4, v1
        v_lshl_add_u32 v8, v7, 4, v9                 ; + g*16
        s_mul_i32 s18, s16, {576*64}
        s_add_u32 s18, s18, {WS_UX2}
        s_mov_b32 s22, 0
        """)
        k.label(f"L{name}_P_nc")
        k(f"""
        s_waitcnt vmcnt(0)
        v_readfirstlane_b32 s23, v98
        s_cmp_lg_u32 s23, 0
        s_cbranch_scc1 L{name}_P_nok
        s_add_u32 s22, s22, 1
        s_cmp_lt_u32 s22, 0x40000
        s_cbranch_scc0 L{name}_P_nok
        s_sleep 2
        buffer_load_dword v98, v99, s[28:31], 0 offen sc1
        s_branch L{name}_P_nc
        """)
        k.label(f"L{name}_P_nok")
        k(f"s_xor_b32 s24, s23, {TAGX:#x}")
        for it in range(9):
            k(f"v_mov_b32 v{18+4*it}, s23\nv_mov_b32 v{19+4*it}, s24")
        k("s_waitcnt lgkmcnt(0)\ns_barrier")
        for it in range(9):
            k(f"ds_read_b64_tr_b16 v[{16+4*it}:{17+4*it}], v6 offset:{it*128}")
        for it in range(9):
            k(f"s_waitcnt lgkmcnt({8-it})")
            k(f"buffer_store_dwordx4 v[{16+4*it}:{19+4*it}], v8, s[12:15], s18 offen sc1")
            if it < 8: k(f"s_add_u32 s18, s18, {64*64}")
        k(f"s_branch L{name}_end")
        k("")
        return
    k(f"""
    v_bfe_u32 v6, v1, 2, 2                       ; r'
    v_mul_u32_u24 v6, {PITCH}, v6
    v_and_b32 v7, 3, v1
    v_lshl_add_u32 v6, v7, 3, v6                 ; + 8c
    v_bfe_u32 v7, v1, 4, 1                       ; array
    v_xor_b32 v8, 1, v7
    v_mul_u32_u24 v8, {UOFF}, v8
    v_add_u32 v6, v6, v8
    v_lshrrev_b32 v8, 5, v1                      ; dsub
    v_lshl_add_u32 v6, v8, 5, v6                 ; + dsub*16 d*2B
    v_lshl_add_u32 v6, v2, 6, v6                 ; + wave*32 d*2B
    v_and_b32 v9, 15, v1
    v_lshl_add_u32 v9, v8, 4, v9
    v_lshl_add_u32 v9, v2, 5, v9                 ; d local
    v_lshlrev_b32 v9, 5, v9                      ; d*32
    v_lshl_add_u32 v8, v7, 4, v9                 ; + array*16
    s_mul_i32 s18, s16, {576*32}
    s_add_u32 s18, s18, {WS_UX}
    v_mov_b32 v13, 0
    s_waitcnt lgkmcnt(0)
    s_barrier
    """)
    for it in range(5):
        Rg = 16 + 4*it
        if it == 4: k(f"s_cmp_ge_u32 s21, 2\ns_cbranch_scc1 L{name}_P_st")
        k(f"ds_read_b64_tr_b16 v[{Rg}:{Rg+1}], v6 offset:{it*256}")
        k(f"ds_read_b64_tr_b16 v[{Rg+2}:{Rg+3}], v6 offset:{it*256 + 4*PITCH}")
    k("s_waitcnt lgkmcnt(0)")
    k(f"s_add_u32 s22, s18, {4*128*32}")
    k(f"buffer_store_dwordx4 v[32:35], v8, s[12:15], s22 offen sc1")
    k.label(f"L{name}_P_st")
    for it in range(4):
        Rg = 16 + 4*it
        k(f"s_waitcnt lgkmcnt({max(0, 6 - 2*it)})" if False else "s_waitcnt lgkmcnt(0)") if it == 0 else None
        k(f"buffer_store_dwordx4 v[{Rg}:{Rg+3}], v8, s[12:15], s18 offen sc1")
        k(f"s_add_u32 s18, s18, {128*32}")
    k.label(f"L{name}_P_sig")
    k(f"""
    s_cmp_lg_u32 s21, 0
    s_cbranch_scc1 L{name}_P_w
    s_mov_b32 s22, 0
    """)
    k.label(f"L{name}_P_np")
    k(f"""
    buffer_load_dword v12, v13, s[28:31], 0 offen sc1
    s_waitcnt vmcnt(0)
    v_readfirstlane_b32 s23, v12
    s_cmp_lg_u32 s23, 0
    s_cbranch_scc1 L{name}_P_w
    s_add_u32 s22, s22, 1
    s_cmp_lt_u32 s22, 0x40000
    s_cbranch_scc0 L{name}_P_w
    s_sleep 4
    s_branch L{name}_P_np
    """)
    k.label(f"L{name}_P_w")
    k(f"""
    s_waitcnt vmcnt(0)
    s_barrier
    s_cmp_lg_u32 s21, 0
    s_cbranch_scc1 L{name}_end
    v_cmp_gt_u32 vcc, {R}, v1
    s_and_saveexec_b64 s[18:19], vcc
    v_lshlrev_b32 v6, 10, v1                     ; replica*1024
    s_lshl_b32 s22, s2, 2
    s_add_u32 s22, s22, {WS_FL}
    buffer_store_dword v12, v6, s[12:15], s22 offen sc1
    s_branch L{name}_end
    """)

def poll_flags(k, name, tag, srd_dbg, srd_ws, sleep, vA, vB, sT, R=8):
    k(f"""
    v_mov_b32 v{vB}, 0
    s_mov_b32 s{sT}, 0
    """)
    k.label(f"L{name}_{tag}_np")
    k(f"""
    buffer_load_dword v{vA}, v{vB}, s[{srd_dbg}:{srd_dbg+3}], 0 offen sc1
    s_waitcnt vmcnt(0)
    v_readfirstlane_b32 s{sT+1}, v{vA}
    s_cmp_lg_u32 s{sT+1}, 0
    s_cbranch_scc1 L{name}_{tag}_gotn
    s_add_u32 s{sT}, s{sT}, 1
    s_cmp_lt_u32 s{sT}, 0x40000
    s_cbranch_scc0 L{name}_{tag}_gotn
    s_sleep 4
    s_branch L{name}_{tag}_np
    """)
    k.label(f"L{name}_{tag}_gotn")
    k(f"""
    s_and_b32 s{sT+2}, s2, {R-1}
    s_lshl_b32 s{sT+2}, s{sT+2}, 10
    s_add_u32 s{sT+2}, s{sT+2}, {WS_FL}
    v_lshlrev_b32 v{vB}, 4, v1
    """)
    k.label(f"L{name}_{tag}_poll")
    k(f"""
    buffer_load_dwordx4 v[{vA}:{vA+3}], v{vB}, s[{srd_ws}:{srd_ws+3}], s{sT+2} offen sc1
    s_waitcnt vmcnt(0)
    v_cmp_ne_u32 vcc, s{sT+1}, v{vA}
    v_cmp_ne_u32 s[{sT+4}:{sT+5}], s{sT+1}, v{vA+1}
    s_or_b64 vcc, vcc, s[{sT+4}:{sT+5}]
    v_cmp_ne_u32 s[{sT+4}:{sT+5}], s{sT+1}, v{vA+2}
    s_or_b64 vcc, vcc, s[{sT+4}:{sT+5}]
    v_cmp_ne_u32 s[{sT+4}:{sT+5}], s{sT+1}, v{vA+3}
    s_or_b64 vcc, vcc, s[{sT+4}:{sT+5}]
    s_cbranch_vccz L{name}_{tag}_go
    s_add_u32 s{sT}, s{sT}, 1
    s_cmp_lt_u32 s{sT}, 0x40000
    s_cbranch_scc0 L{name}_{tag}_go
    s_sleep {sleep}
    s_branch L{name}_{tag}_poll
    """)
    k.label(f"L{name}_{tag}_go")

def role_B(k, name, opts):
    if opts.get("bxcd", True):
        BMAP = """s_and_b32 s18, s26, 7
    s_mul_i32 s18, s18, 9
    s_lshr_b32 s19, s26, 3
    s_cmp_ge_u32 s19, 9
    s_cselect_b32 s20, 1, 0
    s_cselect_b32 s27, 9, 0
    s_sub_u32 s19, s19, s27
    s_add_u32 s18, s18, s19                     ; cidx"""
    else:
        BMAP = """s_cmp_ge_u32 s26, 72
    s_cselect_b32 s19, 72, 0
    s_cselect_b32 s20, 1, 0
    s_sub_u32 s18, s26, s19                     ; cidx"""
    k(f"""
    s_load_dwordx4 s[4:7], s[0:1], 64
    s_load_dwordx2 s[24:25], s[0:1], 80         ; w_down
    s_load_dwordx4 s[32:35], s[0:1], 96
    s_sub_u32 s26, s2, {NP+NV}
    {BMAP}
    v_lshrrev_b32 v1, 3, v0                     ; rg
    v_and_b32 v2, 7, v0                         ; c
    v_mul_u32_u24 v3, 9216, v1
    v_lshl_add_u32 v3, v2, 4, v3
    s_waitcnt lgkmcnt(0)
    s_cmp_eq_u32 s20, 1
    s_cselect_b32 s8, s6, s4
    s_cselect_b32 s9, s7, s5
    s_mov_b32 s10, {576*9216}
    s_mov_b32 s11, 0x20000
    """)
    srd(k, 12, 34, 35, WS_END)
    if opts.get("codepf"):
        k(f"""
        s_getpc_b64 s[44:45]
        L{name}_pc:
        s_add_u32 s44, s44, k3_kernel-L{name}_pc
        s_addc_u32 s45, s45, 0
        s_lshr_b32 s46, s26, 3
        s_min_u32 s46, s46, {opts.get("codepf")-1}
        s_lshl_b32 s46, s46, 13
        v_and_b32 v60, 63, v0
        v_lshlrev_b32 v60, 7, v60
        v_add_u32 v60, s46, v60
        global_load_dword v92, v60, s[44:45]
        """)
        if opts.get("kdpf"):
            k(f"""
            s_getpc_b64 s[44:45]
            s_add_u32 s44, s44, Lkd_start@rel32@lo+4
            s_addc_u32 s45, s45, Lkd_start@rel32@hi+12
            v_and_b32 v60, 3, v0
            v_lshlrev_b32 v60, 6, v60
            global_load_dword v93, v60, s[44:45]
            """)
    if opts.get("tlbpf"):
        k(f"""
        s_and_b32 s44, s26, 7
        s_mul_i32 s44, s44, 1152
        s_lshr_b32 s45, s26, 3
        s_lshl_b32 s45, s45, 6
        s_add_u32 s44, s44, s45
        s_lshl_b32 s44, s44, 12
        s_add_u32 s44, s44, {WS_PART}
        v_and_b32 v60, 63, v0
        v_lshlrev_b32 v60, 12, v60
        buffer_load_dword v94, v60, s[12:15], s44 offen
        """)
    if opts.get("bwait", True):
        srd(k, 36, 32, 33, 256)
        k(f"v_and_b32 v1, 63, v0\nv_lshrrev_b32 v60, 6, v0\ns_nop 0\nv_readfirstlane_b32 s40, v60\ns_nop 3\ns_cmp_lg_u32 s40, 0\ns_cbranch_scc1 L{name}_B_nopoll")
        if opts.get("bone"):
            k(f"""
            v_mov_b32 v64, 0
            s_mov_b32 s41, 0
            """)
            k.label(f"L{name}_B1_nc")
            k(f"""
            buffer_load_dword v60, v64, s[36:39], 0 offen sc1
            s_waitcnt vmcnt(0)
            v_readfirstlane_b32 s42, v60
            s_cmp_lg_u32 s42, 0
            s_cbranch_scc1 L{name}_B1_ok
            s_add_u32 s41, s41, 1
            s_cmp_lt_u32 s41, 0x10000
            s_cbranch_scc0 L{name}_B1_ok
            s_sleep 8
            s_branch L{name}_B1_nc
            """)
            k.label(f"L{name}_B1_ok")
            k(f"""
            s_and_b32 s43, s2, 7
            s_lshl_b32 s43, s43, 10
            s_add_u32 s43, s43, {WS_FL}
            v_and_b32 v64, {opts["bone"]-1}, v1
            s_and_b32 s44, s26, 31
            s_lshl_b32 s44, s44, 3
            v_add_u32 v64, s44, v64
            v_and_b32 v64, 255, v64
            v_lshlrev_b32 v64, 2, v64
            """)
            k.label(f"L{name}_B1_pl")
            k(f"""
            buffer_load_dword v60, v64, s[12:15], s43 offen sc1
            s_waitcnt vmcnt(0)
            v_cmp_ne_u32 vcc, s42, v60
            s_cbranch_vccz L{name}_B1_go
            s_add_u32 s41, s41, 1
            s_cmp_lt_u32 s41, 0x10000
            s_cbranch_scc0 L{name}_B1_go
            s_sleep {opts.get("bsleep", 16)}
            s_branch L{name}_B1_pl
            """)
            k.label(f"L{name}_B1_go")
        elif not opts.get("tags"):
            poll_flags(k, name, "B", 36, 12, opts.get("bsleep", 16), 60, 64, 40, opts.get("R", 8))
        else:
            k(f"""
            v_mov_b32 v64, 0
            s_mov_b32 s41, 0
            """)
            k.label(f"L{name}_B_nc")
            k(f"""
            buffer_load_dword v60, v64, s[36:39], 0 offen sc1
            s_waitcnt vmcnt(0)
            v_readfirstlane_b32 s42, v60
            s_cmp_lg_u32 s42, 0
            s_cbranch_scc1 L{name}_B_nok
            s_add_u32 s41, s41, 1
            s_cmp_lt_u32 s41, 0x10000
            s_cbranch_scc0 L{name}_B_nok
            s_sleep 8
            s_branch L{name}_B_nc
            """)
            k.label(f"L{name}_B_nok")
            k(f"""
            v_and_b32 v64, 7, v1
            v_lshlrev_b32 v64, 5, v64
            v_add_u32 v64, 31, v64                      ; rb = 31, 63, ..., 255
            v_mul_u32_u24 v64, {576*64}, v64
            s_lshl_b32 s43, s26, 8
            s_add_u32 s43, s43, {WS_UX2}
            """)
            k.label(f"L{name}_B_pl")
            k(f"""
            buffer_load_dwordx4 v[60:63], v64, s[12:15], s43 offen sc1
            s_waitcnt vmcnt(0)
            v_cmp_ne_u32 vcc, s42, v62
            s_cbranch_vccz L{name}_B_pok
            s_add_u32 s41, s41, 1
            s_cmp_lt_u32 s41, 0x10000
            s_cbranch_scc0 L{name}_B_pok
            s_sleep {opts.get("bsleep", 16)}
            s_branch L{name}_B_pl
            """)
            k.label(f"L{name}_B_pok")
        if opts.get("bprio"): k(f"s_setprio {opts['bprio']}")
        k.label(f"L{name}_B_nopoll")
        k("s_barrier\nv_lshrrev_b32 v1, 3, v0")
    k("s_lshl_b32 s21, s18, 7")
    BD = opts.get("bdepth", 18)
    def bload(i):
        k(f"buffer_load_dwordx4 v[{16+4*i}:{16+4*i+3}], v3, s[8:11], s21 offen")
        if i < 17: k(f"s_add_u32 s21, s21, {32*9216}")
    for i in range(BD): bload(i)
    NPF = 0
    if opts.get("wdpf"):
        NPF = 2
        srd(k, 28, 24, 25, 4608*1152)
        k(f"""
        s_mul_i32 s27, s26, {288*128}
        v_lshlrev_b32 v14, 7, v0
        buffer_load_dword v90, v14, s[28:31], s27 offen
        v_cmp_gt_u32 vcc, 32, v0
        v_add_u32 v15, {256*128}, v14
        v_mov_b32 v91, 0x7fffffff
        v_cndmask_b32 v15, v91, v15, vcc
        buffer_load_dword v91, v15, s[28:31], s27 offen
        """)
    for i in range(18):
        issued = min(18, BD + i)
        k(f"s_waitcnt vmcnt({issued - 1 - i + NPF})")
        if BD + i < 18: bload(BD + i)
        for d in range(4):
            r = 16+4*i+d
            if i == 0:
                k(f"v_lshlrev_b32 v{4+2*d}, 16, v{r}\nv_and_b32 v{5+2*d}, 0xffff0000, v{r}")
            else:
                k(f"v_lshlrev_b32 v12, 16, v{r}\nv_and_b32 v13, 0xffff0000, v{r}\nv_add_f32 v{4+2*d}, v{4+2*d}, v12\nv_add_f32 v{5+2*d}, v{5+2*d}, v13")
    k(f"""
    v_lshlrev_b32 v12, 8, v1
    v_lshl_add_u32 v12, v2, 5, v12
    ds_write_b128 v12, v[4:7]
    ds_write_b128 v12, v[8:11] offset:16
    s_waitcnt lgkmcnt(0)
    s_barrier
    v_cmp_gt_u32 vcc, 64, v0
    s_and_saveexec_b64 s[22:23], vcc
    s_cbranch_execz L{name}_end
    v_lshlrev_b32 v12, 2, v0
    """)
    for i in range(32):
        k(f"ds_read_b32 v{16+i}, v12 offset:{256*i}")
        if i in (14, 29): k("s_waitcnt lgkmcnt(0)")
    k("s_waitcnt lgkmcnt(0)")
    for st in (16, 8, 4, 2, 1):
        for i in range(st): k(f"v_add_f32 v{16+i}, v{16+i}, v{16+i+st}")
    k(f"""
    v_cvt_pk_bf16_f32 v13, v16, v16
    v_and_b32 v14, 0xffff0000, v13
    v_sub_f32 v14, v16, v14
    v_cvt_pk_bf16_f32 v14, v14, v14
    v_and_b32 v13, 0xffff, v13
    v_and_b32 v14, 0xffff0000, v14
    v_or_b32 v13, v13, v14
    s_lshl_b32 s22, s18, 6
    v_add_u32 v15, s22, v0                      ; f
    s_mov_b32 s22, 14913081
    v_mul_hi_u32 v16, v15, s22                  ; j
    v_mul_u32_u24 v17, 288, v16
    v_sub_u32 v17, v15, v17                     ; local
    v_and_b32 v18, 1, v16
    v_lshlrev_b32 v19, 5, v18
    v_sub_u32 v19, v17, v19
    v_cmp_gt_i32 vcc, 0, v19
    v_add_u32 v20, 288, v19
    s_nop 0
    v_cndmask_b32 v19, v19, v20, vcc
    v_lshrrev_b32 v20, 4, v19
    v_and_b32 v19, 15, v19
    v_lshl_add_u32 v19, v16, 4, v19
    v_mul_u32_u24 v19, 36, v19
    v_lshl_add_u32 v19, v20, 1, v19
    v_add_u32 v19, s20, v19
    v_lshlrev_b32 v12, 2, v19
    s_mov_b32 s21, {WS_CS}
    buffer_store_dword v13, v12, s[12:15], s21 offen
    s_branch L{name}_end
    """)

def role_V(k, name, opts):
    k(f"""
    s_load_dwordx4 s[4:7], s[0:1], 8
    s_load_dwordx4 s[24:27], s[0:1], 24
    s_load_dwordx4 s[28:31], s[0:1], 40
    s_load_dwordx4 s[48:51], s[0:1], 96
    s_sub_u32 s16, s2, {NP}
    s_and_b32 s18, s16, 7
    s_mul_i32 s18, s18, 72
    s_lshr_b32 s16, s16, 3
    s_add_u32 s16, s16, s18
    v_and_b32 v1, 63, v0                        ; lane
    v_lshrrev_b32 v2, 6, v0                     ; wave
    v_and_b32 v3, 1, v2
    v_lshl_add_u32 v4, v3, 6, v1                ; n
    v_lshlrev_b32 v5, 1, v4                     ; n*2
    v_xor_b32 v6, 128, v5
    v_readfirstlane_b32 s17, v2
    s_lshl_b32 s18, s16, 8                      ; d*256
    s_lshl_b32 s19, s16, 1
    v_mov_b32 v7, s19
    s_waitcnt lgkmcnt(0)
    """)
    srd(k, 8, 4, 5, 576*256); srd(k, 12, 6, 7, 576*256); srd(k, 32, 24, 25, 576*256); srd(k, 36, 26, 27, 576*256)
    srd(k, 40, 28, 29, 576*2); srd(k, 52, 30, 31, 576*2); srd(k, 44, 50, 51, WS_END); srd(k, 56, 48, 49, 256)
    k("""
    buffer_load_ushort v8, v5, s[8:11], s18 offen
    buffer_load_ushort v14, v7, s[40:43], 0 offen
    buffer_load_ushort v9, v5, s[12:15], s18 offen
    buffer_load_ushort v10, v5, s[32:35], s18 offen
    buffer_load_ushort v11, v5, s[36:39], s18 offen
    buffer_load_ushort v12, v6, s[32:35], s18 offen
    buffer_load_ushort v13, v6, s[36:39], s18 offen
    buffer_load_ushort v62, v7, s[52:55], 0 offen       ; D_skip
    """)
    for i in range(8):
        sh = {0: 0, 1: 1, 2: 2, 3: 2}.get(i, 3)
        r = 40 + i
        if sh == 0: k(f"v_lshlrev_b32 v{r}, 2, v0")
        else:
            k(f"""
            v_add_u32 v38, {256*i}, v0
            v_bfe_u32 v39, v38, {sh}, 1
            v_add_u32 v38, v38, v39
            v_add_u32 v38, {(1 << (sh-1)) - 1}, v38
            v_lshrrev_b32 v38, {sh}, v38
            v_lshlrev_b32 v{r}, {sh+2}, v38
            """)
    k("s_waitcnt vmcnt(0)")
    for r in (8, 9, 10, 11, 12, 13, 14, 62): k(f"v_lshlrev_b32 v{r}, 16, v{r}")
    k(f"""
    v_mul_f32 v14, {f2u(LOG2E):#x}, v14
    v_mul_f32 v8, {f2u(LOG2E):#x}, v8
    v_exp_f32 v14, v14
    v_exp_f32 v8, v8
    v_add_f32 v15, |v10|, |v11|
    v_add_f32 v16, |v12|, |v13|
    v_add_f32 v15, v15, v16
    """)
    bf16r(k, 14, 14); bf16r(k, 8, 8)
    k("""
    s_nop 1
    v_add_f32_dpp v15, v15, v15 quad_perm:[1,0,3,2] row_mask:0xf bank_mask:0xf
    s_nop 1
    v_add_f32_dpp v15, v15, v15 quad_perm:[2,3,0,1] row_mask:0xf bank_mask:0xf
    s_nop 1
    v_add_f32_dpp v15, v15, v15 row_half_mirror row_mask:0xf bank_mask:0xf
    s_nop 1
    v_add_f32_dpp v15, v15, v15 row_mirror row_mask:0xf bank_mask:0xf
    s_nop 1
    v_readlane_b32 s20, v15, 0
    v_readlane_b32 s21, v15, 16
    v_readlane_b32 s22, v15, 32
    v_readlane_b32 s23, v15, 48
    s_nop 1
    v_mov_b32 v15, s20
    v_add_f32 v15, s21, v15
    v_add_f32 v15, s22, v15
    v_add_f32 v15, s23, v15
    v_mul_f32 v15, v15, v14
    v_add_f32 v15, v15, v15
    v_frexp_exp_i32_f32 v16, v15
    v_sub_u32 v17, 13, v16
    v_mov_b32 v18, 1.0
    v_ldexp_f32 v19, v18, v17                    ; S
    v_sub_u32 v17, 0, v17
    v_ldexp_f32 v63, v18, v17
    """)
    k(f"""
    v_mul_f32 v8, v8, v14
    v_mul_f32 v9, v9, v14
    v_mul_f32 v8, {f2u(-LOG2E):#x}, v8
    v_mul_f32 v9, 0.15915494, v9
    """)
    AL, BE = 8, 9
    def direct(dr, di, p, t0=21, t1=22):
        k(f"""
        v_mul_f32 v{t0}, {f2u(float(p)):#x}, v{AL}
        v_mul_f32 v{t1}, {f2u(float(p)):#x}, v{BE}
        v_exp_f32 v{t0}, v{t0}
        v_fract_f32 v{t1}, v{t1}
        s_nop 0
        v_cos_f32 v{dr}, v{t1}
        v_sin_f32 v{di}, v{t1}
        s_nop 0
        v_mul_f32 v{dr}, v{dr}, v{t0}
        v_mul_f32 v{di}, v{di}, v{t0}
        """)
    k("v_lshlrev_b32 v23, 2, v4")
    def put(tab, row, re, im, neg=False, tmp=24):
        if neg: k(f"v_cvt_pk_f16_f32 v{tmp}, v{re}, -v{im}")
        else: k(f"v_cvt_pk_f16_f32 v{tmp}, v{re}, v{im}")
        k(f"ds_write_b32 v23, v{tmp} offset:{tab + row*TP}")
    k(f"s_cmp_ge_u32 s17, 2\ns_cbranch_scc1 L{name}_V_part1")
    direct(30, 31, 1); direct(32, 33, 16)
    k("""
    v_mul_f32 v25, v19, v14
    v_add_f32 v25, v25, v25
    v_mul_f32 v34, v10, v25
    v_mul_f32 v35, v11, v25
    v_mov_b32 v26, 1.0
    v_mov_b32 v27, 0
    """)
    fr, fi, er, ei = 34, 35, 26, 27
    for r in range(16):
        put(TA, r, fr, fi, neg=True, tmp=24)
        put(TB, r, er, ei, tmp=25)
        if r < 15:
            nf = 36 if fr == 34 else 34; ne = 28 if er == 26 else 26
            cmul(k, nf, nf+1, fr, fi, 32, 33)
            cmul(k, ne, ne+1, er, ei, 30, 31)
            fr, fi, er, ei = nf, nf+1, ne, ne+1
    k(f"s_branch L{name}_V_join")
    k.label(f"L{name}_V_part1")
    direct(30, 31, 2); direct(32, 33, 256)
    cmul(k, 34, 35, 30, 31, 30, 31)
    cmul(k, 36, 37, 34, 35, 34, 35)
    cmul(k, 38, 39, 32, 33, 32, 33)
    cmul(k, 48, 49, 38, 39, 38, 39)
    cmul(k, 50, 51, 48, 49, 48, 49)
    put(TB, 40, 50, 51)
    cr_, ci_ = 32, 33
    put(TB, 16, cr_, ci_)
    for c in range(1, 8):
        n_ = 52 if cr_ != 52 else 54
        cmul(k, n_, n_+1, cr_, ci_, 30, 31); cr_, ci_ = n_, n_+1
        put(TB, 16 + c, cr_, ci_, tmp=24 + (c & 1))
    cmul(k, 56, 57, 38, 39, 32, 33)
    for base, (b0, b1) in ((24, (38, 39)), (28, (56, 57))):
        cr_, ci_ = b0, b1
        put(TB, base, cr_, ci_)
        for c in range(1, 4):
            n_ = 52 if cr_ != 52 else 54
            cmul(k, n_, n_+1, cr_, ci_, 34, 35); cr_, ci_ = n_, n_+1
            put(TB, base + c, cr_, ci_, tmp=24 + (c & 1))
    cr_, ci_ = 48, 49
    for g in range(4):
        put(TB, 32 + 2*g, cr_, ci_)
        cmul(k, 58, 59, cr_, ci_, 36, 37)
        put(TB, 32 + 2*g + 1, 58, 59, tmp=25)
        if g < 3:
            n_ = 52 if cr_ != 52 else 54
            cmul(k, n_, n_+1, cr_, ci_, 32, 33); cr_, ci_ = n_, n_+1
    k.label(f"L{name}_V_join")
    k("s_waitcnt lgkmcnt(0)\ns_barrier")
    k(f"""
    v_and_b32 v4, 15, v1                          ; a / col / b
    v_lshrrev_b32 v5, 4, v1                       ; q
    s_cmp_ge_u32 s17, 3
    s_cbranch_scc1 L{name}_V_skipmm
    v_mul_u32_u24 v26, {TP}, v4
    v_lshl_add_u32 v26, v5, 4, v26
    s_mul_i32 s20, s17, {16*TP}
    v_add_u32 v27, s20, v26
    """)
    for t in range(8):
        k(f"ds_read_b128 v[{64+8*t}:{64+8*t+3}], v26 offset:{TA + 64*t}")
        k(f"ds_read_b128 v[{68+8*t}:{68+8*t+3}], v27 offset:{TB + 64*t}")
        if t == 6: k("s_waitcnt lgkmcnt(8)")
    k(f"""
    v_mov_b32 v32, v4
    s_cmp_eq_u32 s17, 0
    s_cbranch_scc1 L{name}_V_oready
    s_cmp_eq_u32 s17, 1
    s_cbranch_scc0 L{name}_V_t2
    v_lshlrev_b32 v33, 1, v4
    v_add_u32 v33, 256, v33
    v_and_b32 v34, 3, v4
    v_lshlrev_b32 v34, 2, v34
    v_bfe_u32 v35, v4, 2, 1
    v_lshlrev_b32 v35, 8, v35
    v_add_u32 v34, v34, v35
    v_add_u32 v34, 512, v34
    v_cmp_gt_u32 vcc, 8, v4
    s_nop 1
    v_cndmask_b32 v32, v34, v33, vcc
    s_branch L{name}_V_oready
    """)
    k.label(f"L{name}_V_t2")
    k(f"""
    v_lshrrev_b32 v33, 1, v4
    v_lshlrev_b32 v33, 8, v33
    v_and_b32 v34, 1, v4
    v_lshl_add_u32 v33, v34, 3, v33
    v_add_u32 v33, 1024, v33
    v_cmp_gt_u32 vcc, 9, v4
    v_mov_b32 v34, 2052
    s_nop 0
    v_cndmask_b32 v32, v34, v33, vcc
    """)
    k.label(f"L{name}_V_oready")
    k(f"""
    v_lshl_add_u32 v33, v5, 6, v32
    v_min_u32 v34, 2100, v33
    v_add_u32 v35, 16, v33
    v_min_u32 v35, 2100, v35
    v_add_u32 v36, 32, v33
    v_min_u32 v36, 2100, v36
    v_add_u32 v37, 48, v33
    v_min_u32 v37, 2100, v37
    v_lshlrev_b32 v34, 2, v34
    v_lshlrev_b32 v35, 2, v35
    v_lshlrev_b32 v36, 2, v36
    v_lshlrev_b32 v37, 2, v37
    """)
    for t in range(8):
        k(f"s_waitcnt lgkmcnt({min(15, 2*(7-t))})")
        C = "0" if t == 0 else "v[28:31]"
        k(f"v_mfma_f32_16x16x32_f16 v[28:31], v[{64+8*t}:{64+8*t+3}], v[{68+8*t}:{68+8*t+3}], {C}")
    k(f"""
    s_nop 7
    ds_write_b32 v34, v28 offset:{KT}
    ds_write_b32 v35, v29 offset:{KT}
    ds_write_b32 v36, v30 offset:{KT}
    ds_write_b32 v37, v31 offset:{KT}
    """)
    k.label(f"L{name}_V_skipmm")
    k("s_waitcnt lgkmcnt(0)\ns_barrier")
    if opts.get("tags"): k("v_mov_b32 v58, 0\nbuffer_load_dword v57, v58, s[56:59], 0 offen sc1")
    for i in range(8): k(f"ds_read_b32 v{48+i}, v{40+i} offset:{KT}")
    k(f"""
    v_mov_b32 v16, 0
    v_mov_b32 v17, 0
    v_mov_b32 v18, 0
    v_mov_b32 v19, 0
    v_lshlrev_b32 v14, 4, v0                   ; tid*16
    v_cmp_gt_u32 vcc, 160, v0
    s_and_saveexec_b64 s[22:23], vcc
    ds_write_b128 v14, v[16:19]
    s_mov_b64 exec, s[22:23]
    v_cmp_gt_u32 vcc, 32, v0
    v_lshrrev_b32 v15, 3, v0
    v_mul_u32_u24 v15, {CS}, v15
    v_and_b32 v20, 7, v0
    v_lshl_add_u32 v15, v20, 4, v15
    s_and_saveexec_b64 s[22:23], vcc
    ds_write_b128 v15, v[16:19] offset:{KB}
    s_mov_b64 exec, s[22:23]
    v_lshlrev_b32 v15, 1, v0
    s_waitcnt lgkmcnt(0)
    """)
    for i in range(8):
        k(f"v_cvt_f16_f32 v{48+i}, v{48+i}")
        k(f"ds_write_b16 v15, v{48+i} offset:{KB + 128 + 512*i}")
    k("s_waitcnt lgkmcnt(0)\ns_barrier")
    k(f"""
    ds_read_b128 v[24:27], v14 offset:{KB + 128}
    ds_read_b64 v[22:23], v14 offset:{KB + 120}
    """)
    if not opts.get("tags"):
        k(f"""
        s_cmp_lg_u32 s17, 0
        s_cbranch_scc1 L{name}_V_nopoll
        """)
        poll_flags(k, name, "V", 56, 44, opts.get("vsleep", 4), 56, 21, 60, opts.get("R", 8))
    k.label(f"L{name}_V_nopoll")
    k(f"""
    s_waitcnt lgkmcnt(0)
    v_alignbit_b32 v28, v23, v22, 16
    v_alignbit_b32 v29, v24, v23, 16
    v_alignbit_b32 v30, v25, v24, 16
    v_alignbit_b32 v31, v26, v25, 16
    v_alignbit_b32 v32, v27, v26, 16
    v_mov_b32 v36, v29
    v_mov_b32 v37, v30
    v_mov_b32 v38, v31
    v_mov_b32 v39, v32
    v_mov_b32 v40, v23
    v_mov_b32 v41, v24
    v_mov_b32 v42, v25
    v_mov_b32 v43, v26
    ds_write_b128 v14, v[28:31] offset:{KB + 3*CS + 128}
    ds_write_b128 v14, v[36:39] offset:{KB + 1*CS + 128}
    ds_write_b128 v14, v[40:43] offset:{KB + 2*CS + 128}
    s_barrier
    """)
    if opts.get("tags"):
        k(f"""
        v_mul_u32_u24 v20, {576*64}, v0
        s_lshl_b32 s19, s16, 6
        s_add_u32 s19, s19, {WS_UX2}               ; + d*64
        v_lshrrev_b32 v56, 3, v0
        v_mul_u32_u24 v56, 160, v56
        v_and_b32 v49, 7, v0
        v_lshl_add_u32 v56, v49, 4, v56
        v_lshlrev_b32 v7, 3, v4
        v_lshrrev_b32 v21, 1, v5
        v_add_u32 v7, v7, v21
        s_lshl_b32 s25, s17, 1
        v_add_u32 v7, s25, v7
        v_mul_u32_u24 v7, {576*64}, v7
        v_and_b32 v21, 1, v5
        v_lshl_add_u32 v7, v21, 4, v7              ; + (q&1)*16
        s_add_u32 s25, s19, 32
        s_add_u32 s26, s25, {128*576*64}
        v_lshlrev_b32 v6, 7, v4
        v_lshl_add_u32 v6, v5, 3, v6               ; h^T offset: a*128 + q*8
        s_lshl_b32 s23, s17, 5                     ; mb*32
        s_lshl_b32 s24, s16, 12
        s_add_u32 s24, s24, s23
        s_mov_b32 s60, 0
        """)
        k.label(f"L{name}_V_nc")
        k(f"""
        s_waitcnt vmcnt(0)
        v_readfirstlane_b32 s61, v57
        s_cmp_lg_u32 s61, 0
        s_cbranch_scc1 L{name}_V_nok
        s_add_u32 s60, s60, 1
        s_cmp_lt_u32 s60, 0x40000
        s_cbranch_scc0 L{name}_V_nok
        s_sleep 2
        buffer_load_dword v57, v58, s[56:59], 0 offen sc1
        s_branch L{name}_V_nc
        """)
        k.label(f"L{name}_V_nok")
        k(f"s_xor_b32 s62, s61, {TAGX:#x}")
        k.label(f"L{name}_V_ld")
        k(f"""
        buffer_load_dwordx4 v[44:47], v20, s[44:47], s19 offen sc1
        buffer_load_dwordx4 v[48:51], v20, s[44:47], s19 offen offset:16 sc1
        buffer_load_dwordx4 v[8:11], v7, s[44:47], s25 offen sc1
        buffer_load_dwordx4 v[52:55], v7, s[44:47], s26 offen sc1
        s_waitcnt vmcnt(0)
        v_cmp_ne_u32 vcc, s61, v46
        v_cmp_ne_u32 s[64:65], s62, v47
        s_or_b64 vcc, vcc, s[64:65]
        v_cmp_ne_u32 s[64:65], s61, v50
        s_or_b64 vcc, vcc, s[64:65]
        v_cmp_ne_u32 s[64:65], s62, v51
        s_or_b64 vcc, vcc, s[64:65]
        v_cmp_ne_u32 s[64:65], s61, v10
        s_or_b64 vcc, vcc, s[64:65]
        v_cmp_ne_u32 s[64:65], s62, v11
        s_or_b64 vcc, vcc, s[64:65]
        v_cmp_ne_u32 s[64:65], s61, v54
        s_or_b64 vcc, vcc, s[64:65]
        v_cmp_ne_u32 s[64:65], s62, v55
        s_or_b64 vcc, vcc, s[64:65]
        s_cbranch_vccz L{name}_V_ldok
        s_add_u32 s60, s60, 1
        s_cmp_lt_u32 s60, 0x40000
        s_cbranch_scc0 L{name}_V_ldok
        s_sleep {opts.get("vsleep", 4)}
        s_branch L{name}_V_ld
        """)
        k.label(f"L{name}_V_ldok")
        k(f"""
        v_mov_b32 v10, v52
        v_mov_b32 v11, v53
        ds_write_b64 v56, v[44:45] offset:{UD}
        ds_write_b64 v56, v[48:49] offset:{UD + 8}
        """)
    else:
        k(f"""
        v_mul_u32_u24 v20, {576*32}, v0
        s_lshl_b32 s19, s16, 5
        s_add_u32 s19, s19, {WS_UX}                ; + d*32
        buffer_load_dwordx4 v[44:47], v20, s[44:47], s19 offen sc1
        v_lshrrev_b32 v48, 3, v0
        v_mul_u32_u24 v48, 160, v48
        v_and_b32 v49, 7, v0
        v_lshl_add_u32 v48, v49, 4, v48
        v_lshlrev_b32 v7, 3, v4
        v_lshrrev_b32 v21, 1, v5
        v_add_u32 v7, v7, v21
        s_lshl_b32 s25, s17, 1
        v_add_u32 v7, s25, v7                      ; 8a + 2mb + (q>>1)
        v_mul_u32_u24 v7, {576*32}, v7
        v_and_b32 v21, 1, v5
        v_lshl_add_u32 v7, v21, 3, v7
        s_add_u32 s25, s19, 16
        buffer_load_dwordx2 v[8:9], v7, s[44:47], s25 offen sc1
        s_add_u32 s25, s25, {128*576*32}
        buffer_load_dwordx2 v[10:11], v7, s[44:47], s25 offen sc1
        v_lshlrev_b32 v6, 7, v4
        v_lshl_add_u32 v6, v5, 3, v6               ; h^T offset: a*128 + q*8
        s_lshl_b32 s23, s17, 5                     ; mb*32
        s_lshl_b32 s24, s16, 12
        s_add_u32 s24, s24, s23
        """)
    k(f"""
    v_bfe_u32 v52, v1, 2, 2
    v_mul_u32_u24 v52, {CS}, v52
    v_and_b32 v53, 3, v1
    v_lshl_add_u32 v52, v53, 3, v52
    v_lshlrev_b32 v53, 4, v5
    v_sub_u32 v52, v52, v53
    s_lshl_b32 s27, s17, 9
    s_add_u32 s27, s27, {KB + 128 - 64 - 8}
    v_add_u32 v12, s27, v52                    ; A base
    v_mul_u32_u24 v53, 160, v4
    v_lshl_add_u32 v53, v5, 4, v53
    s_mul_i32 s27, s17, {4*160}
    s_sub_u32 s27, {UD - 3*160}, s27
    v_add_u32 v13, s27, v53                    ; B base
    {"" if opts.get("tags") else "s_waitcnt vmcnt(2)"}
    {"" if opts.get("tags") else f"ds_write_b128 v48, v[44:47] offset:{UD}"}
    s_waitcnt lgkmcnt(0)
    s_barrier
    """)
    ACC = 16; BSET = [48, 64]; A1, A2 = 80, 104; RNG = 6
    def loadsB(si):
        L = []
        for na in range(2):
            for kk in range(2):
                r = BSET[si & 1] + 4*(2*na + kk)
                L.append(f"ds_read_b128 v[{r}:{r+3}], v13 offset:{(16*na + 3 - si)*160 + 64*kk}")
        return L
    def loadsA(tas):
        L = []
        for ta in tas:
            for rng in range(2):
                base = (A1 if rng == 0 else A2) + 4*(ta % RNG)
                for i in range(2):
                    L.append(f"ds_read_b64_tr_b16 v[{base+2*i}:{base+2*i+1}], v12 offset:{32*ta + 8*(1-i) + (2048 if rng else 0)}")
        return L
    k("v_mov_b32 v14, v62\nv_mov_b32 v15, v63")
    L0 = loadsB(0) + loadsA(range(0, 6))
    for n, l in enumerate(L0):
        k(l)
        if n in (11, 19): k("s_waitcnt lgkmcnt(4)")
    first = {}
    def mfmas(si, kk, mbs):
        out = []
        Bb = BSET[si & 1]
        for mb in mbs:
            ta = 4*si + 2 + mb - 2*kk
            for rng, na, bsel in ((0, 0, 0), (0, 1, 1), (1, 1, 0)):
                acc = ACC + 8*mb + 4*na
                A = (A1 if rng == 0 else A2) + 4*(ta % RNG)
                B = Bb + 4*(2*bsel + kk)
                C = f"v[{acc}:{acc+3}]" if (mb, na) in first else "0"
                first[(mb, na)] = 1
                out.append(f"v_mfma_f32_16x16x32_f16 v[{acc}:{acc+3}], v[{A}:{A+3}], v[{B}:{B+3}], {C}")
        return out
    for si in range(4):
        k("s_waitcnt lgkmcnt(0)")
        for m in mfmas(si, 1, range(4)): k(m)
        if si < 3:
            for l in loadsB(si + 1) + loadsA([4*si + 6, 4*si + 7]): k(l)
        for m in mfmas(si, 0, range(2)): k(m)
        mm = mfmas(si, 0, range(2, 4))
        if si < 3:
            k("s_waitcnt lgkmcnt(6)")
            for l in loadsA([4*si + 8, 4*si + 9]): k(l)
        for m in mm: k(m)
    k(f"""
    s_barrier
    v_lshlrev_b32 v12, 4, v1
    s_mul_i32 s27, s17, {6*1024}
    v_add_u32 v12, s27, v12
    """)
    for mb in range(4):
        k(f"s_cmp_eq_u32 s17, {mb}\ns_cbranch_scc1 L{name}_skw{mb}")
        k(f"s_sub_u32 s28, {mb + 3}, s17\ns_and_b32 s28, s28, 3\ns_lshl_b32 s28, s28, 11\nv_add_u32 v13, s28, v12")
        for na in range(2):
            acc = ACC + 8*mb + 4*na
            k(f"ds_write_b128 v13, v[{acc}:{acc+3}] offset:{RED + na*1024}")
        k.label(f"L{name}_skw{mb}")
    for mb in range(4):
        k(f"s_cmp_lg_u32 s17, {mb}\ns_cbranch_scc1 L{name}_mv{mb}")
        for i in range(8): k(f"v_mov_b32 v{48+i}, v{ACC+8*mb+i}")
        k.label(f"L{name}_mv{mb}")
    k("s_waitcnt lgkmcnt(0)\ns_barrier")
    k("v_lshlrev_b32 v12, 4, v1")
    for t in range(3):
        k(f"""
        s_sub_u32 s28, s17, {1+t}
        s_and_b32 s28, s28, 3
        s_mul_i32 s28, s28, {6*1024}
        s_add_u32 s28, s28, {t*2048}
        v_add_u32 v13, s28, v12
        ds_read_b128 v[{56+8*t}:{56+8*t+3}], v13 offset:{RED}
        ds_read_b128 v[{60+8*t}:{60+8*t+3}], v13 offset:{RED+1024}
        """)
    k(f"""
    v_mul_u32_u24 v13, 160, v4
    v_lshl_add_u32 v13, v5, 3, v13
    v_add_u32 v13, s23, v13
    ds_read_b64 v[80:81], v13 offset:{UD}
    ds_read_b64 v[82:83], v13 offset:{UD + 16*160}
    s_waitcnt vmcnt(0) lgkmcnt(0)
    """)
    for t in range(3):
        for i in range(8): k(f"v_add_f32 v{48+i}, v{48+i}, v{56+8*t+i}")
    for na in range(2):
        Y = 48 + 4*na
        for p in range(2):
            y0, y1 = Y + 2*p, Y + 2*p + 1
            ur = 80 + 2*na + p; xr = 8 + 2*na + p
            k(f"""
            v_mul_f32 v{y0}, v{y0}, v15
            v_mul_f32 v{y1}, v{y1}, v15
            v_cvt_pk_bf16_f32 v84, v{y0}, v{y1}
            v_cvt_f32_f16 v85, v{ur}
            v_cvt_f32_f16_sdwa v86, v{ur} dst_sel:DWORD dst_unused:UNUSED_PAD src0_sel:WORD_1
            v_mul_f32 v85, v85, v14
            v_mul_f32 v86, v86, v14
            v_cvt_pk_bf16_f32 v85, v85, v86
            v_lshlrev_b32 v86, 16, v84
            v_and_b32 v84, 0xffff0000, v84
            v_lshlrev_b32 v87, 16, v85
            v_and_b32 v85, 0xffff0000, v85
            v_add_f32 v86, v86, v87
            v_add_f32 v84, v84, v85
            v_cvt_pk_bf16_f32 v84, v86, v84
            v_lshlrev_b32 v86, 16, v84
            v_and_b32 v84, 0xffff0000, v84
            v_lshlrev_b32 v87, 16, v{xr}
            v_and_b32 v85, 0xffff0000, v{xr}
            v_add_f32 v86, v86, v87
            v_add_f32 v84, v84, v85
            v_cvt_pk_bf16_f32 v{88 + 2*na + p}, v86, v84
            """)
    k(f"""
    s_add_u32 s25, s24, {WS_HT}
    buffer_store_dwordx2 v[88:89], v6, s[44:47], s25 offen
    buffer_store_dwordx2 v[90:91], v6, s[44:47], s25 offen offset:2048
    """)

def gen_ka(name="ka_kernel", opts=None):
    opts = opts or {}
    k = K(name)
    if opts.get("selfpf", True):
        k(f"""
        s_getpc_b64 s[4:5]
        L{name}_pc0:
        v_lshlrev_b32 v1, 7, v0
        v_min_u32 v1, {opts.get("selfpf_bytes", 14336) - 128}, v1
        global_load_dword v127, v1, s[4:5]
        """)
    k(f"""
    s_cmp_ge_u32 s2, {NP+NV+NB}
    s_cbranch_scc1 L{name}_end
    s_cmp_ge_u32 s2, {NP+NV}
    s_cbranch_scc1 L{name}_B
    s_cmp_ge_u32 s2, {NP}
    s_cbranch_scc1 L{name}_V
    """)
    role_P(k, name, opts)
    k.label(f"L{name}_B")
    role_B(k, name, opts)
    k.label(f"L{name}_V")
    role_V(k, name, opts)
    k.label(f"L{name}_end")
    k("s_endpgm")
    return k
if __name__ == "__main__":
    from asmlib import build_file
    k = gen_ka()
    build_file("mb/ka.s", [(k, 128, 80, 128)], [("ka_kernel", NP+NV+NB, 256, KA_LDS)])
```

```python
from gen_k3 import WS_END
def instrument2(k, slot, marks, sbase=70):
    name = k.name
    lines = k.lines
    out = []
    n = 0
    out.append(f"    s_memrealtime s[{sbase}:{sbase+1}]")
    out.append(f"    s_mov_b32 s{sbase+24}, s2")
    for i in range(1, 12): out.append(f"    s_mov_b32 s{sbase+2*i}, 0")
    mi = 0
    for l in lines:
        out.append(l)
        if mi < len(marks) and marks[mi] is not None and marks[mi] in l:
            mi += 1
            out.append(f"    s_memrealtime s[{sbase+2*mi}:{sbase+2*mi+1}]")
    assert mi == len(marks), (mi, marks)
    idx = max(i for i, l in enumerate(out) if l.startswith(f"L{name}_end:"))
    last = len(marks) + 1
    tail = f"""
    s_mov_b64 exec, -1
    s_waitcnt vmcnt(0) lgkmcnt(0)
    s_memrealtime s[{sbase+2*last}:{sbase+2*last+1}]
    s_load_dwordx2 s[{sbase+26}:{sbase+27}], s[0:1], 104
    s_waitcnt lgkmcnt(0)
    v_mov_b32 v6, 0
    """
    for i in range(last + 1):
        tail += f"v_writelane_b32 v6, s{sbase+2*i}, {i}\n"
    tail += f"""
    v_lshrrev_b32 v3, 6, v0
    v_and_b32 v4, 63, v0
    s_lshl_b32 s{sbase+25}, s{sbase+24}, 8
    s_add_u32 s{sbase+25}, s{sbase+25}, {WS_END + slot*262144}
    s_add_u32 s{sbase+26}, s{sbase+26}, s{sbase+25}
    s_addc_u32 s{sbase+27}, s{sbase+27}, 0
    v_lshlrev_b32 v3, 6, v3
    v_lshl_add_u32 v3, v4, 2, v3
    v_cmp_gt_u32 vcc, 16, v4
    s_and_saveexec_b64 s[{sbase+28}:{sbase+29}], vcc
    global_store_dword v3, v6, s[{sbase+26}:{sbase+27}]
    s_waitcnt vmcnt(0)
    """
    new = ["    " + l.strip() for l in tail.strip().split("\n") if l.strip()]
    out[idx+1:idx+1] = new
    k.lines = out
```

```python
import sys
from asmlib import build_file
from gen_ka import gen_ka, NP, NV, NB, KA_LDS
from gen_k3b import gen_k3b, LDS_BYTES
from gen_k3 import WS_END
from gen_k4 import gen_k4
from instr2 import instrument2
def mk(fn, which, wg):
    KO = {"bwait": True, "codepf": 7, "bone": 1, "bsleep": 24, "vsleep": 8}
    ka = gen_ka(opts=KO); k3 = gen_k3b(); k4 = gen_k4(v2=True, nine=True)
    k3.lines = [l + ' sc1' if ('buffer_store_dwordx4' in l and 's[88:91]' not in l) else l for l in k3.lines]
    if which == "V":
        instrument2(ka, 0, ["s_sub_u32 s16, s2, 256", "buffer_load_ushort v62", "v_mul_f32 v14, 0x3fb8aa3b, v14", "Lka_kernel_V_join:", "Lka_kernel_V_skipmm:", "Lka_kernel_V_gotn:", "Lka_kernel_V_nopoll:", "v_mov_b32 v14, v62", "s_mul_i32 s27, s17, 6144"])
    elif which == "P":
        instrument2(ka, 0, ["s_waitcnt lgkmcnt(0)", "v_mov_b32 v99, 0", "v_dot2_f32_bf16 v10", "v_rcp_f32 v11, v11", "s_barrier", "Lka_kernel_P_sig:", "Lka_kernel_P_w:", "s_barrier"])
    else:
        instrument2(ka, 0, ["s_sub_u32 s26, s2", "Lka_kernel_B1_go:", "s_waitcnt vmcnt(17)", "s_waitcnt vmcnt(0)", "s_barrier"])
    idx = max(i for i, l in enumerate(k4.lines) if "s_endpgm" in l)
    c = f"""
    s_mov_b64 exec, -1
    s_cmp_lg_u32 s2, 0
    s_cbranch_scc1 Ldiag_done
    v_lshrrev_b32 v3, 6, v0
    s_nop 0
    v_readfirstlane_b32 s26, v3
    s_nop 3
    s_cmp_lg_u32 s26, 0
    s_cbranch_scc1 Ldiag_done
    s_load_dwordx4 s[40:43], s[0:1], 96
    s_waitcnt lgkmcnt(0)
    s_mov_b32 s44, s42
    s_mov_b32 s45, s43
    s_mov_b32 s46, {WS_END + 4*262144}
    s_mov_b32 s47, 0x20000
    s_mov_b32 s48, s40
    s_mov_b32 s49, s41
    s_mov_b32 s50, 256
    s_mov_b32 s51, 0x20000
    v_and_b32 v4, 63, v0
    v_lshlrev_b32 v5, 2, v4
    s_mov_b32 s52, {WS_END + wg*256}
    buffer_load_dword v6, v5, s[44:47], s52 offen sc1
    v_mov_b32 v7, 0
    s_mov_b32 s52, {WS_END}
    buffer_load_dword v8, v7, s[44:47], s52 offen sc1
    s_waitcnt vmcnt(0)
    v_sub_u32 v6, v6, v8
    v_cmp_gt_u32 vcc, 16, v4
    s_and_saveexec_b64 s[54:55], vcc
    buffer_store_dword v6, v5, s[48:51], 0 offen
    s_waitcnt vmcnt(0)
    Ldiag_done:
    """
    k4.lines[idx:idx] = [(l.strip() if l.strip().endswith(":") else "    " + l.strip()) for l in c.strip().split("\n")]
    ks = [(ka, 128, 102, 128), (k3, 512, 102, 256), (k4, 104, 102, 104)]
    build_file(fn, ks, [("ka_kernel", NP+NV+NB, 256, KA_LDS), ("k3_kernel", 256, 256, LDS_BYTES), ("k4_kernel", 256, 576, 98304)])
mk("d_V1.s", "V", 300)
mk("d_V2.s", "V", 800)
mk("d_P.s", "P", 100)
mk("d_B.s", "B", 900)
```

```python
from asmlib import K
import math, struct
from gen_k3 import (WS_HT, WS_CS, WS_PART, WS_DBG, WS_END, WS_SC, K0C, K1C, f2u, VmTracker)
WS_CNT = WS_SC
PSZ = 2048*576*2

UNIT = 12288
NUNIT = 12
LDS_BYTES = UNIT*NUNIT

def gen_k3b(name="k3_kernel", LA=6, RING=8, opts=None):
    opts = opts or {}
    LA = opts.get("LA", LA); RING = opts.get("RING", RING)
    k = K(name)
    vm = VmTracker(63); lg = VmTracker(15)
    vLANE = 0
    vDA = [1, 2, 3]
    vDH = [4, 5, 6]
    vDD = [7, 8, 9]
    vC0, vC1, vS2 = [10, 11], [12, 13], [14, 15]
    vST = 16
    vRB = list(range(17, 33))
    vLH = 33
    vLH1 = 34
    vTMP = list(range(35, 48))
    vACC = [48, 112]
    vH = 176
    vT = 248
    vX = list(range(112, 118))
    vXL = [118, 119]
    vXB = [120, 121]
    vS1 = [122, 123]; vS2s = [124, 125]; vONE = 126; vTA = [127, 128, 129, 130]
    aX = 0; aR = 144; aCS = aR + 4*RING; aBM = aCS + 38
    aONE = aBM + 16
    assert aONE + 4 <= 256 and aCS % 2 == 0 and aBM % 2 == 0
    sWM = 8; sWD = 12; sWS = 16
    sW, sJ, sMT = 20, 21, 22
    sW1F, sW1H, sM1 = 23, 24, 25
    sD, sMD = 26, 27
    sDw = 28
    sSO = 32; sPART = 33; sXO, sMX = 34, 35
    sT0, sT1, sT2, sT3 = 36, 37, 38, 39
    nst = [0]
    def stamp():
        if not opts.get("stamps"): return
        k("s_memrealtime s[60:61]" if opts.get("rt") else "s_memtime s[60:61]")
        k("s_waitcnt lgkmcnt(0)")
        k(f"s_mov_b32 s{62 + nst[0]}, s60")
        lg.done = len(lg.q)
        nst[0] += 1
    k(f"""
    s_cmp_ge_u32 s2, 256
    s_cbranch_scc1 L{name}_end
    s_load_dwordx4 s[4:7], s[0:1], 64
    s_load_dwordx2 s[40:41], s[0:1], 80        ; w_down
    s_load_dwordx2 s[42:43], s[0:1], 104       ; ws
    s_load_dwordx2 s[88:89], s[0:1], 88        ; out
    v_lshrrev_b32 v{vTMP[0]}, 6, v0
    v_and_b32 v{vLANE}, 63, v0
    s_nop 0
    v_readfirstlane_b32 s{sW}, v{vTMP[0]}
    """)
    MAP4 = opts.get("map4", False)
    sROT = 95
    if not MAP4:
        k(f"""
        s_and_b32 s{sT0}, s2, 7
        s_lshr_b32 s{sT1}, s2, 3
        s_and_b32 s{sT2}, s{sT1}, 1                 ; parity
        s_lshl_b32 s{sJ}, s{sT0}, 1
        s_add_u32 s{sJ}, s{sJ}, s{sT2}              ; split j
        s_lshr_b32 s{sMT}, s{sT1}, 1                ; m tile
        s_mul_i32 s{sROT}, s{sT2}, {3 if opts.get('rot') else 0}
        """)
    else:
        k(f"""
        s_and_b32 s{sT0}, s2, 7
        s_lshr_b32 s{sT1}, s2, 3
        s_and_b32 s{sT2}, s{sT1}, 3                 ; js
        s_lshr_b32 s{sJ}, s{sT0}, 1
        s_lshl_b32 s{sJ}, s{sJ}, 2
        s_add_u32 s{sJ}, s{sJ}, s{sT2}
        s_and_b32 s{sMT}, s{sT0}, 1
        s_lshl_b32 s{sMT}, s{sMT}, 3
        s_lshr_b32 s{sT1}, s{sT1}, 2
        s_add_u32 s{sMT}, s{sMT}, s{sT1}
        s_lshl_b32 s{sT2}, s{sT2}, 2
        s_lshr_b32 s{sROT}, {opts.get("rotpat", 0x5320)}, s{sT2}
        s_and_b32 s{sROT}, s{sROT}, 15              ; rotation
        """)
    t0, t1, t2, t3, t4, t5, t6 = vTMP[0:7]
    k(f"""
    v_lshrrev_b32 v{t0}, 4, v{vLANE}            ; row 0..3
    v_bfe_u32 v{t1}, v{vLANE}, 1, 3             ; unit32
    v_and_b32 v{t2}, 1, v{vLANE}
    v_lshlrev_b32 v{t2}, 4, v{t2}               ; (sigma16&1)*16
    v_lshlrev_b32 v{t3}, 12, v{t0}              ; row*4096
    v_add_u32 v{t3}, v{t3}, v{t2}
    v_xor_b32 v{t4}, v{t1}, v{t0}               ; par 0
    v_xor_b32 v{t5}, 4, v{t4}                   ; par 1
    v_lshl_add_u32 v{t4}, v{t4}, 5, v{t3}
    v_lshl_add_u32 v{t5}, v{t5}, 5, v{t3}
    """)
    for tp in range(6):
        src = t4 if tp % 2 == 0 else t5
        k(f"v_add_u32 v{vX[tp]}, {(tp % 3)*(4*4096-1024)}, v{src}")
    k(f"""
    v_lshrrev_b32 v{t0}, 3, v{vLANE}
    v_bfe_u32 v{t1}, v{vLANE}, 1, 2
    v_bfe_u32 v{t2}, v{vLANE}, 4, 2
    v_xor_b32 v{t1}, v{t1}, v{t2}
    v_and_b32 v{t2}, 1, v{vLANE}
    v_lshlrev_b32 v{t2}, 4, v{t2}
    v_lshl_add_u32 v{t1}, v{t1}, 5, v{t2}
    v_mul_u32_u24 v{t2}, 9216, v{t0}
    v_add_u32 v{vDA[0]}, v{t2}, v{t1}
    v_mul_u32_u24 v{t2}, 1152, v{t0}
    v_add_u32 v{vDD[0]}, v{t2}, v{t1}
    v_lshrrev_b32 v{t0}, 2, v{vLANE}
    v_bfe_u32 v{t1}, v{vLANE}, 1, 1
    v_bfe_u32 v{t2}, v{vLANE}, 4, 1
    v_xor_b32 v{t1}, v{t1}, v{t2}
    v_and_b32 v{t2}, 1, v{vLANE}
    v_lshlrev_b32 v{t2}, 4, v{t2}
    v_lshl_add_u32 v{t1}, v{t1}, 5, v{t2}
    v_mul_u32_u24 v{t2}, 9216, v{t0}
    v_add_u32 v{vDH[0]}, v{t2}, v{t1}
    """)
    for i in range(1, 3):
        k(f"v_add_u32 v{vDA[i]}, {i*(8*9216-1024)}, v{vDA[0]}")
        k(f"v_add_u32 v{vDD[i]}, {i*(8*1152-1024)}, v{vDD[0]}")
        k(f"v_add_u32 v{vDH[i]}, {i*(16*9216-1024)}, v{vDH[0]}")
    k(f"""
    s_mul_i32 s{sXO}, s{sW}, {24*4096}
    s_lshl_b32 s{sT0}, s{sMT}, 8
    s_add_u32 s{sXO}, s{sXO}, s{sT0}
    s_add_u32 s{sXO}, s{sXO}, {WS_HT}           ; X: + (96p + 24w + 12u)*4096
    s_mul_i32 s{sMX}, s{sW}, {6*1024}
    s_and_b32 s{sT2}, s{sJ}, 1                  ; parity
    s_mul_i32 s{sT0}, s{sJ}, 288                ; F0
    s_lshl_b32 s{sT1}, s{sT2}, 5
    s_add_u32 s{sT1}, s{sT0}, s{sT1}            ; FG0
    s_xor_b32 s{sT3}, s{sT2}, 1
    s_lshl_b32 s{sT3}, s{sT3}, 8
    s_add_u32 s{sT3}, s{sT0}, s{sT3}            ; FH
    s_and_b32 s46, s{sW}, 1
    s_lshr_b32 s47, s{sW}, 1
    ; phase 1: waves 0,1 -> gate unit, waves 2,3 -> up unit. each wave 6 instr: rows 48*(w&1) + 8*t (full) ; rows 96*(w&1)+16t (half)
    s_mul_i32 s{sW1F}, s46, {48*9216}
    s_lshl_b32 s48, s{sT1}, 1
    s_add_u32 s{sW1F}, s{sW1F}, s48
    s_mul_i32 s{sW1H}, s46, {96*9216}
    s_lshl_b32 s48, s{sT3}, 1
    s_add_u32 s{sW1H}, s{sW1H}, s48
    s_mul_i32 s{sM1}, s47, {UNIT}
    s_mul_i32 s48, s46, 6144
    s_add_u32 s{sM1}, s{sM1}, s48
    """)
    sWq = list(range(76, 82)); sXq = list(range(82, 88)); sW1Hq = [92, 93, 94]
    for q in range(6):
        k(f"""
        s_add_u32 s48, s{sROT}, {q}
        s_cmp_ge_u32 s48, 6
        s_cselect_b32 s49, 6, 0
        s_sub_u32 s48, s48, s49
        s_mul_i32 s49, s48, {96*9216}
        s_add_u32 s{sWq[q]}, s{sW1F}, s49
        s_mul_i32 s49, s48, {96*4096}
        s_add_u32 s{sXq[q]}, s{sXO}, s49
        """)
    for q in range(3):
        k(f"""
        s_add_u32 s48, s46, {2*q}
        s_add_u32 s48, s48, s{sROT}
        s_cmp_ge_u32 s48, 6
        s_cselect_b32 s49, 6, 0
        s_sub_u32 s48, s48, s49
        s_mul_i32 s48, s48, {96*9216}
        s_lshl_b32 s49, s{sT3}, 1
        s_add_u32 s{sW1Hq[q]}, s48, s49
        """)
    sDb = [50, 51, 52, 53, 54]
    for n, (rho_add, tcomp) in enumerate(((0, 0), (96, 0), (192, 0), (200, 1), (208, 2))):
        k(f"""
        s_mul_i32 s48, s{sW}, 24
        s_add_u32 s48, s48, {rho_add}
        s_lshl_b32 s49, s{sT2}, 5
        s_add_u32 s48, s48, s49
        s_cmp_ge_u32 s48, 288
        s_cselect_b32 s49, 288, 0
        s_sub_u32 s48, s48, s49
        s_add_u32 s48, s48, s{sT0}
        s_mul_i32 s{sDb[n]}, s48, 1152
        """)
        if tcomp: k(f"s_sub_u32 s{sDb[n]}, s{sDb[n]}, {tcomp*8*1152}")
    k(f"s_mul_i32 s{sMD}, s{sW}, 3072")
    k(f"""
    s_lshl_b32 s48, s{sJ}, 4
    s_add_u32 s48, s48, s{sMT}
    s_lshl_b32 s48, s48, 2
    s_add_u32 s48, s48, s{sW}
    s_mul_i32 s{sPART}, s48, {36*1024}
    s_add_u32 s{sPART}, s{sPART}, {WS_PART}
    v_lshlrev_b32 v{vST}, 4, v{vLANE}
    s_lshl_b32 s44, s{sT1}, 2
    s_add_u32 s44, s44, {WS_CS}
    s_lshl_b32 s45, s{sT3}, 2
    s_add_u32 s45, s45, {WS_CS}
    """)
    k("s_waitcnt lgkmcnt(0)")
    k(f"""
    s_cmp_ge_u32 s{sW}, 2
    s_cselect_b32 s{sWM}, s6, s4
    s_cselect_b32 s{sWM+1}, s7, s5
    s_mov_b32 s{sWM+2}, {576*4608*2}
    s_mov_b32 s{sWM+3}, 0x20000
    s_mov_b32 s{sWD}, s40
    s_mov_b32 s{sWD+1}, s41
    s_mov_b32 s{sWD+2}, {4608*576*2}
    s_mov_b32 s{sWD+3}, 0x20000
    s_mov_b32 s{sWS}, s42
    s_mov_b32 s{sWS+1}, s43
    s_mov_b32 s{sWS+2}, {WS_END}
    s_mov_b32 s{sWS+3}, 0x20000
    s_mov_b32 s90, {PSZ}
    s_mov_b32 s91, 0x20000
    """)
    stamp()
    def dma(voff, srd, i):
        off = f" offset:{i*1024}" if i else ""
        return f"buffer_load_dwordx4 v{voff}, s[{srd}:{srd+3}], s{sSO} offen{off} lds"
    items = []
    for p in range(6): items += [("X", p), ("W", p)]
    items += [("W", p) for p in range(6, 27)]
    items += [("D", p) for p in range(9)]
    upos = {}; u = 0
    for it in items:
        n = 3 if it[0] == "D" else 2
        upos[it] = u % NUNIT
        assert (u % NUNIT) + n <= NUNIT
        u += n
    uabs = {}; u = 0
    for it in items:
        n = 3 if it[0] == "D" else 2
        uabs[it] = (u, u + n); u += n
    def dma_ops(it):
        ty, p = it; base = upos[it]*UNIT
        ops = []
        if ty == "X":
            for g in range(2):
                ops.append(("s", [f"s_add_u32 s{sSO}, s{sXq[p]}, {(12*g)*4096}", f"s_add_u32 m0, s{sMX}, {base + g*3072}"]))
                for t in range(3): ops.append(("d", dma(vX[3*g+t], sWS, t)))
        elif ty == "W" and p < 24:
            grp, q = p // 6, p % 6
            for g in range(2):
                ops.append(("s", [f"s_add_u32 s{sSO}, s{sWq[q]}, {(24*g)*9216 + grp*128}", f"s_add_u32 m0, s{sM1}, {base + g*3072}"]))
                for t in range(3): ops.append(("d", dma(vDA[t], sWM, t)))
        elif ty == "W":
            q = p - 24
            for g in range(2):
                ops.append(("s", [f"s_add_u32 s{sSO}, s{sW1Hq[q]}, {(48*g)*9216}", f"s_add_u32 m0, s{sM1}, {base + g*3072}"]))
                for t in range(3): ops.append(("d", dma(vDH[t], sWM, t)))
        else:
            for u3 in range(2):
                ops.append(("s", [f"s_add_u32 s{sSO}, s{sDb[u3]}, {p*128}", f"s_add_u32 m0, s{sMD}, {base + u3*UNIT}"]))
                for t in range(3): ops.append(("d", dma(vDD[t], sWD, t)))
            for t in range(3):
                l = [f"s_add_u32 s{sSO}, s{sDb[2+t]}, {p*128}"]
                if t == 0: l.append(f"s_add_u32 m0, s{sMD}, {base + 2*UNIT}")
                ops.append(("s", l))
                ops.append(("d", dma(vDD[t], sWD, t)))
        return ops
    def emit_dma_all(it):
        for kind, x in dma_ops(it):
            if kind == "s":
                for l in x: k(l)
                k("s_nop 0")
            else:
                k(x); vm.issue(it)
    issued = []
    for it in items[:2]:
        emit_dma_all(it); issued.append(it)
    def cs_ops():
        L = [(1, f"v_and_b32 v{vTMP[10]}, 15, v{vLANE}"), (1, f"v_mul_u32_u24 v{vTMP[10]}, 144, v{vTMP[10]}"),
             (1, f"s_mul_i32 s44, s{sJ}, {16*144}"), (1, f"s_add_u32 s44, s44, {WS_CS}")]
        for n in range(9):
            off = f" offset:{16*n}" if n else ""
            L.append((1, ("load", f"buffer_load_dwordx4 a[{aCS+4*n}:{aCS+4*n+3}], v{vTMP[10]}, s[{sWS}:{sWS+3}], s44 offen{off}")))
        return L
    k(f"""
    v_bfe_u32 v{t0}, v{vLANE}, 2, 2             ; r'
    v_lshrrev_b32 v{t1}, 4, v{vLANE}            ; q
    v_lshl_add_u32 v{t2}, v{t1}, 2, v{t0}       ; rr = 4q + r'
    v_and_b32 v{t3}, 3, v{vLANE}
    v_lshlrev_b32 v{t3}, 3, v{t3}               ; 8c
    v_bfe_u32 v{t4}, v{t2}, 1, 2                ; g = (rr>>1)&3
    v_lshlrev_b32 v{t5}, 7, v{t2}
    v_add_u32 v{t5}, v{t5}, v{t3}
    v_lshl_add_u32 v{t5}, v{t4}, 5, v{t5}
    """)
    vLC0 = vTMP[7]
    k(f"v_mov_b32 v{vLC0}, v{t5}")
    def set_bases_p1():
        L = []
        for wdw in range(3):
            for ft in range(4):
                L.append(f"v_xor_b32 v{vRB[4*wdw+ft]}, {ft*32}, v{vLC0}")
                if wdw: L.append(f"v_add_u32 v{vRB[4*wdw+ft]}, {wdw*49152}, v{vRB[4*wdw+ft]}")
        return L
    def set_bases_p2():
        L = []
        for sl in range(4):
            for nt in range(4):
                L.append(f"v_xor_b32 v{vRB[4*sl+nt]}, {nt*32}, v{vLC0}")
                if sl: L.append(f"v_add_u32 v{vRB[4*sl+nt]}, {sl*36864}, v{vRB[4*sl+nt]}")
        return L
    for l in set_bases_p1(): k(l)
    k(f"""
    ; half lane const: rr*64 + ((q&1)*32) + 8c
    v_lshlrev_b32 v{t5}, 6, v{t2}
    v_add_u32 v{t5}, v{t5}, v{t3}
    v_and_b32 v{t6}, 1, v{t1}
    v_lshl_add_u32 v{vLH}, v{t6}, 5, v{t5}
    v_xor_b32 v{vLH1}, 32, v{vLH}
    ; X lane consts: rr*256 + (((2w+j) ^ (rr&7))*32) + 8c
    v_lshlrev_b32 v{t5}, 8, v{t2}
    v_add_u32 v{t5}, v{t5}, v{t3}
    v_and_b32 v{t6}, 7, v{t2}
    s_lshl_b32 s48, s{sW}, 1
    v_xor_b32 v{t6}, s48, v{t6}
    v_lshl_add_u32 v{vXL[0]}, v{t6}, 5, v{t5}
    v_xor_b32 v{vXL[1]}, 32, v{vXL[0]}
    v_mov_b32 v{vONE}, 0x3f803f80
    """)
    for e in range(4): k(f"v_accvgpr_write_b32 a{aONE+e}, v{vONE}")
    vD1 = [132, 136]; vD2 = [140, 144]
    def stats_mf(p):
        L = []
        for s_ in range(3):
            for j in range(2):
                xs = aX + 4*(2*(3*p+s_) + j)
                first = (p == 0 and s_ == 0)
                L.append(dict(fr=None, acc=vD1[j], A=f"a[{aONE}:{aONE+3}]", B=f"a[{xs}:{xs+3}]", first=first, S=1))
                L.append(dict(fr=None, acc=vD2[j], A=f"a[{xs}:{xs+3}]", B=f"a[{xs}:{xs+3}]", first=first, S=1))
        return L
    NS1 = 27; NS = 36
    def stage_item(st): return ("W", st) if st < NS1 else ("D", st - NS1)
    def acc_reg(st, tile):
        if st < 24: return vACC[(st // 6) % 2] + 4*tile
        if st < 27: return vACC[0] + 4*tile
        return vACC[1] + 32*((st - 27) % 2) + 4*tile
    mf = []; frags = []
    for st in range(NS):
        it = stage_item(st); base = upos[it]*UNIT
        if st < 24:
            grp, q = st // 6, st % 6
            wdw, rel = base // 49152, base % 49152
            for s in range(3):
                for ft in range(4):
                    for mat in range(2):
                        rd = [(vRB[4*wdw+ft], rel + mat*UNIT + s*4096 + i*2048) for i in range(2)]
                        fr = dict(st=st, rd=rd); frags.append(fr)
                        for j in range(2):
                            xs = aX + 4*(2*(3*q+s) + j)
                            mf.append(dict(st=st, fr=fr, acc=acc_reg(st, (ft*2+mat)*2+j), B=f"a[{xs}:{xs+3}]", first=(q == 0 and s == 0), needX=q))
            if grp == 0:
                sm = stats_mf(q)
                start = len(mf) - 48
                blk = mf[start:]; del mf[start:]
                if q == 5:
                    for x in sm: x["st"] = st
                    mf.extend(sm); mf.extend(blk)
                else:
                    for n_, b in enumerate(blk):
                        mf.append(b)
                        if n_ % 4 == 3 and sm:
                            x = sm.pop(0); x["st"] = st; mf.append(x)
                    assert not sm
            if q == 5:
                for ft in range(4):
                    for mat in range(2):
                        idx = 2*(4*grp + ft) + mat; w0 = aCS + (idx & ~1)
                        for j in range(2):
                            bm = aBM + 8*j + 4*(idx & 1)
                            mf.append(dict(st=st, fr=None, acc=acc_reg(st, (ft*2+mat)*2+j), A=f"a[{w0}:{w0+3}]", B=f"a[{bm}:{bm+3}]", first=False))
        elif st < 27:
            q = st - 24
            for s in range(6):
                for ft in range(2):
                    for mat in range(2):
                        rd = [("H%d" % ft, base + mat*UNIT + s*2048 + i*1024) for i in range(2)]
                        fr = dict(st=st, rd=rd); frags.append(fr)
                        for j in range(2):
                            xs = aX + 4*(2*(6*q+s) + j)
                            mf.append(dict(st=st, fr=fr, acc=acc_reg(st, (ft*2+mat)*2+j), B=f"a[{xs}:{xs+3}]", first=(q == 0 and s == 0)))
            if q == 2:
                for ft in range(2):
                    for mat in range(2):
                        idx = 2*(16 + ft) + mat; w0 = aCS + (idx & ~1)
                        for j in range(2):
                            bm = aBM + 8*j + 4*(idx & 1)
                            mf.append(dict(st=st, fr=None, acc=acc_reg(st, (ft*2+mat)*2+j), A=f"a[{w0}:{w0+3}]", B=f"a[{bm}:{bm+3}]", first=False))
        else:
            sl = upos[it] // 3
            for t in range(9):
                for nt in range(4):
                    rd = [(vRB[4*sl+nt], t*4096 + i*2048) for i in range(2)]
                    fr = dict(st=st, rd=rd); frags.append(fr)
                    for j in range(2):
                        h = vH + 8*t + 4*j
                        mf.append(dict(st=st, fr=fr, acc=acc_reg(st, nt*2+j), B=f"v[{h}:{h+3}]", first=(t == 0), needH=t))
    for n, fr in enumerate(frags):
        fr["n"] = n; fr["reg"] = aR + 4*(n % RING)
    vHB = [vTMP[8], vTMP[9]]
    def lg_room():
        if len(lg.q) - lg.done >= 15:
            k("s_waitcnt lgkmcnt(11)")
            lg.done = len(lg.q) - 11
    def emit_reads(fr, part=None):
        for i, (sel, off) in enumerate(fr["rd"]):
            if part is not None and i != part: continue
            if isinstance(sel, str):
                reg = vHB[int(sel[1])]; base = upos[stage_item(fr["st"])]*UNIT; off = off - base
            else: reg = sel
            assert 0 <= off < 65536, off
            r0 = fr["reg"] + 2*i
            lg_room()
            if not opts.get("noread"): k(f"ds_read_b64_tr_b16 a[{r0}:{r0+1}], v{reg} offset:{off}")
            lg.issue(("f", fr["n"]))
    def x_read_ops(p):
        base = upos[("X", p)]*UNIT
        L = [("v", f"v_add_u32 v{vXB[0]}, {base}, v{vXL[0]}"), ("v", f"v_add_u32 v{vXB[1]}, {base}, v{vXL[1]}")]
        for s in range(3):
            for j in range(2):
                for i in range(2):
                    r = aX + 4*(2*(3*p+s) + j) + 2*i
                    L.append(("x", f"ds_read_b64_tr_b16 a[{r}:{r+1}], v{vXB[j]} offset:{s*8192 + i*4096}"))
        return L
    def finalize_ops():
        ops = []
        m, va, tb, z = vTA[0], vTA[1], vTA[2], vTA[3]
        A = lambda s: ops.append((1, s))
        A("s_nop 7")
        A(f"v_bfe_u32 v{vS1[0]}, v{vLANE}, 2, 2")
        A(f"v_lshrrev_b32 v{vS1[1]}, 4, v{vLANE}")
        A(f"v_cmp_eq_u32 s[56:57], v{vS1[0]}, v{vS1[1]}")
        A(f"v_and_b32 v{vS1[0]}, 3, v{vLANE}")
        A(f"v_cmp_eq_u32 s[58:59], 1, v{vS1[0]}")
        A(f"v_cmp_eq_u32 s[30:31], 2, v{vS1[0]}")
        A(f"v_cmp_eq_u32 vcc, 3, v{vS1[0]}")
        A("s_nop 1")
        for j in range(2):
            s1, s2 = vD1[j], vS2s[j]
            d = vD2[j]
            A(f"v_cndmask_b32 v{s2}, v{d}, v{d+1}, s[58:59]")
            A(f"v_cndmask_b32 v{s2}, v{s2}, v{d+2}, s[30:31]")
            A(f"v_cndmask_b32 v{s2}, v{s2}, v{d+3}, vcc")
            A(f"v_cndmask_b32 v{s2}, 0, v{s2}, s[56:57]")
        for j in range(2):
            s1, s2 = vD1[j], vS2s[j]
            for r in (s2,):
                A(f"v_mov_b32 v{z}, v{r}"); A("s_nop 1"); A(f"v_permlane16_swap_b32 v{r}, v{z}"); A("s_nop 1"); A(f"v_add_f32 v{r}, v{r}, v{z}")
                A(f"v_mov_b32 v{z}, v{r}"); A("s_nop 1"); A(f"v_permlane32_swap_b32 v{r}, v{z}"); A("s_nop 1"); A(f"v_add_f32 v{r}, v{r}, v{z}")
            A(f"v_mul_f32 v{m}, {f2u(1.0/576):#x}, v{s1}")
            A(f"v_mul_f32 v{va}, {f2u(1.0/576):#x}, v{s2}")
            A(f"v_fma_f32 v{va}, -v{m}, v{m}, v{va}")
            A(f"v_max_f32 v{va}, 0, v{va}")
            A(f"v_cvt_pk_bf16_f32 v{tb}, v{m}, v{va}")
            A(f"v_and_b32 v{va}, 0xffff0000, v{tb}")
            A(f"v_add_f32 v{va}, {f2u(1e-5):#x}, v{va}")
            A(f"v_cvt_pk_bf16_f32 v{va}, v{va}, v{va}")
            A(f"v_and_b32 v{va}, 0xffff0000, v{va}")
            A(f"v_sqrt_f32 v{va}, v{va}"); A("s_nop 0")
            A(f"v_cvt_pk_bf16_f32 v{va}, v{va}, v{va}")
            A(f"v_and_b32 v{va}, 0xffff0000, v{va}")
            A(f"v_mul_f32 v{vS2[j]}, v{va}, v{va}")
            A(f"v_rcp_f32 v{va}, v{va}"); A("s_nop 0")
            A(f"v_mul_f32 v{vC0[j]}, {f2u(K0C):#x}, v{va}")
            A(f"v_mul_f32 v{vC1[j]}, v{va}, v{va}")
            A(f"v_mul_f32 v{vC1[j]}, v{vC1[j]}, v{va}")
            A(f"v_mul_f32 v{vC1[j]}, {f2u(K1C):#x}, v{vC1[j]}")
            A(f"v_and_b32 v{tb}, 0xffff, v{tb}")
            A(f"v_xor_b32 v{tb}, 0x8000, v{tb}")
            A(f"v_lshl_or_b32 v{tb}, v{tb}, 16, v{tb}")
            A(f"v_cmp_gt_u32 vcc, 16, v{vLANE}"); A("s_nop 1")
            A(f"v_cndmask_b32 v{tb}, 0, v{tb}, vcc")
            A(f"v_mov_b32 v{m}, 0"); A("s_nop 0")
            b0 = aBM + 8*j
            for e, src in enumerate((tb, m, m, m, m, tb, m, m)):
                A(f"v_accvgpr_write_b32 a{b0+e}, v{src}")
        A(f"v_accvgpr_write_b32 a{aCS+36}, v{m}"); A(f"v_accvgpr_write_b32 a{aCS+37}, v{m}")
        A("s_nop 1")
        return ops
    def gelu_ops(buf, nft, Hbase):
        ops = []
        n = 0
        for ft in range(nft):
            for j in range(2):
                for p in range(2):
                    T = vT + 4*(n % 2); n += 1
                    a0 = buf + 4*((ft*2+0)*2 + j) + 2*p; a1 = a0 + 1
                    b0 = buf + 4*((ft*2+1)*2 + j) + 2*p; b1 = b0 + 1
                    x0, x1, y0, y1 = T, T+1, T+2, T+3
                    hd = Hbase + 8*(ft >> 1) + 4*j + 2*(ft & 1) + p
                    if opts.get("pkgelu"):
                        sel = f"op_sel:[0,{j},{j}] op_sel_hi:[1,{j},{j}]"
                        c = opts.get("pkcost", 2)
                        ops += [(c, f"v_pk_mul_f32 v[{x0}:{x1}], v[{a0}:{a1}], v[{a0}:{a1}]"),
                                (c, f"v_pk_fma_f32 v[{x0}:{x1}], v[{x0}:{x1}], v[{vC1[0]}:{vC1[1]}], v[{vC0[0]}:{vC0[1]}] {sel}"),
                                (c, f"v_pk_mul_f32 v[{x0}:{x1}], v[{a0}:{a1}], v[{x0}:{x1}]"),
                                (2, f"v_exp_f32 v{x0}, v{x0}"), (2, f"v_exp_f32 v{x1}, v{x1}"),
                                (c, f"v_pk_mul_f32 v[{y0}:{y1}], v[{a0}:{a1}], v[{b0}:{b1}]"),
                                (c, f"v_pk_fma_f32 v[{x0}:{x1}], v[{x0}:{x1}], v[{vS2[0]}:{vS2[1]}], v[{vS2[0]}:{vS2[1]}] {sel}"),
                                (2, f"v_rcp_f32 v{x0}, v{x0}"), (2, f"v_rcp_f32 v{x1}, v{x1}"),
                                (1, "s_nop 0"),
                                (c, f"v_pk_mul_f32 v[{y0}:{y1}], v[{y0}:{y1}], v[{x0}:{x1}]"),
                                (1, f"v_cvt_pk_bf16_f32 v{hd}, v{y0}, v{y1}")]
                        continue
                    ops += [(1, f"v_mul_f32 v{x0}, v{a0}, v{a0}"), (1, f"v_mul_f32 v{x1}, v{a1}, v{a1}"),
                            (1, f"v_fma_f32 v{x0}, v{x0}, v{vC1[j]}, v{vC0[j]}"), (1, f"v_fma_f32 v{x1}, v{x1}, v{vC1[j]}, v{vC0[j]}"),
                            (1, f"v_mul_f32 v{x0}, v{a0}, v{x0}"), (1, f"v_mul_f32 v{x1}, v{a1}, v{x1}"),
                            (2, f"v_exp_f32 v{x0}, v{x0}"), (2, f"v_exp_f32 v{x1}, v{x1}"),
                            (1, f"v_mul_f32 v{y0}, v{a0}, v{b0}"), (1, f"v_mul_f32 v{y1}, v{a1}, v{b1}"),
                            (1, f"v_fma_f32 v{x0}, v{x0}, v{vS2[j]}, v{vS2[j]}"), (1, f"v_fma_f32 v{x1}, v{x1}, v{vS2[j]}, v{vS2[j]}"),
                            (2, f"v_rcp_f32 v{x0}, v{x0}"), (2, f"v_rcp_f32 v{x1}, v{x1}"),
                            (1, f"v_mul_f32 v{y0}, v{y0}, v{x0}"), (1, f"v_mul_f32 v{y1}, v{y1}, v{x1}"),
                            (1, f"v_cvt_pk_bf16_f32 v{hd}, v{y0}, v{y1}")]
        return ops
    def epi_ops(st):
        a = st - 27
        ops = []
        P = vACC[0]
        for ntp in range(2):
            for j in range(2):
                q = P + 4*(2*ntp + j)
                for h2 in range(2):
                    A = acc_reg(st, (2*ntp + h2)*2 + j)
                    ops.append((1, f"v_cvt_pk_bf16_f32 v{q+2*h2}, v{A}, v{A+1}"))
                    ops.append((1, f"v_cvt_pk_bf16_f32 v{q+2*h2+1}, v{A+2}, v{A+3}"))
                ops.append((1, "s_nop 1"))
                ops.append((1, f"v_permlane16_swap_b32 v{q}, v{q+2}"))
                ops.append((1, f"v_permlane16_swap_b32 v{q+1}, v{q+3}"))
                ops.append((1, f"s_add_u32 s{sT0}, s{sPART}, {(a*4 + ntp*2 + j)*1024}"))
                ops.append((1, ("store", f"buffer_store_dwordx4 v[{q}:{q+3}], v{vST}, s[{sWS}:{sWS+3}], s{sT0} offen", a)))
        return ops

    sCH, sHB, sOB, sCNT = 64, 65, 66, 45
    vZ, vCN, vHO, vOO = 3, 4, 5, 6
    def red_setup():
        t0_, t1_ = vTMP[11], vTMP[12]
        return f"""
        s_lshr_b32 s68, s{sJ}, 2                     ; w_src
        s_lshl_b32 s69, s{sMT}, 2
        s_add_u32 s68, s68, s69                      ; rowblk
        s_and_b32 s69, s{sJ}, 3                      ; r
        s_mul_i32 s{sCH}, s68, {36*1024}
        s_lshl_b32 s70, s69, 10
        s_add_u32 s{sCH}, s{sCH}, s70
        s_add_u32 s{sCH}, s{sCH}, {WS_PART}          ; + b*4096 + i*PSZ
        s_and_b32 s70, s69, 1                        ; jm
        s_lshr_b32 s71, s69, 1                       ; ntp
        s_lshl_b32 s72, s68, 1
        s_add_u32 s72, s72, s70
        s_lshl_b32 s{sHB}, s72, 5
        s_lshl_b32 s73, s71, 17
        s_add_u32 s{sHB}, s{sHB}, s73
        s_add_u32 s{sHB}, s{sHB}, {WS_HT}            ; + b*64*4096
        s_mul_i32 s{sOB}, s72, {16*1152}
        s_lshl_b32 s73, s71, 6
        s_add_u32 s{sOB}, s{sOB}, s73                ; + b*128
        v_and_b32 v{t0_}, 15, v{vLANE}
        v_bfe_u32 v{t1_}, v{vLANE}, 4, 1
        v_lshlrev_b32 v{t1_}, 1, v{t1_}
        v_lshrrev_b32 v{vHO}, 5, v{vLANE}
        v_add_u32 v{t1_}, v{t1_}, v{vHO}
        v_lshlrev_b32 v{vHO}, 15, v{t1_}
        v_lshl_add_u32 v{vHO}, v{t0_}, 1, v{vHO}
        v_mul_u32_u24 v{vOO}, 1152, v{t0_}
        v_lshl_add_u32 v{vOO}, v{t1_}, 4, v{vOO}
        v_mov_b32 v{vZ}, 0
        v_lshlrev_b32 v{vCN}, 2, v{vLANE}
        v_min_u32 v{vCN}, 32, v{vCN}
        """
    def early_loads():
        L = [("s", f"s_lshl_b32 s74, s{sW}, 12"), ("s", f"s_add_u32 s74, s74, s{sCH}")]
        for i in range(16):
            L.append(("l", f"buffer_load_dwordx4 a[{4*i}:{4*i+3}], v{vST}, s[{sWS}:{sWS+3}], s74 offen sc1"))
            if i < 15: L.append(("s", f"s_add_u32 s74, s74, {PSZ}"))
        L += [("s", f"s_lshl_b32 s74, s{sW}, 18"), ("s", f"s_add_u32 s74, s74, s{sHB}")]
        for i in range(8):
            L.append(("l", f"buffer_load_ushort a{64+i}, v{vHO}, s[{sWS}:{sWS+3}], s74 offen"))
            if i < 7: L.append(("s", "s_add_u32 s74, s74, 4096"))
        return L
    NINIT = opts.get("ninit", 4)
    for it in items[2:NINIT]:
        emit_dma_all(it)
    if opts.get("wpf", True):
        NMT = 8 if MAP4 else 16
        per = 384 // NMT // 2
        k(f"""
        s_and_b32 s56, s{sMT}, {NMT-1}
        s_mul_i32 s56, s56, {2*per}
        s_mul_i32 s57, s46, {per}
        s_add_u32 s56, s56, s57                      ; first line index in [0,384)
        s_mul_hi_u32 s57, s56, 44739243              ; /96
        s_mul_i32 s58, s57, 96
        s_sub_u32 s56, s56, s58
        s_cmp_eq_u32 s57, 0
        s_cselect_b32 s58, s{sWq[2]}, s{sWq[3]}
        s_cmp_eq_u32 s57, 2
        s_cselect_b32 s58, s{sWq[4]}, s58
        s_cmp_eq_u32 s57, 3
        s_cselect_b32 s58, s{sWq[5]}, s58
        s_mul_i32 s57, s46, {48*9216}
        s_sub_u32 s58, s58, s57
        s_mul_i32 s56, s56, 9216
        s_add_u32 s58, s58, s56
        v_mul_u32_u24 v{vTMP[11]}, 9216, v{vLANE}
        v_cmp_gt_u32 vcc, {per}, v{vLANE}
        v_mov_b32 v{vTMP[12]}, 0x7fffffff
        s_nop 0
        v_cndmask_b32 v{vTMP[11]}, v{vTMP[12]}, v{vTMP[11]}, vcc
        buffer_load_dword v{vTMP[12]}, v{vTMP[11]}, s[{sWM}:{sWM+3}], s58 offen
        """)
        vm.issue("PF")
    if opts.get("selfpf", True):
        k(f"""
        s_getpc_b64 s[56:57]
        L{name}_pc0:
        s_sub_u32 s56, s56, L{name}_pc0-{name}
        s_subb_u32 s57, s57, 0
        s_lshl_b32 s58, s{sW}, 13
        v_lshlrev_b32 v{vTMP[11]}, 7, v{vLANE}
        v_add_u32 v{vTMP[11]}, s58, v{vTMP[11]}
        global_load_dword v{vTMP[12]}, v{vTMP[11]}, s[56:57]
        v_add_u32 v{vTMP[11]}, 32768, v{vTMP[11]}
        v_min_u32 v{vTMP[11]}, {opts.get("selfpf_bytes", 54*1024)}, v{vTMP[11]}
        global_load_dword v{vTMP[12]}, v{vTMP[11]}, s[56:57]
        """)
        vm.issue("PF"); vm.issue("PF")
    n = vm.need(("W", 0)); k(f"s_waitcnt vmcnt({n})")
    k("s_barrier")
    stamp()
    for kind, l in x_read_ops(0): k(l)
    k("s_waitcnt lgkmcnt(0)")
    freed = {("X", 0): False}
    next_item = NINIT
    done_items = set()
    def can_issue(idx):
        it = items[idx]; lo, hi = uabs[it]
        for other in items[:idx]:
            a, b = uabs[other]
            if a < hi - NUNIT and b > lo - NUNIT and other not in done_items: return False
        return True
    stage_first = {}
    for idx, d in enumerate(mf): stage_first.setdefault(d["st"], idx)
    stage_len = {st: sum(1 for d in mf if d["st"] == st) for st in range(NS)}
    for f in range(LA): emit_reads(frags[f])
    fillers = []; rate = 0.0; credit = 0.0
    PPF_SCHED = opts.get("ppf_sched", {32: 0, 34: 2})
    sPSZ = 67
    k(f"s_mov_b32 s{sPSZ}, {PSZ}")
    eq = []
    mid_done = True
    xq = []; dmaq = []
    seen_frag = set()
    for idx, d in enumerate(mf):
        st = d["st"]; pos = idx - stage_first[st]
        if pos == 0:
            if opts.get("stamps") and (st < 7 or st in (18, 24, 27, 33)): stamp()
            MID = st < opts.get("midbar", 0)
            need = []
            if not MID:
                if st + 1 < NS: need.append(stage_item(st + 1))
                if st + 1 < 6: need.append(("X", st + 1))
            FUSE = opts.get("fuse", False)
            if FUSE and 30 <= st <= 35: need.append(("ST", st - 30))
            ns = [vm.need(x) for x in need if x in vm.q]
            assert all(x in vm.q for x in need), (st, need)
            assert not any(it in need for it, _ in dmaq), (st, need)
            ns = [x for x in ns if x is not None]
            if st >= 1 or True:
                if ns: k(f"s_waitcnt vmcnt({min(ns)})")
                if st >= 1 and st <= 5:
                    nn = lg.need(("x", st))
                    if nn is not None: k(f"s_waitcnt lgkmcnt({nn})")
                k("s_barrier")
            if FUSE and st == 29:
                k(f"v_mov_b32 v1, 0\nv_mov_b32 v2, 1")
                k(f"s_lshl_b32 s45, s{sMT}, 7\ns_add_u32 s45, s45, {WS_CNT}")
            if FUSE and 30 <= st <= 35:
                k(f"s_cmp_lg_u32 s{sW}, 0\ns_cbranch_scc1 L{name}_sg{st}")
                k(f"s_add_u32 s44, s45, {4*(st-30)}\ns_mov_b64 exec, 1")
                k(f"buffer_atomic_add v2, v1, s[{sWS}:{sWS+3}], s44 offen")
                k("s_mov_b64 exec, -1")
                k.label(f"L{name}_sg{st}")
            if st >= 1: done_items.add(stage_item(st - 1))
            if st <= 5: done_items.add(("X", st))
            while next_item < len(items) and can_issue(next_item):
                for op in dma_ops(items[next_item]): dmaq.append((items[next_item], op))
                next_item += 1
            if st + 1 < 6 and not MID: xq = x_read_ops(st + 1)
            mid_done = not MID
            if st < 6:
                if st >= 1 and False: pass
                assert not fillers, st
                fillers = []
                if st == 1: fillers = cs_ops()
                if st == 5: fillers = finalize_ops()
                span = stage_len[st] - (36 if st == 5 else 8)
                rate = sum(c for c, _ in fillers) / span; credit = -14*rate if st == 5 else 0
            elif st < 24 and st % 6 == 0:
                assert not fillers, st
                g = st // 6
                fillers = gelu_ops(vACC[(g-1) % 2], 4, vH + 16*(g-1))
                if g == 1 and opts.get("wdpf", True):
                    NMT = 8 if MAP4 else 16
                    perw = 2592 // NMT // 4 + (1 if (2592 // NMT) % 4 else 0)
                    pf = [(1, f"s_and_b32 s44, s{sMT}, {NMT-1}"), (1, f"s_mul_i32 s44, s44, {2592 // NMT}"), (1, f"s_mul_i32 s45, s{sW}, {perw}"),
                          (1, f"s_add_u32 s44, s44, s45"), (1, f"s_lshl_b32 s44, s44, 7"), (1, f"s_mul_i32 s45, s{sJ}, {288*1152}"), (1, f"s_add_u32 s44, s44, s45")]
                    for part in range((perw + 63) // 64):
                        pf += [(1, f"v_add_u32 v{vTMP[11]}, {64*part}, v{vLANE}"), (1, f"v_cmp_gt_u32 vcc, {perw}, v{vTMP[11]}"),
                               (1, f"v_lshlrev_b32 v{vTMP[11]}, 7, v{vTMP[11]}"), (1, f"v_mov_b32 v{vTMP[12]}, 0x7fffffff"), (1, "s_nop 0"),
                               (1, f"v_cndmask_b32 v{vTMP[11]}, v{vTMP[12]}, v{vTMP[11]}, vcc"),
                               (1, ("load", f"buffer_load_dword v{vTMP[10]}, v{vTMP[11]}, s[{sWD}:{sWD+3}], s44 offen"))]
                    fillers = pf + fillers
                span = sum(stage_len[s] for s in range(st, st + 6)) - 12
                rate = sum(c for c, _ in fillers) / span; credit = -6*rate
            elif st == 24:
                assert not fillers
                fillers = gelu_ops(vACC[1], 4, vH + 48)
                span = sum(stage_len[s] for s in range(24, 27)) - 12
                rate = sum(c for c, _ in fillers) / span; credit = -6*rate
            elif st == 27:
                assert not fillers
                fillers = gelu_ops(vACC[0], 2, vH + 64)
                span = 56; rate = sum(c for c, _ in fillers) / span; credit = -6*rate
            elif st > 27:
                assert not fillers, (st, len(fillers))
                fillers = epi_ops(st - 1)
                span = stage_len[st] - 16
                rate = sum(c for c, _ in fillers) / span; credit = -6*rate
            if st == 24:
                for l in [f"v_add_u32 v{vHB[0]}, PLACE, v{vLH}"]: pass
        PPF = opts.get("ppf", False) and not opts.get("fuse", False)
        if PPF and st == 30 and pos == 3:
            k(f"""
            v_lshrrev_b32 v3, 3, v{vLANE}
            v_mul_lo_u32 v3, v3, s{sPSZ}
            v_and_b32 v4, 7, v{vLANE}
            v_lshl_add_u32 v3, v4, 7, v3
            s_and_b32 s64, s2, 7                          ; xcd
            s_lshr_b32 s65, s2, 3                         ; t
            s_lshl_b32 s65, s65, 1
            s_lshr_b32 s66, s64, 2
            s_add_u32 s65, s65, s66
            s_mul_i32 s65, s65, 36
            s_and_b32 s66, s64, 3
            s_add_u32 s65, s65, s66
            s_lshl_b32 s65, s65, 10
            s_and_b32 s66, s{sW}, 1
            s_mul_i32 s66, s66, {8*PSZ}
            s_add_u32 s65, s65, s66
            s_lshr_b32 s66, s{sW}, 1
            s_lshl_b32 s66, s66, 12
            s_add_u32 s65, s65, s66
            s_add_u32 s65, s65, {WS_PART}
            """)
        if PPF and pos == 40 and st in PPF_SCHED:
            b0 = PPF_SCHED[st]
            k(f"s_add_u32 s66, s65, {b0*4096}")
            k(f"buffer_load_dword v4, v3, s[{sWS}:{sWS+3}], s66 offen"); vm.issue("PPF")
        EARLY = opts.get("fuse", False) and opts.get("early", True)
        if opts.get("fuse", False) and st == 33 and pos == 1:
            k(red_setup())
        if EARLY and st == 34 and pos == 50:
            k(f"buffer_load_dword v{vTMP[10]}, v{vCN}, s[{sWS}:{sWS+3}], s{sCNT} offen sc1"); vm.issue("SNAP")
        if EARLY and st == 35 and pos == 24:
            nn = vm.need("SNAP")
            if nn is not None: k(f"s_waitcnt vmcnt({nn})")
            k(f"v_readlane_b32 s59, v{vTMP[10]}, s{sW}")
            eq = early_loads()
        if EARLY and st == 35 and pos > 24 and eq:
            while eq:
                kind, l = eq.pop(0); k(l)
                if kind == "l":
                    vm.issue("EARLY"); break
        def flush_fillers():
            nonlocal fillers
            for c, l in fillers:
                if isinstance(l, tuple): k(l[1]); vm.issue(("ST", l[2]) if l[0] == "store" else "CS")
                else: k(l)
            fillers = []
        if st == 5 and d["fr"] is None and pos >= 12 and fillers: flush_fillers()
        if d.get("needH") == 8 and st == 27 and fillers:
            flush_fillers(); k("s_nop 1")
        fr = d["fr"]
        if fr is not None and fr["n"] not in seen_frag:
            seen_frag.add(fr["n"])
            f = fr["n"]
            WG = opts.get("wgran", 2)
            if f % WG == 0:
                tgt = min(f + WG - 1, len(frags) - 1)
                while tgt > f and not (lg.q.count(("f", tgt)) == 2): tgt -= 1
                nn = lg.need(("f", tgt))
            else: nn = lg.need(("f", f))
            if nn is not None: k(f"s_waitcnt lgkmcnt({nn})")
            firstuse = True
        else: firstuse = False
        skipm = (fr is None and opts.get("norank") and "S" not in d) or (fr is None and opts.get("nostat") and "S" in d)
        A = d["A"] if fr is None else f"a[{fr['reg']}:{fr['reg']+3}]"
        C = "0" if d["first"] else f"v[{d['acc']}:{d['acc']+3}]"
        if not skipm: k(f"v_mfma_f32_16x16x32_bf16 v[{d['acc']}:{d['acc']+3}], {A}, {d['B']}, {C}")
        if st == 23 and pos == 4 or (st in (24, 25) and pos == 4):
            nb = upos[stage_item(st + 1)]*UNIT
            pass
        if fr is not None:
            nf = fr["n"] + LA
            if nf < len(frags):
                nfr = frags[nf]
                if (not mid_done) and firstuse and frags[min(nf + opts.get("midlead", 4), len(frags) - 1)]["st"] != st:
                    need2 = [stage_item(st + 1)] + ([("X", st + 1)] if st + 1 < 6 else [])
                    assert all(x in vm.q for x in need2) and not any(it in need2 for it, _ in dmaq), (st, need2)
                    ns2 = [x for x in (vm.need(y) for y in need2) if x is not None]
                    if ns2: k(f"s_waitcnt vmcnt({min(ns2)})")
                    k("s_barrier")
                    if st + 1 < 6: xq = x_read_ops(st + 1)
                    mid_done = True
                if firstuse:
                    if nfr["st"] != frags[nf-1]["st"]:
                        ns_ = nfr["st"]
                        if 24 <= ns_ < 27:
                            nb = upos[stage_item(ns_)]*UNIT
                            k(f"v_add_u32 v{vHB[0]}, {nb}, v{vLH}"); k(f"v_add_u32 v{vHB[1]}, {nb}, v{vLH1}")
                        if ns_ == 27:
                            for l in set_bases_p2(): k(l)
                    emit_reads(nfr, 0)
                else:
                    emit_reads(nfr, 1)
        if xq and pos >= 2:
            kind, l = xq.pop(0)
            if kind == "x": lg_room()
            k(l)
            if kind == "x": lg.issue(("x", st + 1))
            elif xq and xq[0][0] == "v":
                kind, l = xq.pop(0); k(l)
        if dmaq and (pos % (2 if (st < 6 and opts.get("fastdma", False)) else 3) == 1):
            while dmaq:
                it, (kind, x) = dmaq.pop(0)
                if kind == "s":
                    xs = sorted(x, key=lambda l: 0 if " m0," in l else 1)
                    for l in xs: k(l)
                    if not (opts.get("nonop", True) and len(xs) == 2): k("s_nop 0")
                else:
                    if not opts.get("nodma"): k(x)
                    vm.issue(it); break
        credit += rate
        while fillers and credit >= fillers[0][0]:
            c, l = fillers.pop(0); credit -= c
            if isinstance(l, tuple):
                if not (opts.get("nostore") and l[0] == "store"): k(l[1])
                vm.issue(("ST", l[2]) if l[0] == "store" else "CS")
            elif not opts.get("nofill"): k(l)
    assert not dmaq and next_item == len(items), (len(dmaq), next_item)
    flush_fillers()
    if not opts.get("fuse", False):
        k("s_nop 7")
        for c, l in epi_ops(NS - 1):
            if isinstance(l, tuple): k(l[1])
            else: k(l)
        k("s_waitcnt vmcnt(0)")
        if opts.get("ppf", False):
            for b0 in opts.get("ppf_tail", (4, 6)):
                k(f"s_add_u32 s66, s65, {b0*4096}")
                k(f"buffer_load_dword v4, v3, s[{sWS}:{sWS+3}], s66 offen")
    else:
        N = name
        SA, HA, SB, HB, SC_, HC = 48, 112, 120, 184, 192, 8
        vT0_, vT1_, ACCR = 22, 23, 32
        EARLY = opts.get("early", True)
        for kind, l in eq: k(l)
        k(f"""
        buffer_load_dword v7, v{vCN}, s[{sWS}:{sWS+3}], s{sCNT} offen sc1
        s_nop 4
        """)
        eo = epi_ops(NS - 1)
        stores = []
        pend_s = None
        for c, l in eo:
            if isinstance(l, tuple): stores.append((pend_s, l[1]))
            elif l.startswith("s_add_u32"): pend_s = l
            else: k(l)
        def poll(tag, sb_expr_reg, spin=True):
            k.label(f"L{N}_{tag}_p")
            k(f"""
            s_lshl_b32 s74, s{sb_expr_reg}, 2
            s_add_u32 s74, s74, s{sCNT}
            buffer_load_dword v7, v{vZ}, s[{sWS}:{sWS+3}], s74 offen sc1
            s_waitcnt vmcnt(0)
            v_readfirstlane_b32 s75, v7
            s_cmp_ge_u32 s75, 16
            s_cbranch_scc1 L{N}_{tag}_ok
            s_add_u32 s63, s63, 1
            s_cmp_lt_u32 s63, 0x40000
            s_cbranch_scc0 L{N}_{tag}_ok
            s_sleep 2
            s_branch L{N}_{tag}_p
            """)
            k.label(f"L{N}_{tag}_ok")
        def loads(S, Hh, sb):
            k(f"s_lshl_b32 s74, s{sb}, 12\ns_add_u32 s74, s74, s{sCH}")
            for i in range(16):
                k(f"buffer_load_dwordx4 v[{S+4*i}:{S+4*i+3}], v{vST}, s[{sWS}:{sWS+3}], s74 offen sc1")
                if i < 15: k(f"s_add_u32 s74, s74, {PSZ}")
            k(f"s_lshl_b32 s74, s{sb}, 18\ns_add_u32 s74, s74, s{sHB}")
            for i in range(8):
                k(f"buffer_load_ushort v{Hh+i}, v{vHO}, s[{sWS}:{sWS+3}], s74 offen")
                if i < 7: k("s_add_u32 s74, s74, 4096")
        def reduce_store(S, Hh, sb, agpr=False):
            if agpr:
                for i in range(64): k(f"v_accvgpr_read_b32 v{S+i}, a{i}")
                for i in range(8): k(f"v_accvgpr_read_b32 v{Hh+i}, a{64+i}")
            for i in range(16):
                for d in range(4):
                    r = S + 4*i + d
                    if i == 0:
                        k(f"v_lshlrev_b32 v{ACCR+2*d}, 16, v{r}\nv_and_b32 v{ACCR+2*d+1}, 0xffff0000, v{r}")
                    else:
                        k(f"v_lshlrev_b32 v{vT0_}, 16, v{r}\nv_and_b32 v{vT1_}, 0xffff0000, v{r}\nv_add_f32 v{ACCR+2*d}, v{ACCR+2*d}, v{vT0_}\nv_add_f32 v{ACCR+2*d+1}, v{ACCR+2*d+1}, v{vT1_}")
            for d in range(4):
                k(f"""
                v_cvt_pk_bf16_f32 v18, v{ACCR+2*d}, v{ACCR+2*d+1}
                v_lshlrev_b32 v19, 16, v18
                v_and_b32 v18, 0xffff0000, v18
                v_lshlrev_b32 v20, 16, v{Hh+2*d}
                v_lshlrev_b32 v21, 16, v{Hh+2*d+1}
                v_add_f32 v19, v19, v20
                v_add_f32 v18, v18, v21
                v_cvt_pk_bf16_f32 v{ACCR+8+d}, v19, v18
                """)
            k(f"s_lshl_b32 s74, s{sb}, 7\ns_add_u32 s74, s74, s{sOB}")
            k(f"buffer_store_dwordx4 v[{ACCR+8}:{ACCR+11}], v{vOO}, s[88:91], s74 offen")
        def redA(tag):
            if EARLY:
                k(f"s_cmp_eq_u32 s58, 0\ns_cbranch_scc1 L{N}_ra{tag}")
                for i in range(64): k(f"v_accvgpr_read_b32 v{SA+i}, a{i}")
                for i in range(8): k(f"v_accvgpr_read_b32 v{HA+i}, a{64+i}")
                k.label(f"L{N}_ra{tag}")
            reduce_store(SA, HA, sB1)
        sB1, sB2, sB3 = 67, 62, 61
        k(f"""
        s_mov_b32 s63, 0
        s_mov_b32 s{sB1}, s{sW}
        s_add_u32 s{sB2}, s{sW}, 4
        s_mov_b32 s{sB3}, 8
        s_waitcnt vmcnt(0)
        v_readlane_b32 s75, v7, s{sB1}
        v_readlane_b32 s60, v7, s{sB2}
        s_nop 3
        s_cmp_ge_u32 s75, 16
        s_cbranch_scc1 L{N}_a_ok
        """)
        poll("a", sB1)
        k.lines.pop()
        k.label(f"L{N}_a_ok")
        for sl, st_ in stores:
            k(sl); k(st_)
        if EARLY:
            k(f"s_mov_b32 s58, 1\ns_cmp_ge_u32 s59, 16\ns_cbranch_scc1 L{N}_havea\ns_mov_b32 s58, 0")
            loads(SA, HA, sB1)
            k(f"s_waitcnt vmcnt(0)")
            k.label(f"L{N}_havea")
        else:
            loads(SA, HA, sB1)
        k(f"""
        s_cmp_ge_u32 s60, 16
        s_cbranch_scc0 L{N}_nob
        """)
        loads(SB, HB, sB2)
        k(f"s_waitcnt vmcnt({24 if EARLY else 48})\ns_branch L{N}_sig")
        k.label(f"L{N}_nob")
        k(f"s_waitcnt vmcnt({0 if EARLY else 24})")
        k.label(f"L{N}_sig")
        k(f"""
        s_barrier
        s_cmp_lg_u32 s{sW}, 0
        s_cbranch_scc1 L{N}_sg36
        v_lshlrev_b32 v1, 2, v{vLANE}
        v_add_u32 v1, 24, v1
        s_mov_b64 exec, 7
        buffer_atomic_add v2, v1, s[{sWS}:{sWS+3}], s{sCNT} offen
        s_mov_b64 exec, -1
        L{N}_sg36:
        """)
        if EARLY:
            k(f"s_cmp_eq_u32 s{sW}, 0\ns_cbranch_scc1 L{N}_skipra")
            redA("e")
            k.label(f"L{N}_skipra")
        k(f"""
        s_cmp_ge_u32 s60, 16
        s_cbranch_scc1 L{N}_hasb
        """)
        poll("b", sB2)
        loads(SB, HB, sB2)
        k.label(f"L{N}_hasb")
        k(f"s_cmp_lg_u32 s{sW}, 0\ns_cbranch_scc1 L{N}_noc")
        poll("c", sB3)
        loads(SC_, HC, sB3)
        k("s_waitcnt vmcnt(24)")
        redA("c")
        reduce_store(SB, HB, sB2)
        k("s_waitcnt vmcnt(2)")
        reduce_store(SC_, HC, sB3)
        k(f"s_branch L{N}_fin")
        k.label(f"L{N}_noc")
        k("s_waitcnt vmcnt(0)")
        if not EARLY: redA("n")
        reduce_store(SB, HB, sB2)
        k.label(f"L{N}_fin")
        k("s_waitcnt vmcnt(0)")
    stamp()
    if opts.get("stamps"):
        k("v_mov_b32 v1, 0")
        for i in range(nst[0]): k(f"v_writelane_b32 v1, s{62+i}, {i}")
        k(f"v_lshlrev_b32 v2, 2, v{vLANE}")
        k(f"s_lshl_b32 s60, s2, 2\ns_add_u32 s60, s60, s{sW}\ns_lshl_b32 s60, s60, 8\ns_add_u32 s60, s60, {WS_DBG}")
        k(f"buffer_store_dword v1, v2, s[{sWS}:{sWS+3}], s60 offen")
        k("s_waitcnt vmcnt(0)")
    k.label(f"L{name}_end")
    k("s_endpgm")
    return k

if __name__ == "__main__":
    from asmlib import build_file
    V = {"k3b": {}, "k3b_rt": {"stamps": 1, "rt": 1}, "k3b_rt_pk": {"stamps": 1, "rt": 1, "pkgelu": 1}, "k3b_pk": {"pkgelu": 1}, "k3b_rt_norank": {"stamps": 1, "rt": 1, "norank": 1}, "k3b_rt_nostat": {"stamps": 1, "rt": 1, "nostat": 1}, "k3b_rt_nop": {"stamps": 1, "rt": 1, "nonop": False},
         "k3b_rt_w4": {"stamps": 1, "rt": 1, "wgran": 4, "LA": 7, "RING": 12}, "k3b_rt_w3": {"stamps": 1, "rt": 1, "wgran": 3, "LA": 7, "RING": 10},
         "k3b_rt_la4": {"stamps": 1, "rt": 1, "LA": 4}, "k3b_rt_la7": {"stamps": 1, "rt": 1, "LA": 7, "RING": 10}, "k3b_cy": {"stamps": 1}, "k3b_rt_m4": {"stamps": 1, "rt": 1, "map4": True},
         "k3b_rt_m4n": {"stamps": 1, "rt": 1, "map4": True, "rotpat": 0}, "k3b_m4": {"map4": True}}
    for nm, o in (("nostore", {"nostore":1}), ("nostore_nodma", {"nostore":1, "nodma":1}), ("sc1", {"sc1":1}), ("nodma", {"nodma":1}), ("nofill", {"nofill":1}), ("noread", {"noread":1}), ("bare", {"nodma":1,"nofill":1,"noread":1}), ("onlyread", {"nodma":1,"nofill":1})):
        V["k3b_rt_"+nm] = dict(o, stamps=1, rt=1); V["k3b_cy_"+nm] = dict(o, stamps=1)
    for nm, o in V.items():
        k = gen_k3b(opts=o)
        if o.get("sc1"): k.lines = [l + ' sc1' if 'buffer_store_dwordx4' in l else l for l in k.lines]
        build_file(f"mb/{nm}.s", [(k, 512, 102, 256)], [("k3_kernel", 256, 256, LDS_BYTES)])
        print(nm, len(k.lines))
```

```python
from asmlib import K
from gen_k3 import WS_HT, WS_PART, WS_END
PSZ = 2048*576*2
def gen_k4(name="k4_kernel", v2=False, nine=False, remap=True):
    k = K(name)
    if nine and remap:
        QMAP = """s_lshr_b32 s17, s2, 2
    s_mul_i32 s17, s17, 36
    s_lshl_b32 s18, s16, 2
    s_add_u32 s17, s17, s18
    s_and_b32 s18, s2, 3
    s_add_u32 s17, s17, s18"""
    else:
        QMAP = f"""s_mul_i32 s17, s2, {9 if nine else 4}
    s_add_u32 s17, s17, s16"""
    k(f"""
    s_getpc_b64 s[4:5]
    v_lshlrev_b32 v1, 7, v0
    v_min_u32 v1, 3328, v1
    global_load_dword v100, v1, s[4:5]
    s_cmp_ge_u32 s2, {256 if nine else 576}
    s_cbranch_scc1 L{name}_end
    s_load_dwordx2 s[4:5], s[0:1], 88          ; out
    s_load_dwordx2 s[6:7], s[0:1], 104         ; ws
    v_lshrrev_b32 v1, 6, v0
    v_and_b32 v2, 63, v0                       ; lane
    s_nop 0
    v_readfirstlane_b32 s16, v1
    {QMAP}
    s_mul_hi_u32 s18, s17, 119304648           ; rowblk = q/36
    s_mul_i32 s19, s18, 36
    s_sub_u32 s19, s17, s19                    ; rem
    s_waitcnt lgkmcnt(0)
    s_mov_b32 s8, s6
    s_mov_b32 s9, s7
    s_mov_b32 s10, {WS_END}
    s_mov_b32 s11, 0x20000
    s_mov_b32 s12, s4
    s_mov_b32 s13, s5
    s_mov_b32 s14, {PSZ}
    s_mov_b32 s15, 0x20000
    v_lshlrev_b32 v3, 4, v2                    ; lane*16
    s_lshl_b32 s20, s17, 10
    s_add_u32 s20, s20, {WS_PART}
    """)
    for j in range(16):
        k(f"buffer_load_dwordx4 v[{16+4*j}:{16+4*j+3}], v3, s[8:11], s20 offen")
        if j < 15: k(f"s_add_u32 s20, s20, {PSZ}")
    if not v2:
        k(f"""
        v_and_b32 v4, 31, v2
        v_lshrrev_b32 v5, 5, v2
        v_lshlrev_b32 v6, 15, v5                   ; 8*(lane>>5)*4096
        v_lshl_add_u32 v6, v4, 1, v6               ; + (lane&31)*2
        s_lshl_b32 s21, s18, 6                     ; 32*rowblk*2
        s_lshl_b32 s22, s19, 16                    ; 16*rem*4096
        s_add_u32 s21, s21, s22
        s_add_u32 s21, s21, {WS_HT}
        """)
    else:
        k(f"""
        v_and_b32 v4, 15, v2
        v_bfe_u32 v5, v2, 4, 1
        v_lshlrev_b32 v5, 1, v5
        v_lshrrev_b32 v8, 5, v2
        v_add_u32 v5, v5, v8                       ; (n offset)/8 = 2*(R&1) + (R>>1)
        v_lshlrev_b32 v6, 15, v5
        v_lshl_add_u32 v6, v4, 1, v6
        s_and_b32 s24, s19, 1                      ; jm
        s_lshr_b32 s25, s19, 1
        s_lshl_b32 s21, s18, 6
        s_lshl_b32 s22, s24, 5
        s_add_u32 s21, s21, s22
        s_lshl_b32 s22, s25, 17                    ; 32*blk*4096
        s_add_u32 s21, s21, s22
        s_add_u32 s21, s21, {WS_HT}
        """)
    for i in range(8):
        k(f"buffer_load_ushort v{92+i}, v6, s[8:11], s21 offen")
        if i < 7: k("s_add_u32 s21, s21, 4096")
    if not v2:
        k(f"""
        v_mul_u32_u24 v7, 1152, v4
        v_lshl_add_u32 v7, v5, 4, v7
        s_mul_i32 s23, s18, {32*1152}
        s_lshl_b32 s24, s19, 5
        s_add_u32 s23, s23, s24
        """)
    else:
        k(f"""
        v_mul_u32_u24 v7, 1152, v4
        v_lshl_add_u32 v7, v5, 4, v7
        s_mul_i32 s23, s18, {32*1152}
        s_mul_i32 s24, s24, {16*1152}
        s_add_u32 s23, s23, s24
        s_lshl_b32 s25, s25, 6
        s_add_u32 s23, s23, s25
        """)
    for j in range(16):
        k(f"s_waitcnt vmcnt({min(63, 15 - j + 8)})")
        for d in range(4):
            r = 16 + 4*j + d
            if j == 0:
                k(f"v_lshlrev_b32 v{80+2*d}, 16, v{r}")
                k(f"v_and_b32 v{81+2*d}, 0xffff0000, v{r}")
            else:
                k(f"v_lshlrev_b32 v12, 16, v{r}")
                k(f"v_and_b32 v13, 0xffff0000, v{r}")
                k(f"v_add_f32 v{80+2*d}, v{80+2*d}, v12")
                k(f"v_add_f32 v{81+2*d}, v{81+2*d}, v13")
    k("s_waitcnt vmcnt(0)")
    for d in range(4):
        k(f"""
        v_cvt_pk_bf16_f32 v12, v{80+2*d}, v{81+2*d}
        v_lshlrev_b32 v13, 16, v12
        v_and_b32 v12, 0xffff0000, v12
        v_lshlrev_b32 v14, 16, v{92+2*d}
        v_lshlrev_b32 v15, 16, v{93+2*d}
        v_add_f32 v13, v13, v14
        v_add_f32 v12, v12, v15
        v_cvt_pk_bf16_f32 v{88+d}, v13, v12
        """)
    k(f"""
    buffer_store_dwordx4 v[88:91], v7, s[12:15], s23 offen
    s_waitcnt vmcnt(0)
    """)
    k.label(f"L{name}_end")
    k("s_endpgm")
    return k
```

```python
from asmlib import K
from gen_k3 import WS_XT, WS_UT, WS_HT, WS_CS, WS_END, f2u
from gen_k3 import WS_KG, WS_SC
WS_FL = WS_KG
from gen_k3 import WS_PART
WS_UX2 = WS_PART
TAGX = 0x5bd1e995
WS_UX = WS_XT
from gen_k1 import srd, bf16r, cmul, LOG2E
import gen_k1, math
NP, NV, NB = 256, 576, 144
KA_LDS = 40960
TP = 544; TA = 0; TB = 16*TP; KT = TB + 41*TP
UZ = 2560; UD = UZ; KB = UD + 5120; CS = 4416; RED = KB
assert KB + 4*CS <= KA_LDS and RED + 24576 <= KA_LDS and KT + 2101*4 <= KA_LDS

def role_P(k, name, opts):
    PITCH = 1216
    R = opts.get("R", 8)
    PEXIT = ""
    if opts.get("pwd") or opts.get("pout"):
        PEXIT = "v_lshlrev_b32 v96, 7, v0\n"
        if opts.get("pwd"):
            PEXIT += f"""    s_mov_b32 s44, s36
    s_mov_b32 s45, s37
    s_mov_b32 s46, {4608*1152}
    s_mov_b32 s47, 0x20000
    s_mul_i32 s48, s2, {162*128}
    v_cmp_gt_u32 vcc, 162, v0
    v_mov_b32 v97, 0x7fffffff
    s_nop 0
    v_cndmask_b32 v97, v97, v96, vcc
    buffer_load_dword v100, v97, s[44:47], s48 offen
"""
        if opts.get("pout"):
            PEXIT += f"""    s_mov_b32 s52, s38
    s_mov_b32 s53, s39
    s_mov_b32 s54, {2048*1152}
    s_mov_b32 s55, 0x20000
    s_mul_i32 s48, s2, {72*128}
    v_cmp_gt_u32 vcc, 72, v0
    v_mov_b32 v97, 0x7fffffff
    s_nop 0
    v_cndmask_b32 v97, v97, v96, vcc
    buffer_load_dword v101, v97, s[52:55], s48 offen
"""
    k(f"""
    s_setprio 3
    s_load_dwordx2 s[4:5], s[0:1], 0           ; x
    s_load_dwordx4 s[24:27], s[0:1], 96
    s_load_dwordx4 s[36:39], s[0:1], 80
    s_and_b32 s16, s2, 7
    s_lshl_b32 s16, s16, 5
    s_lshr_b32 s17, s2, 3
    s_add_u32 s16, s16, s17
    v_and_b32 v1, 63, v0                       ; lane
    v_lshrrev_b32 v2, 6, v0                    ; wave
    v_lshrrev_b32 v3, 5, v1                    ; r (0..1)
    v_and_b32 v4, 31, v1                       ; c
    v_lshl_add_u32 v5, v2, 1, v3
    v_mul_u32_u24 v6, 1152, v5
    v_lshl_add_u32 v6, v4, 4, v6               ; row*1152 + c*16
    s_mul_i32 s17, s16, {8*1152}
    v_cmp_gt_u32 vcc, 8, v4
    v_add_u32 v7, 1024, v6
    v_mov_b32 v8, 0x7fffffff
    v_cndmask_b32 v7, v8, v7, vcc
    v_readfirstlane_b32 s21, v2
    s_waitcnt lgkmcnt(0)
    """)
    srd(k, 8, 4, 5, 2048*1152)
    X = 16
    for i in range(2):
        k(f"buffer_load_dwordx4 v[{X+4*i}:{X+4*i+3}], v6, s[8:11], s17 offen offset:{512*i}")
    k(f"buffer_load_dwordx4 v[{X+8}:{X+11}], v7, s[8:11], s17 offen")
    srd(k, 12, 26, 27, WS_END); srd(k, 28, 24, 25, 256)
    NPT = 0
    if opts.get("ptouch"):
        NPT = 5
        k(f"""
        s_load_dwordx4 s[36:39], s[0:1], 64
        s_load_dwordx4 s[40:43], s[0:1], 80
        v_lshlrev_b32 v96, {opts.get("ptouch_shift", 21)}, v1
        buffer_load_dword v97, v96, s[12:15], 0 offen
        s_waitcnt lgkmcnt(0)
        s_mov_b32 s44, s36
        s_mov_b32 s45, s37
        s_mov_b32 s46, {576*9216}
        s_mov_b32 s47, 0x20000
        buffer_load_dword v100, v96, s[44:47], 0 offen
        s_mov_b32 s48, s38
        s_mov_b32 s49, s39
        s_mov_b32 s50, {576*9216}
        s_mov_b32 s51, 0x20000
        buffer_load_dword v101, v96, s[48:51], 0 offen
        s_mov_b32 s52, s40
        s_mov_b32 s53, s41
        s_mov_b32 s54, {576*9216}
        s_mov_b32 s55, 0x20000
        buffer_load_dword v102, v96, s[52:55], 0 offen
        s_mov_b32 s56, s42
        s_mov_b32 s57, s43
        s_mov_b32 s58, {2048*1152}
        s_mov_b32 s59, 0x20000
        buffer_load_dword v103, v96, s[56:59], 0 offen
        """)
    k(f"""
    s_or_b32 s34, s21, s2
    s_cmp_lg_u32 s34, 0
    s_cbranch_scc1 L{name}_P_nononce
    s_memrealtime s[32:33]
    s_waitcnt lgkmcnt(0)
    s_or_b32 s32, s32, 1
    v_mov_b32 v12, s32
    v_mov_b32 v13, 0
    buffer_store_dword v12, v13, s[28:31], 0 offen sc1
    """)
    k.label(f"L{name}_P_nononce")
    k(f"""
    s_cmp_ge_u32 s2, 16
    s_cbranch_scc1 L{name}_P_nozero
    v_mov_b32 v12, 0
    v_and_b32 v13, 31, v0
    v_lshlrev_b32 v13, 2, v13
    s_lshl_b32 s34, s2, 7
    s_add_u32 s34, s34, {WS_SC}
    buffer_store_dword v12, v13, s[12:15], s34 offen
    """)
    k.label(f"L{name}_P_nozero")
    F = 40
    UOFF = 8*PITCH
    k(f"""
    v_mul_u32_u24 v6, {PITCH}, v5
    v_lshl_add_u32 v6, v4, 4, v6
    v_mov_b32 v9, 0x3f803f80
    v_mov_b32 v10, 0
    v_mov_b32 v11, 0
    v_mov_b32 v99, 0
    s_waitcnt vmcnt({NPT})
    """)
    if opts.get("tags"): k("buffer_load_dword v98, v99, s[28:31], 0 offen sc1")
    for i in range(12):
        k(f"v_dot2_f32_bf16 v{10+(i&1)}, v{X+i}, v9, v{10+(i&1)}")
        k(f"v_lshlrev_b32 v{F+2*i}, 16, v{X+i}")
        k(f"v_and_b32 v{F+2*i+1}, 0xffff0000, v{X+i}")
    for i in range(2): k(f"ds_write_b128 v6, v[{X+4*i}:{X+4*i+3}] offset:{512*i}")
    k("s_nop 0\nv_add_f32 v10, v10, v11")
    def reduce32(reg):
        k(f"""
        s_nop 1
        v_add_f32_dpp v{reg}, v{reg}, v{reg} quad_perm:[1,0,3,2] row_mask:0xf bank_mask:0xf
        s_nop 1
        v_add_f32_dpp v{reg}, v{reg}, v{reg} quad_perm:[2,3,0,1] row_mask:0xf bank_mask:0xf
        s_nop 1
        v_add_f32_dpp v{reg}, v{reg}, v{reg} row_half_mirror row_mask:0xf bank_mask:0xf
        s_nop 1
        v_add_f32_dpp v{reg}, v{reg}, v{reg} row_mirror row_mask:0xf bank_mask:0xf
        v_mov_b32 v14, v{reg}
        s_nop 1
        v_permlane16_swap_b32 v{reg}, v14
        s_nop 1
        v_add_f32 v{reg}, v{reg}, v14
        """)
    k("v_mov_b32 v14, v10") if False else None
    reduce32(10)
    k(f"v_mul_f32 v10, {f2u(1.0/576):#x}, v10        ; mean")
    k("v_mov_b32 v11, 0\nv_mov_b32 v12, 0\nv_mov_b32 v15, 0")
    for i in range(16):
        t = 13 + (i & 1)
        k(f"v_sub_f32 v{t}, v{F+i}, v10")
        k(f"v_fmac_f32 v{11+(i&1)}, v{t}, v{t}")
    for i in range(16, 24):
        t = 13 + (i & 1)
        k(f"v_sub_f32 v{t}, v{F+i}, v10")
        k(f"v_fmac_f32 v15, v{t}, v{t}")
    k("""
    v_add_f32 v11, v11, v12
    v_cndmask_b32 v15, 0, v15, vcc
    v_add_f32 v11, v11, v15
    """)
    reduce32(11)
    k(f"""
    v_mul_f32 v11, {f2u(1.0/576):#x}, v11        ; var
    v_cvt_pk_bf16_f32 v12, v10, v11
    v_lshlrev_b32 v10, 16, v12                   ; m (bf16)
    v_and_b32 v11, 0xffff0000, v12
    v_add_f32 v11, {f2u(1e-5):#x}, v11
    """)
    bf16r(k, 11, 11)
    k("v_sqrt_f32 v11, v11\ns_nop 0")
    bf16r(k, 11, 11)
    k("v_rcp_f32 v11, v11\ns_nop 0")
    U = 80
    for i in range(12):
        a_, b_ = F+2*i, F+2*i+1
        t = 13 + (i & 1)
        k(f"""
        v_sub_f32 v{a_}, v{a_}, v10
        v_sub_f32 v{b_}, v{b_}, v10
        v_cvt_pk_bf16_f32 v{t}, v{a_}, v{b_}
        v_lshlrev_b32 v{a_}, 16, v{t}
        v_and_b32 v{b_}, 0xffff0000, v{t}
        v_mul_f32 v{a_}, v{a_}, v11
        v_mul_f32 v{b_}, v{b_}, v11
        v_cvt_pk_bf16_f32 v{t}, v{a_}, v{b_}
        v_lshlrev_b32 v{a_}, 16, v{t}
        v_and_b32 v{b_}, 0xffff0000, v{t}
        v_cvt_pk_f16_f32 v{U+i}, v{a_}, v{b_}
        """)
        if i % 4 == 3 and i < 8:
            k(f"ds_write_b128 v6, v[{U+i-3}:{U+i}] offset:{UOFF+512*(i//4)}")
    k("s_and_saveexec_b64 s[18:19], vcc")
    k(f"ds_write_b128 v6, v[{X+8}:{X+11}] offset:1024")
    k(f"ds_write_b128 v6, v[{U+8}:{U+11}] offset:{UOFF+1024}")
    k("s_mov_b64 exec, s[18:19]")
    if opts.get("tags"):
        k(f"""
        v_bfe_u32 v6, v1, 2, 2                       ; r'
        v_bfe_u32 v7, v1, 4, 1                       ; g&1
        v_lshl_add_u32 v6, v7, 2, v6                 ; row
        v_mul_u32_u24 v6, {PITCH}, v6
        v_and_b32 v7, 3, v1
        v_lshl_add_u32 v6, v7, 3, v6                 ; + 8c
        v_lshrrev_b32 v7, 5, v1                      ; g>>1 : 0 -> u, 1 -> x
        v_xor_b32 v7, 1, v7
        v_mul_u32_u24 v7, {UOFF}, v7
        v_add_u32 v6, v6, v7
        v_lshl_add_u32 v6, v2, 5, v6                 ; + wave*16 d*2B
        v_and_b32 v9, 15, v1
        v_lshl_add_u32 v9, v2, 4, v9                 ; d local
        v_lshlrev_b32 v9, 6, v9                      ; d*64
        v_lshrrev_b32 v7, 4, v1
        v_lshl_add_u32 v8, v7, 4, v9                 ; + g*16
        s_mul_i32 s18, s16, {576*64}
        s_add_u32 s18, s18, {WS_UX2}
        s_mov_b32 s22, 0
        """)
        k.label(f"L{name}_P_nc")
        k(f"""
        s_waitcnt vmcnt(0)
        v_readfirstlane_b32 s23, v98
        s_cmp_lg_u32 s23, 0
        s_cbranch_scc1 L{name}_P_nok
        s_add_u32 s22, s22, 1
        s_cmp_lt_u32 s22, 0x40000
        s_cbranch_scc0 L{name}_P_nok
        s_sleep 2
        buffer_load_dword v98, v99, s[28:31], 0 offen sc1
        s_branch L{name}_P_nc
        """)
        k.label(f"L{name}_P_nok")
        k(f"s_xor_b32 s24, s23, {TAGX:#x}")
        for it in range(9):
            k(f"v_mov_b32 v{18+4*it}, s23\nv_mov_b32 v{19+4*it}, s24")
        k("s_waitcnt lgkmcnt(0)\ns_barrier")
        for it in range(9):
            k(f"ds_read_b64_tr_b16 v[{16+4*it}:{17+4*it}], v6 offset:{it*128}")
        for it in range(9):
            k(f"s_waitcnt lgkmcnt({8-it})")
            k(f"buffer_store_dwordx4 v[{16+4*it}:{19+4*it}], v8, s[12:15], s18 offen sc1")
            if it < 8: k(f"s_add_u32 s18, s18, {64*64}")
        k(f"s_branch L{name}_end")
        k("")
        return
    k(f"""
    v_bfe_u32 v6, v1, 2, 2                       ; r'
    v_mul_u32_u24 v6, {PITCH}, v6
    v_and_b32 v7, 3, v1
    v_lshl_add_u32 v6, v7, 3, v6                 ; + 8c
    v_bfe_u32 v7, v1, 4, 1                       ; array
    v_xor_b32 v8, 1, v7
    v_mul_u32_u24 v8, {UOFF}, v8
    v_add_u32 v6, v6, v8
    v_lshrrev_b32 v8, 5, v1                      ; dsub
    v_lshl_add_u32 v6, v8, 5, v6                 ; + dsub*16 d*2B
    v_lshl_add_u32 v6, v2, 6, v6                 ; + wave*32 d*2B
    v_and_b32 v9, 15, v1
    v_lshl_add_u32 v9, v8, 4, v9
    v_lshl_add_u32 v9, v2, 5, v9                 ; d local
    v_lshlrev_b32 v9, 5, v9                      ; d*32
    v_lshl_add_u32 v8, v7, 4, v9                 ; + array*16
    s_mul_i32 s18, s16, {576*32}
    s_add_u32 s18, s18, {WS_UX}
    v_mov_b32 v13, 0
    s_waitcnt lgkmcnt(0)
    s_barrier
    """)
    for it in range(5):
        Rg = 16 + 4*it
        if it == 4: k(f"s_cmp_ge_u32 s21, 2\ns_cbranch_scc1 L{name}_P_st")
        k(f"ds_read_b64_tr_b16 v[{Rg}:{Rg+1}], v6 offset:{it*256}")
        k(f"ds_read_b64_tr_b16 v[{Rg+2}:{Rg+3}], v6 offset:{it*256 + 4*PITCH}")
    k("s_waitcnt lgkmcnt(0)")
    k(f"s_add_u32 s22, s18, {4*128*32}")
    k(f"buffer_store_dwordx4 v[32:35], v8, s[12:15], s22 offen sc1")
    k.label(f"L{name}_P_st")
    for it in range(4):
        Rg = 16 + 4*it
        k(f"s_waitcnt lgkmcnt({max(0, 6 - 2*it)})" if False else "s_waitcnt lgkmcnt(0)") if it == 0 else None
        k(f"buffer_store_dwordx4 v[{Rg}:{Rg+3}], v8, s[12:15], s18 offen sc1")
        k(f"s_add_u32 s18, s18, {128*32}")
    k.label(f"L{name}_P_sig")
    k(f"""
    s_cmp_lg_u32 s21, 0
    s_cbranch_scc1 L{name}_P_w
    s_mov_b32 s22, 0
    """)
    k.label(f"L{name}_P_np")
    k(f"""
    buffer_load_dword v12, v13, s[28:31], 0 offen sc1
    s_waitcnt vmcnt(0)
    v_readfirstlane_b32 s23, v12
    s_cmp_lg_u32 s23, 0
    s_cbranch_scc1 L{name}_P_w
    s_add_u32 s22, s22, 1
    s_cmp_lt_u32 s22, 0x40000
    s_cbranch_scc0 L{name}_P_w
    s_sleep 4
    s_branch L{name}_P_np
    """)
    k.label(f"L{name}_P_w")
    k(f"""
    s_waitcnt vmcnt(0)
    s_barrier
    s_cmp_lg_u32 s21, 0
    s_cbranch_scc1 L{name}_P_pf
    v_cmp_gt_u32 vcc, {R}, v1
    s_and_saveexec_b64 s[18:19], vcc
    v_lshlrev_b32 v6, 10, v1                     ; replica*1024
    s_lshl_b32 s22, s2, 2
    s_add_u32 s22, s22, {WS_FL}
    buffer_store_dword v12, v6, s[12:15], s22 offen sc1
    s_mov_b64 exec, s[18:19]
    L{name}_P_pf:
    {PEXIT}
    s_branch L{name}_end
    """)

def poll_flags(k, name, tag, srd_dbg, srd_ws, sleep, vA, vB, sT, R=8):
    k(f"""
    v_mov_b32 v{vB}, 0
    s_mov_b32 s{sT}, 0
    """)
    k.label(f"L{name}_{tag}_np")
    k(f"""
    buffer_load_dword v{vA}, v{vB}, s[{srd_dbg}:{srd_dbg+3}], 0 offen sc1
    s_waitcnt vmcnt(0)
    v_readfirstlane_b32 s{sT+1}, v{vA}
    s_cmp_lg_u32 s{sT+1}, 0
    s_cbranch_scc1 L{name}_{tag}_gotn
    s_add_u32 s{sT}, s{sT}, 1
    s_cmp_lt_u32 s{sT}, 0x40000
    s_cbranch_scc0 L{name}_{tag}_gotn
    s_sleep 4
    s_branch L{name}_{tag}_np
    """)
    k.label(f"L{name}_{tag}_gotn")
    k(f"""
    s_and_b32 s{sT+2}, s2, {R-1}
    s_lshl_b32 s{sT+2}, s{sT+2}, 10
    s_add_u32 s{sT+2}, s{sT+2}, {WS_FL}
    v_lshlrev_b32 v{vB}, 4, v1
    """)
    k.label(f"L{name}_{tag}_poll")
    k(f"""
    buffer_load_dwordx4 v[{vA}:{vA+3}], v{vB}, s[{srd_ws}:{srd_ws+3}], s{sT+2} offen sc1
    s_waitcnt vmcnt(0)
    v_cmp_ne_u32 vcc, s{sT+1}, v{vA}
    v_cmp_ne_u32 s[{sT+4}:{sT+5}], s{sT+1}, v{vA+1}
    s_or_b64 vcc, vcc, s[{sT+4}:{sT+5}]
    v_cmp_ne_u32 s[{sT+4}:{sT+5}], s{sT+1}, v{vA+2}
    s_or_b64 vcc, vcc, s[{sT+4}:{sT+5}]
    v_cmp_ne_u32 s[{sT+4}:{sT+5}], s{sT+1}, v{vA+3}
    s_or_b64 vcc, vcc, s[{sT+4}:{sT+5}]
    s_cbranch_vccz L{name}_{tag}_go
    s_add_u32 s{sT}, s{sT}, 1
    s_cmp_lt_u32 s{sT}, 0x40000
    s_cbranch_scc0 L{name}_{tag}_go
    s_sleep {sleep}
    s_branch L{name}_{tag}_poll
    """)
    k.label(f"L{name}_{tag}_go")

def role_B(k, name, opts):
    if opts.get("bxcd", True):
        BMAP = """s_and_b32 s18, s26, 7
    s_mul_i32 s18, s18, 9
    s_lshr_b32 s19, s26, 3
    s_cmp_ge_u32 s19, 9
    s_cselect_b32 s20, 1, 0
    s_cselect_b32 s27, 9, 0
    s_sub_u32 s19, s19, s27
    s_add_u32 s18, s18, s19                     ; cidx"""
    else:
        BMAP = """s_cmp_ge_u32 s26, 72
    s_cselect_b32 s19, 72, 0
    s_cselect_b32 s20, 1, 0
    s_sub_u32 s18, s26, s19                     ; cidx"""
    k(f"""
    s_load_dwordx4 s[4:7], s[0:1], 64
    s_load_dwordx2 s[24:25], s[0:1], 80         ; w_down
    s_load_dwordx4 s[32:35], s[0:1], 96
    s_sub_u32 s26, s2, {NP+NV}
    {BMAP}
    v_lshrrev_b32 v1, 3, v0                     ; rg
    v_and_b32 v2, 7, v0                         ; c
    v_mul_u32_u24 v3, 9216, v1
    v_lshl_add_u32 v3, v2, 4, v3
    s_waitcnt lgkmcnt(0)
    s_cmp_eq_u32 s20, 1
    s_cselect_b32 s8, s6, s4
    s_cselect_b32 s9, s7, s5
    s_mov_b32 s10, {576*9216}
    s_mov_b32 s11, 0x20000
    """)
    srd(k, 12, 34, 35, WS_END)
    if opts.get("codepf"):
        k(f"""
        s_getpc_b64 s[44:45]
        L{name}_pc:
        s_add_u32 s44, s44, k3_kernel-L{name}_pc
        s_addc_u32 s45, s45, 0
        s_lshr_b32 s46, s26, 3
        s_min_u32 s46, s46, {opts.get("codepf")-1}
        s_lshl_b32 s46, s46, 13
        v_and_b32 v60, 63, v0
        v_lshlrev_b32 v60, 7, v60
        v_add_u32 v60, s46, v60
        global_load_dword v92, v60, s[44:45]
        """)
        if opts.get("kdpf"):
            k(f"""
            s_getpc_b64 s[44:45]
            s_add_u32 s44, s44, Lkd_start@rel32@lo+4
            s_addc_u32 s45, s45, Lkd_start@rel32@hi+12
            v_and_b32 v60, 3, v0
            v_lshlrev_b32 v60, 6, v60
            global_load_dword v93, v60, s[44:45]
            """)
    if opts.get("tlbpf"):
        k(f"""
        s_and_b32 s44, s26, 7
        s_mul_i32 s44, s44, 1152
        s_lshr_b32 s45, s26, 3
        s_lshl_b32 s45, s45, 6
        s_add_u32 s44, s44, s45
        s_lshl_b32 s44, s44, 12
        s_add_u32 s44, s44, {WS_PART}
        v_and_b32 v60, 63, v0
        v_lshlrev_b32 v60, 12, v60
        buffer_load_dword v94, v60, s[12:15], s44 offen
        """)
    if opts.get("bwait", True):
        srd(k, 36, 32, 33, 256)
        k(f"v_and_b32 v1, 63, v0\nv_lshrrev_b32 v60, 6, v0\ns_nop 0\nv_readfirstlane_b32 s40, v60\ns_nop 3\ns_cmp_lg_u32 s40, 0\ns_cbranch_scc1 L{name}_B_nopoll")
        if opts.get("bone"):
            k(f"""
            v_mov_b32 v64, 0
            s_mov_b32 s41, 0
            """)
            k.label(f"L{name}_B1_nc")
            k(f"""
            buffer_load_dword v60, v64, s[36:39], 0 offen sc1
            s_waitcnt vmcnt(0)
            v_readfirstlane_b32 s42, v60
            s_cmp_lg_u32 s42, 0
            s_cbranch_scc1 L{name}_B1_ok
            s_add_u32 s41, s41, 1
            s_cmp_lt_u32 s41, 0x10000
            s_cbranch_scc0 L{name}_B1_ok
            s_sleep 8
            s_branch L{name}_B1_nc
            """)
            k.label(f"L{name}_B1_ok")
            k(f"""
            s_and_b32 s43, s2, 7
            s_lshl_b32 s43, s43, 10
            s_add_u32 s43, s43, {WS_FL}
            v_and_b32 v64, {opts["bone"]-1}, v1
            s_and_b32 s44, s26, 31
            s_lshl_b32 s44, s44, 3
            v_add_u32 v64, s44, v64
            v_and_b32 v64, 255, v64
            v_lshlrev_b32 v64, 2, v64
            """)
            k.label(f"L{name}_B1_pl")
            k(f"""
            buffer_load_dword v60, v64, s[12:15], s43 offen sc1
            s_waitcnt vmcnt(0)
            v_cmp_ne_u32 vcc, s42, v60
            s_cbranch_vccz L{name}_B1_go
            s_add_u32 s41, s41, 1
            s_cmp_lt_u32 s41, 0x10000
            s_cbranch_scc0 L{name}_B1_go
            s_sleep {opts.get("bsleep", 16)}
            s_branch L{name}_B1_pl
            """)
            k.label(f"L{name}_B1_go")
        elif not opts.get("tags"):
            poll_flags(k, name, "B", 36, 12, opts.get("bsleep", 16), 60, 64, 40, opts.get("R", 8))
        else:
            k(f"""
            v_mov_b32 v64, 0
            s_mov_b32 s41, 0
            """)
            k.label(f"L{name}_B_nc")
            k(f"""
            buffer_load_dword v60, v64, s[36:39], 0 offen sc1
            s_waitcnt vmcnt(0)
            v_readfirstlane_b32 s42, v60
            s_cmp_lg_u32 s42, 0
            s_cbranch_scc1 L{name}_B_nok
            s_add_u32 s41, s41, 1
            s_cmp_lt_u32 s41, 0x10000
            s_cbranch_scc0 L{name}_B_nok
            s_sleep 8
            s_branch L{name}_B_nc
            """)
            k.label(f"L{name}_B_nok")
            k(f"""
            v_and_b32 v64, 7, v1
            v_lshlrev_b32 v64, 5, v64
            v_add_u32 v64, 31, v64                      ; rb = 31, 63, ..., 255
            v_mul_u32_u24 v64, {576*64}, v64
            s_lshl_b32 s43, s26, 8
            s_add_u32 s43, s43, {WS_UX2}
            """)
            k.label(f"L{name}_B_pl")
            k(f"""
            buffer_load_dwordx4 v[60:63], v64, s[12:15], s43 offen sc1
            s_waitcnt vmcnt(0)
            v_cmp_ne_u32 vcc, s42, v62
            s_cbranch_vccz L{name}_B_pok
            s_add_u32 s41, s41, 1
            s_cmp_lt_u32 s41, 0x10000
            s_cbranch_scc0 L{name}_B_pok
            s_sleep {opts.get("bsleep", 16)}
            s_branch L{name}_B_pl
            """)
            k.label(f"L{name}_B_pok")
        if opts.get("bprio"): k(f"s_setprio {opts['bprio']}")
        k.label(f"L{name}_B_nopoll")
        k("s_barrier\nv_lshrrev_b32 v1, 3, v0")
    k("s_lshl_b32 s21, s18, 7")
    BD = opts.get("bdepth", 18)
    def bload(i):
        k(f"buffer_load_dwordx4 v[{16+4*i}:{16+4*i+3}], v3, s[8:11], s21 offen")
        if i < 17: k(f"s_add_u32 s21, s21, {32*9216}")
    for i in range(BD): bload(i)
    NPF = 0
    if opts.get("wdpf"):
        NPF = 2
        srd(k, 28, 24, 25, 4608*1152)
        k(f"""
        s_mul_i32 s27, s26, {288*128}
        v_lshlrev_b32 v14, 7, v0
        buffer_load_dword v90, v14, s[28:31], s27 offen
        v_cmp_gt_u32 vcc, 32, v0
        v_add_u32 v15, {256*128}, v14
        v_mov_b32 v91, 0x7fffffff
        v_cndmask_b32 v15, v91, v15, vcc
        buffer_load_dword v91, v15, s[28:31], s27 offen
        """)
    for i in range(18):
        issued = min(18, BD + i)
        k(f"s_waitcnt vmcnt({issued - 1 - i + NPF})")
        if BD + i < 18: bload(BD + i)
        for d in range(4):
            r = 16+4*i+d
            if i == 0:
                k(f"v_lshlrev_b32 v{4+2*d}, 16, v{r}\nv_and_b32 v{5+2*d}, 0xffff0000, v{r}")
            else:
                k(f"v_lshlrev_b32 v12, 16, v{r}\nv_and_b32 v13, 0xffff0000, v{r}\nv_add_f32 v{4+2*d}, v{4+2*d}, v12\nv_add_f32 v{5+2*d}, v{5+2*d}, v13")
    k(f"""
    v_lshlrev_b32 v12, 8, v1
    v_lshl_add_u32 v12, v2, 5, v12
    ds_write_b128 v12, v[4:7]
    ds_write_b128 v12, v[8:11] offset:16
    s_waitcnt lgkmcnt(0)
    s_barrier
    v_cmp_gt_u32 vcc, 64, v0
    s_and_saveexec_b64 s[22:23], vcc
    s_cbranch_execz L{name}_end
    v_lshlrev_b32 v12, 2, v0
    """)
    for i in range(32):
        k(f"ds_read_b32 v{16+i}, v12 offset:{256*i}")
        if i in (14, 29): k("s_waitcnt lgkmcnt(0)")
    k("s_waitcnt lgkmcnt(0)")
    for st in (16, 8, 4, 2, 1):
        for i in range(st): k(f"v_add_f32 v{16+i}, v{16+i}, v{16+i+st}")
    k(f"""
    v_cvt_pk_bf16_f32 v13, v16, v16
    v_and_b32 v14, 0xffff0000, v13
    v_sub_f32 v14, v16, v14
    v_cvt_pk_bf16_f32 v14, v14, v14
    v_and_b32 v13, 0xffff, v13
    v_and_b32 v14, 0xffff0000, v14
    v_or_b32 v13, v13, v14
    s_lshl_b32 s22, s18, 6
    v_add_u32 v15, s22, v0                      ; f
    s_mov_b32 s22, 14913081
    v_mul_hi_u32 v16, v15, s22                  ; j
    v_mul_u32_u24 v17, 288, v16
    v_sub_u32 v17, v15, v17                     ; local
    v_and_b32 v18, 1, v16
    v_lshlrev_b32 v19, 5, v18
    v_sub_u32 v19, v17, v19
    v_cmp_gt_i32 vcc, 0, v19
    v_add_u32 v20, 288, v19
    s_nop 0
    v_cndmask_b32 v19, v19, v20, vcc
    v_lshrrev_b32 v20, 4, v19
    v_and_b32 v19, 15, v19
    v_lshl_add_u32 v19, v16, 4, v19
    v_mul_u32_u24 v19, 36, v19
    v_lshl_add_u32 v19, v20, 1, v19
    v_add_u32 v19, s20, v19
    v_lshlrev_b32 v12, 2, v19
    s_mov_b32 s21, {WS_CS}
    buffer_store_dword v13, v12, s[12:15], s21 offen
    s_branch L{name}_end
    """)

def role_V(k, name, opts):
    k(f"""
    s_load_dwordx4 s[4:7], s[0:1], 8
    s_load_dwordx4 s[24:27], s[0:1], 24
    s_load_dwordx4 s[28:31], s[0:1], 40
    s_load_dwordx4 s[48:51], s[0:1], 96
    s_sub_u32 s16, s2, {NP}
    s_and_b32 s18, s16, 7
    s_mul_i32 s18, s18, 72
    s_lshr_b32 s16, s16, 3
    s_add_u32 s16, s16, s18
    v_and_b32 v1, 63, v0                        ; lane
    v_lshrrev_b32 v2, 6, v0                     ; wave
    v_and_b32 v3, 1, v2
    v_lshl_add_u32 v4, v3, 6, v1                ; n
    v_lshlrev_b32 v5, 1, v4                     ; n*2
    v_xor_b32 v6, 128, v5
    v_readfirstlane_b32 s17, v2
    s_lshl_b32 s18, s16, 8                      ; d*256
    s_lshl_b32 s19, s16, 1
    v_mov_b32 v7, s19
    s_waitcnt lgkmcnt(0)
    """)
    srd(k, 8, 4, 5, 576*256); srd(k, 12, 6, 7, 576*256); srd(k, 32, 24, 25, 576*256); srd(k, 36, 26, 27, 576*256)
    srd(k, 40, 28, 29, 576*2); srd(k, 52, 30, 31, 576*2); srd(k, 44, 50, 51, WS_END); srd(k, 56, 48, 49, 256)
    k("""
    buffer_load_ushort v8, v5, s[8:11], s18 offen
    buffer_load_ushort v14, v7, s[40:43], 0 offen
    buffer_load_ushort v9, v5, s[12:15], s18 offen
    buffer_load_ushort v10, v5, s[32:35], s18 offen
    buffer_load_ushort v11, v5, s[36:39], s18 offen
    buffer_load_ushort v12, v6, s[32:35], s18 offen
    buffer_load_ushort v13, v6, s[36:39], s18 offen
    buffer_load_ushort v62, v7, s[52:55], 0 offen       ; D_skip
    """)
    for i in range(8):
        sh = {0: 0, 1: 1, 2: 2, 3: 2}.get(i, 3)
        r = 40 + i
        if sh == 0: k(f"v_lshlrev_b32 v{r}, 2, v0")
        else:
            k(f"""
            v_add_u32 v38, {256*i}, v0
            v_bfe_u32 v39, v38, {sh}, 1
            v_add_u32 v38, v38, v39
            v_add_u32 v38, {(1 << (sh-1)) - 1}, v38
            v_lshrrev_b32 v38, {sh}, v38
            v_lshlrev_b32 v{r}, {sh+2}, v38
            """)
    k("s_waitcnt vmcnt(0)")
    for r in (8, 9, 10, 11, 12, 13, 14, 62): k(f"v_lshlrev_b32 v{r}, 16, v{r}")
    k(f"""
    v_mul_f32 v14, {f2u(LOG2E):#x}, v14
    v_mul_f32 v8, {f2u(LOG2E):#x}, v8
    v_exp_f32 v14, v14
    v_exp_f32 v8, v8
    v_add_f32 v15, |v10|, |v11|
    v_add_f32 v16, |v12|, |v13|
    v_add_f32 v15, v15, v16
    """)
    bf16r(k, 14, 14); bf16r(k, 8, 8)
    k("""
    s_nop 1
    v_add_f32_dpp v15, v15, v15 quad_perm:[1,0,3,2] row_mask:0xf bank_mask:0xf
    s_nop 1
    v_add_f32_dpp v15, v15, v15 quad_perm:[2,3,0,1] row_mask:0xf bank_mask:0xf
    s_nop 1
    v_add_f32_dpp v15, v15, v15 row_half_mirror row_mask:0xf bank_mask:0xf
    s_nop 1
    v_add_f32_dpp v15, v15, v15 row_mirror row_mask:0xf bank_mask:0xf
    s_nop 1
    v_readlane_b32 s20, v15, 0
    v_readlane_b32 s21, v15, 16
    v_readlane_b32 s22, v15, 32
    v_readlane_b32 s23, v15, 48
    s_nop 1
    v_mov_b32 v15, s20
    v_add_f32 v15, s21, v15
    v_add_f32 v15, s22, v15
    v_add_f32 v15, s23, v15
    v_mul_f32 v15, v15, v14
    v_add_f32 v15, v15, v15
    v_frexp_exp_i32_f32 v16, v15
    v_sub_u32 v17, 13, v16
    v_mov_b32 v18, 1.0
    v_ldexp_f32 v19, v18, v17                    ; S
    v_sub_u32 v17, 0, v17
    v_ldexp_f32 v63, v18, v17
    """)
    k(f"""
    v_mul_f32 v8, v8, v14
    v_mul_f32 v9, v9, v14
    v_mul_f32 v8, {f2u(-LOG2E):#x}, v8
    v_mul_f32 v9, 0.15915494, v9
    """)
    AL, BE = 8, 9
    def direct(dr, di, p, t0=21, t1=22):
        k(f"""
        v_mul_f32 v{t0}, {f2u(float(p)):#x}, v{AL}
        v_mul_f32 v{t1}, {f2u(float(p)):#x}, v{BE}
        v_exp_f32 v{t0}, v{t0}
        v_fract_f32 v{t1}, v{t1}
        s_nop 0
        v_cos_f32 v{dr}, v{t1}
        v_sin_f32 v{di}, v{t1}
        s_nop 0
        v_mul_f32 v{dr}, v{dr}, v{t0}
        v_mul_f32 v{di}, v{di}, v{t0}
        """)
    k("v_lshlrev_b32 v23, 2, v4")
    def put(tab, row, re, im, neg=False, tmp=24):
        if neg: k(f"v_cvt_pk_f16_f32 v{tmp}, v{re}, -v{im}")
        else: k(f"v_cvt_pk_f16_f32 v{tmp}, v{re}, v{im}")
        k(f"ds_write_b32 v23, v{tmp} offset:{tab + row*TP}")
    k(f"s_cmp_ge_u32 s17, 2\ns_cbranch_scc1 L{name}_V_part1")
    direct(30, 31, 1); direct(32, 33, 16)
    k("""
    v_mul_f32 v25, v19, v14
    v_add_f32 v25, v25, v25
    v_mul_f32 v34, v10, v25
    v_mul_f32 v35, v11, v25
    v_mov_b32 v26, 1.0
    v_mov_b32 v27, 0
    """)
    fr, fi, er, ei = 34, 35, 26, 27
    for r in range(16):
        put(TA, r, fr, fi, neg=True, tmp=24)
        put(TB, r, er, ei, tmp=25)
        if r < 15:
            nf = 36 if fr == 34 else 34; ne = 28 if er == 26 else 26
            cmul(k, nf, nf+1, fr, fi, 32, 33)
            cmul(k, ne, ne+1, er, ei, 30, 31)
            fr, fi, er, ei = nf, nf+1, ne, ne+1
    k(f"s_branch L{name}_V_join")
    k.label(f"L{name}_V_part1")
    direct(30, 31, 2); direct(32, 33, 256)
    cmul(k, 34, 35, 30, 31, 30, 31)
    cmul(k, 36, 37, 34, 35, 34, 35)
    cmul(k, 38, 39, 32, 33, 32, 33)
    cmul(k, 48, 49, 38, 39, 38, 39)
    cmul(k, 50, 51, 48, 49, 48, 49)
    put(TB, 40, 50, 51)
    cr_, ci_ = 32, 33
    put(TB, 16, cr_, ci_)
    for c in range(1, 8):
        n_ = 52 if cr_ != 52 else 54
        cmul(k, n_, n_+1, cr_, ci_, 30, 31); cr_, ci_ = n_, n_+1
        put(TB, 16 + c, cr_, ci_, tmp=24 + (c & 1))
    cmul(k, 56, 57, 38, 39, 32, 33)
    for base, (b0, b1) in ((24, (38, 39)), (28, (56, 57))):
        cr_, ci_ = b0, b1
        put(TB, base, cr_, ci_)
        for c in range(1, 4):
            n_ = 52 if cr_ != 52 else 54
            cmul(k, n_, n_+1, cr_, ci_, 34, 35); cr_, ci_ = n_, n_+1
            put(TB, base + c, cr_, ci_, tmp=24 + (c & 1))
    cr_, ci_ = 48, 49
    for g in range(4):
        put(TB, 32 + 2*g, cr_, ci_)
        cmul(k, 58, 59, cr_, ci_, 36, 37)
        put(TB, 32 + 2*g + 1, 58, 59, tmp=25)
        if g < 3:
            n_ = 52 if cr_ != 52 else 54
            cmul(k, n_, n_+1, cr_, ci_, 32, 33); cr_, ci_ = n_, n_+1
    k.label(f"L{name}_V_join")
    k("s_waitcnt lgkmcnt(0)\ns_barrier")
    k(f"""
    v_and_b32 v4, 15, v1                          ; a / col / b
    v_lshrrev_b32 v5, 4, v1                       ; q
    s_cmp_ge_u32 s17, 3
    s_cbranch_scc1 L{name}_V_skipmm
    v_mul_u32_u24 v26, {TP}, v4
    v_lshl_add_u32 v26, v5, 4, v26
    s_mul_i32 s20, s17, {16*TP}
    v_add_u32 v27, s20, v26
    """)
    for t in range(8):
        k(f"ds_read_b128 v[{64+8*t}:{64+8*t+3}], v26 offset:{TA + 64*t}")
        k(f"ds_read_b128 v[{68+8*t}:{68+8*t+3}], v27 offset:{TB + 64*t}")
        if t == 6: k("s_waitcnt lgkmcnt(8)")
    k(f"""
    v_mov_b32 v32, v4
    s_cmp_eq_u32 s17, 0
    s_cbranch_scc1 L{name}_V_oready
    s_cmp_eq_u32 s17, 1
    s_cbranch_scc0 L{name}_V_t2
    v_lshlrev_b32 v33, 1, v4
    v_add_u32 v33, 256, v33
    v_and_b32 v34, 3, v4
    v_lshlrev_b32 v34, 2, v34
    v_bfe_u32 v35, v4, 2, 1
    v_lshlrev_b32 v35, 8, v35
    v_add_u32 v34, v34, v35
    v_add_u32 v34, 512, v34
    v_cmp_gt_u32 vcc, 8, v4
    s_nop 1
    v_cndmask_b32 v32, v34, v33, vcc
    s_branch L{name}_V_oready
    """)
    k.label(f"L{name}_V_t2")
    k(f"""
    v_lshrrev_b32 v33, 1, v4
    v_lshlrev_b32 v33, 8, v33
    v_and_b32 v34, 1, v4
    v_lshl_add_u32 v33, v34, 3, v33
    v_add_u32 v33, 1024, v33
    v_cmp_gt_u32 vcc, 9, v4
    v_mov_b32 v34, 2052
    s_nop 0
    v_cndmask_b32 v32, v34, v33, vcc
    """)
    k.label(f"L{name}_V_oready")
    k(f"""
    v_lshl_add_u32 v33, v5, 6, v32
    v_min_u32 v34, 2100, v33
    v_add_u32 v35, 16, v33
    v_min_u32 v35, 2100, v35
    v_add_u32 v36, 32, v33
    v_min_u32 v36, 2100, v36
    v_add_u32 v37, 48, v33
    v_min_u32 v37, 2100, v37
    v_lshlrev_b32 v34, 2, v34
    v_lshlrev_b32 v35, 2, v35
    v_lshlrev_b32 v36, 2, v36
    v_lshlrev_b32 v37, 2, v37
    """)
    for t in range(8):
        k(f"s_waitcnt lgkmcnt({min(15, 2*(7-t))})")
        C = "0" if t == 0 else "v[28:31]"
        k(f"v_mfma_f32_16x16x32_f16 v[28:31], v[{64+8*t}:{64+8*t+3}], v[{68+8*t}:{68+8*t+3}], {C}")
    k(f"""
    s_nop 7
    ds_write_b32 v34, v28 offset:{KT}
    ds_write_b32 v35, v29 offset:{KT}
    ds_write_b32 v36, v30 offset:{KT}
    ds_write_b32 v37, v31 offset:{KT}
    """)
    k.label(f"L{name}_V_skipmm")
    k("s_waitcnt lgkmcnt(0)\ns_barrier")
    if opts.get("tags"): k("v_mov_b32 v58, 0\nbuffer_load_dword v57, v58, s[56:59], 0 offen sc1")
    for i in range(8): k(f"ds_read_b32 v{48+i}, v{40+i} offset:{KT}")
    k(f"""
    v_mov_b32 v16, 0
    v_mov_b32 v17, 0
    v_mov_b32 v18, 0
    v_mov_b32 v19, 0
    v_lshlrev_b32 v14, 4, v0                   ; tid*16
    v_cmp_gt_u32 vcc, 160, v0
    s_and_saveexec_b64 s[22:23], vcc
    ds_write_b128 v14, v[16:19]
    s_mov_b64 exec, s[22:23]
    v_cmp_gt_u32 vcc, 32, v0
    v_lshrrev_b32 v15, 3, v0
    v_mul_u32_u24 v15, {CS}, v15
    v_and_b32 v20, 7, v0
    v_lshl_add_u32 v15, v20, 4, v15
    s_and_saveexec_b64 s[22:23], vcc
    ds_write_b128 v15, v[16:19] offset:{KB}
    s_mov_b64 exec, s[22:23]
    v_lshlrev_b32 v15, 1, v0
    s_waitcnt lgkmcnt(0)
    """)
    for i in range(8):
        k(f"v_cvt_f16_f32 v{48+i}, v{48+i}")
        k(f"ds_write_b16 v15, v{48+i} offset:{KB + 128 + 512*i}")
    k("s_waitcnt lgkmcnt(0)\ns_barrier")
    k(f"""
    ds_read_b128 v[24:27], v14 offset:{KB + 128}
    ds_read_b64 v[22:23], v14 offset:{KB + 120}
    """)
    if not opts.get("tags"):
        k(f"""
        s_cmp_lg_u32 s17, 0
        s_cbranch_scc1 L{name}_V_nopoll
        """)
        poll_flags(k, name, "V", 56, 44, opts.get("vsleep", 4), 56, 21, 60, opts.get("R", 8))
    k.label(f"L{name}_V_nopoll")
    k(f"""
    s_waitcnt lgkmcnt(0)
    v_alignbit_b32 v28, v23, v22, 16
    v_alignbit_b32 v29, v24, v23, 16
    v_alignbit_b32 v30, v25, v24, 16
    v_alignbit_b32 v31, v26, v25, 16
    v_alignbit_b32 v32, v27, v26, 16
    v_mov_b32 v36, v29
    v_mov_b32 v37, v30
    v_mov_b32 v38, v31
    v_mov_b32 v39, v32
    v_mov_b32 v40, v23
    v_mov_b32 v41, v24
    v_mov_b32 v42, v25
    v_mov_b32 v43, v26
    ds_write_b128 v14, v[28:31] offset:{KB + 3*CS + 128}
    ds_write_b128 v14, v[36:39] offset:{KB + 1*CS + 128}
    ds_write_b128 v14, v[40:43] offset:{KB + 2*CS + 128}
    s_barrier
    """)
    if opts.get("tags"):
        k(f"""
        v_mul_u32_u24 v20, {576*64}, v0
        s_lshl_b32 s19, s16, 6
        s_add_u32 s19, s19, {WS_UX2}               ; + d*64
        v_lshrrev_b32 v56, 3, v0
        v_mul_u32_u24 v56, 160, v56
        v_and_b32 v49, 7, v0
        v_lshl_add_u32 v56, v49, 4, v56
        v_lshlrev_b32 v7, 3, v4
        v_lshrrev_b32 v21, 1, v5
        v_add_u32 v7, v7, v21
        s_lshl_b32 s25, s17, 1
        v_add_u32 v7, s25, v7
        v_mul_u32_u24 v7, {576*64}, v7
        v_and_b32 v21, 1, v5
        v_lshl_add_u32 v7, v21, 4, v7              ; + (q&1)*16
        s_add_u32 s25, s19, 32
        s_add_u32 s26, s25, {128*576*64}
        v_lshlrev_b32 v6, 7, v4
        v_lshl_add_u32 v6, v5, 3, v6               ; h^T offset: a*128 + q*8
        s_lshl_b32 s23, s17, 5                     ; mb*32
        s_lshl_b32 s24, s16, 12
        s_add_u32 s24, s24, s23
        s_mov_b32 s60, 0
        """)
        k.label(f"L{name}_V_nc")
        k(f"""
        s_waitcnt vmcnt(0)
        v_readfirstlane_b32 s61, v57
        s_cmp_lg_u32 s61, 0
        s_cbranch_scc1 L{name}_V_nok
        s_add_u32 s60, s60, 1
        s_cmp_lt_u32 s60, 0x40000
        s_cbranch_scc0 L{name}_V_nok
        s_sleep 2
        buffer_load_dword v57, v58, s[56:59], 0 offen sc1
        s_branch L{name}_V_nc
        """)
        k.label(f"L{name}_V_nok")
        k(f"s_xor_b32 s62, s61, {TAGX:#x}")
        k.label(f"L{name}_V_ld")
        k(f"""
        buffer_load_dwordx4 v[44:47], v20, s[44:47], s19 offen sc1
        buffer_load_dwordx4 v[48:51], v20, s[44:47], s19 offen offset:16 sc1
        buffer_load_dwordx4 v[8:11], v7, s[44:47], s25 offen sc1
        buffer_load_dwordx4 v[52:55], v7, s[44:47], s26 offen sc1
        s_waitcnt vmcnt(0)
        v_cmp_ne_u32 vcc, s61, v46
        v_cmp_ne_u32 s[64:65], s62, v47
        s_or_b64 vcc, vcc, s[64:65]
        v_cmp_ne_u32 s[64:65], s61, v50
        s_or_b64 vcc, vcc, s[64:65]
        v_cmp_ne_u32 s[64:65], s62, v51
        s_or_b64 vcc, vcc, s[64:65]
        v_cmp_ne_u32 s[64:65], s61, v10
        s_or_b64 vcc, vcc, s[64:65]
        v_cmp_ne_u32 s[64:65], s62, v11
        s_or_b64 vcc, vcc, s[64:65]
        v_cmp_ne_u32 s[64:65], s61, v54
        s_or_b64 vcc, vcc, s[64:65]
        v_cmp_ne_u32 s[64:65], s62, v55
        s_or_b64 vcc, vcc, s[64:65]
        s_cbranch_vccz L{name}_V_ldok
        s_add_u32 s60, s60, 1
        s_cmp_lt_u32 s60, 0x40000
        s_cbranch_scc0 L{name}_V_ldok
        s_sleep {opts.get("vsleep", 4)}
        s_branch L{name}_V_ld
        """)
        k.label(f"L{name}_V_ldok")
        k(f"""
        v_mov_b32 v10, v52
        v_mov_b32 v11, v53
        ds_write_b64 v56, v[44:45] offset:{UD}
        ds_write_b64 v56, v[48:49] offset:{UD + 8}
        """)
    else:
        k(f"""
        v_mul_u32_u24 v20, {576*32}, v0
        s_lshl_b32 s19, s16, 5
        s_add_u32 s19, s19, {WS_UX}                ; + d*32
        buffer_load_dwordx4 v[44:47], v20, s[44:47], s19 offen sc1
        v_lshrrev_b32 v48, 3, v0
        v_mul_u32_u24 v48, 160, v48
        v_and_b32 v49, 7, v0
        v_lshl_add_u32 v48, v49, 4, v48
        v_lshlrev_b32 v7, 3, v4
        v_lshrrev_b32 v21, 1, v5
        v_add_u32 v7, v7, v21
        s_lshl_b32 s25, s17, 1
        v_add_u32 v7, s25, v7                      ; 8a + 2mb + (q>>1)
        v_mul_u32_u24 v7, {576*32}, v7
        v_and_b32 v21, 1, v5
        v_lshl_add_u32 v7, v21, 3, v7
        s_add_u32 s25, s19, 16
        buffer_load_dwordx2 v[8:9], v7, s[44:47], s25 offen sc1
        s_add_u32 s25, s25, {128*576*32}
        buffer_load_dwordx2 v[10:11], v7, s[44:47], s25 offen sc1
        v_lshlrev_b32 v6, 7, v4
        v_lshl_add_u32 v6, v5, 3, v6               ; h^T offset: a*128 + q*8
        s_lshl_b32 s23, s17, 5                     ; mb*32
        s_lshl_b32 s24, s16, 12
        s_add_u32 s24, s24, s23
        """)
    k(f"""
    v_bfe_u32 v52, v1, 2, 2
    v_mul_u32_u24 v52, {CS}, v52
    v_and_b32 v53, 3, v1
    v_lshl_add_u32 v52, v53, 3, v52
    v_lshlrev_b32 v53, 4, v5
    v_sub_u32 v52, v52, v53
    s_lshl_b32 s27, s17, 9
    s_add_u32 s27, s27, {KB + 128 - 64 - 8}
    v_add_u32 v12, s27, v52                    ; A base
    v_mul_u32_u24 v53, 160, v4
    v_lshl_add_u32 v53, v5, 4, v53
    s_mul_i32 s27, s17, {4*160}
    s_sub_u32 s27, {UD - 3*160}, s27
    v_add_u32 v13, s27, v53                    ; B base
    {"" if opts.get("tags") else "s_waitcnt vmcnt(2)"}
    {"" if opts.get("tags") else f"ds_write_b128 v48, v[44:47] offset:{UD}"}
    s_waitcnt lgkmcnt(0)
    s_barrier
    """)
    ACC = 16; BSET = [48, 64]; A1, A2 = 80, 104; RNG = 6
    def loadsB(si):
        L = []
        for na in range(2):
            for kk in range(2):
                r = BSET[si & 1] + 4*(2*na + kk)
                L.append(f"ds_read_b128 v[{r}:{r+3}], v13 offset:{(16*na + 3 - si)*160 + 64*kk}")
        return L
    def loadsA(tas):
        L = []
        for ta in tas:
            for rng in range(2):
                base = (A1 if rng == 0 else A2) + 4*(ta % RNG)
                for i in range(2):
                    L.append(f"ds_read_b64_tr_b16 v[{base+2*i}:{base+2*i+1}], v12 offset:{32*ta + 8*(1-i) + (2048 if rng else 0)}")
        return L
    k("v_mov_b32 v14, v62\nv_mov_b32 v15, v63")
    L0 = loadsB(0) + loadsA(range(0, 6))
    for n, l in enumerate(L0):
        k(l)
        if n in (11, 19): k("s_waitcnt lgkmcnt(4)")
    first = {}
    def mfmas(si, kk, mbs):
        out = []
        Bb = BSET[si & 1]
        for mb in mbs:
            ta = 4*si + 2 + mb - 2*kk
            for rng, na, bsel in ((0, 0, 0), (0, 1, 1), (1, 1, 0)):
                acc = ACC + 8*mb + 4*na
                A = (A1 if rng == 0 else A2) + 4*(ta % RNG)
                B = Bb + 4*(2*bsel + kk)
                C = f"v[{acc}:{acc+3}]" if (mb, na) in first else "0"
                first[(mb, na)] = 1
                out.append(f"v_mfma_f32_16x16x32_f16 v[{acc}:{acc+3}], v[{A}:{A+3}], v[{B}:{B+3}], {C}")
        return out
    for si in range(4):
        k("s_waitcnt lgkmcnt(0)")
        for m in mfmas(si, 1, range(4)): k(m)
        if si < 3:
            for l in loadsB(si + 1) + loadsA([4*si + 6, 4*si + 7]): k(l)
        for m in mfmas(si, 0, range(2)): k(m)
        mm = mfmas(si, 0, range(2, 4))
        if si < 3:
            k("s_waitcnt lgkmcnt(6)")
            for l in loadsA([4*si + 8, 4*si + 9]): k(l)
        for m in mm: k(m)
    k(f"""
    s_barrier
    v_lshlrev_b32 v12, 4, v1
    s_mul_i32 s27, s17, {6*1024}
    v_add_u32 v12, s27, v12
    """)
    for mb in range(4):
        k(f"s_cmp_eq_u32 s17, {mb}\ns_cbranch_scc1 L{name}_skw{mb}")
        k(f"s_sub_u32 s28, {mb + 3}, s17\ns_and_b32 s28, s28, 3\ns_lshl_b32 s28, s28, 11\nv_add_u32 v13, s28, v12")
        for na in range(2):
            acc = ACC + 8*mb + 4*na
            k(f"ds_write_b128 v13, v[{acc}:{acc+3}] offset:{RED + na*1024}")
        k.label(f"L{name}_skw{mb}")
    for mb in range(4):
        k(f"s_cmp_lg_u32 s17, {mb}\ns_cbranch_scc1 L{name}_mv{mb}")
        for i in range(8): k(f"v_mov_b32 v{48+i}, v{ACC+8*mb+i}")
        k.label(f"L{name}_mv{mb}")
    k("s_waitcnt lgkmcnt(0)\ns_barrier")
    k("v_lshlrev_b32 v12, 4, v1")
    for t in range(3):
        k(f"""
        s_sub_u32 s28, s17, {1+t}
        s_and_b32 s28, s28, 3
        s_mul_i32 s28, s28, {6*1024}
        s_add_u32 s28, s28, {t*2048}
        v_add_u32 v13, s28, v12
        ds_read_b128 v[{56+8*t}:{56+8*t+3}], v13 offset:{RED}
        ds_read_b128 v[{60+8*t}:{60+8*t+3}], v13 offset:{RED+1024}
        """)
    k(f"""
    v_mul_u32_u24 v13, 160, v4
    v_lshl_add_u32 v13, v5, 3, v13
    v_add_u32 v13, s23, v13
    ds_read_b64 v[80:81], v13 offset:{UD}
    ds_read_b64 v[82:83], v13 offset:{UD + 16*160}
    s_waitcnt vmcnt(0) lgkmcnt(0)
    """)
    for t in range(3):
        for i in range(8): k(f"v_add_f32 v{48+i}, v{48+i}, v{56+8*t+i}")
    for na in range(2):
        Y = 48 + 4*na
        for p in range(2):
            y0, y1 = Y + 2*p, Y + 2*p + 1
            ur = 80 + 2*na + p; xr = 8 + 2*na + p
            k(f"""
            v_mul_f32 v{y0}, v{y0}, v15
            v_mul_f32 v{y1}, v{y1}, v15
            v_cvt_pk_bf16_f32 v84, v{y0}, v{y1}
            v_cvt_f32_f16 v85, v{ur}
            v_cvt_f32_f16_sdwa v86, v{ur} dst_sel:DWORD dst_unused:UNUSED_PAD src0_sel:WORD_1
            v_mul_f32 v85, v85, v14
            v_mul_f32 v86, v86, v14
            v_cvt_pk_bf16_f32 v85, v85, v86
            v_lshlrev_b32 v86, 16, v84
            v_and_b32 v84, 0xffff0000, v84
            v_lshlrev_b32 v87, 16, v85
            v_and_b32 v85, 0xffff0000, v85
            v_add_f32 v86, v86, v87
            v_add_f32 v84, v84, v85
            v_cvt_pk_bf16_f32 v84, v86, v84
            v_lshlrev_b32 v86, 16, v84
            v_and_b32 v84, 0xffff0000, v84
            v_lshlrev_b32 v87, 16, v{xr}
            v_and_b32 v85, 0xffff0000, v{xr}
            v_add_f32 v86, v86, v87
            v_add_f32 v84, v84, v85
            v_cvt_pk_bf16_f32 v{88 + 2*na + p}, v86, v84
            """)
    k(f"""
    s_add_u32 s25, s24, {WS_HT}
    buffer_store_dwordx2 v[88:89], v6, s[44:47], s25 offen
    buffer_store_dwordx2 v[90:91], v6, s[44:47], s25 offen offset:2048
    """)

def gen_ka(name="ka_kernel", opts=None):
    opts = opts or {}
    k = K(name)
    if opts.get("selfpf", True):
        k(f"""
        s_getpc_b64 s[4:5]
        L{name}_pc0:
        v_lshlrev_b32 v1, 7, v0
        v_min_u32 v1, {opts.get("selfpf_bytes", 14336) - 128}, v1
        global_load_dword v127, v1, s[4:5]
        """)
    k(f"""
    s_cmp_ge_u32 s2, {NP+NV+NB}
    s_cbranch_scc1 L{name}_end
    s_cmp_ge_u32 s2, {NP+NV}
    s_cbranch_scc1 L{name}_B
    s_cmp_ge_u32 s2, {NP}
    s_cbranch_scc1 L{name}_V
    """)
    role_P(k, name, opts)
    k.label(f"L{name}_B")
    role_B(k, name, opts)
    k.label(f"L{name}_V")
    role_V(k, name, opts)
    k.label(f"L{name}_end")
    k("s_endpgm")
    return k
if __name__ == "__main__":
    from asmlib import build_file
    k = gen_ka()
    build_file("mb/ka.s", [(k, 128, 80, 128)], [("ka_kernel", NP+NV+NB, 256, KA_LDS)])
```

```python
from gen_k3 import WS_DBG, WS_END
def instrument(k, slot, sreg=40):
    name = k.name
    lines = k.lines
    lines.insert(0, f"    s_memrealtime s[96:97]")
    lines.insert(1, f"    s_mov_b32 s98, s2")
    idx = max(i for i, l in enumerate(lines) if l.startswith(f"L{name}_end:"))
    tail = f"""
    s_mov_b64 exec, -1
    s_waitcnt vmcnt(0) lgkmcnt(0)
    s_memrealtime s[{sreg+2}:{sreg+3}]
    s_load_dwordx2 s[{sreg+4}:{sreg+5}], s[0:1], 104
    s_waitcnt lgkmcnt(0)
    v_mov_b32 v6, s96
    v_mov_b32 v7, s{sreg+2}
    v_lshrrev_b32 v3, 6, v0
    v_and_b32 v4, 63, v0
    s_lshl_b32 s{sreg+7}, s98, 5
    s_add_u32 s{sreg+7}, s{sreg+7}, {WS_END + slot*65536}
    s_add_u32 s{sreg+4}, s{sreg+4}, s{sreg+7}
    s_addc_u32 s{sreg+5}, s{sreg+5}, 0
    v_lshlrev_b32 v3, 3, v3
    v_lshrrev_b32 v5, 8, v0
    v_or_b32 v4, v4, v5
    v_cmp_eq_u32 vcc, 0, v4
    s_and_saveexec_b64 s[{sreg+8}:{sreg+9}], vcc
    global_store_dwordx2 v3, v[6:7], s[{sreg+4}:{sreg+5}]
    s_waitcnt vmcnt(0)
    """
    new = ["    " + l.strip() for l in tail.strip().split("\n")]
    lines[idx+1:idx+1] = new
```

```python
import sys
from asmlib import build_file
from gen_ka import gen_ka, NP, NV, KA_LDS, nb_of
from gen_k3b import gen_k3b, LDS_BYTES
from gen_k4 import gen_k4
from instr import instrument
HEADER = """; sequential_preLN -> S4D conv -> preLN -> GEGLU FFN, gfx950.  Generated by a hand-written generator.
"""
K4LDS = 98304
def build(fn, instr=False, k3opts=None, kaopts=None, k4flag='', hflag=''):
    ka = gen_ka(opts=kaopts); k3 = gen_k3b(opts=k3opts); k4 = gen_k4(v2=True, nine=True, noh=(k3opts or {}).get('resid', True))
    k3.lines = [l + ' sc1' if ('buffer_store_dwordx4' in l and 's[88:91]' not in l) else l for l in k3.lines]
    if k4flag: k4.lines = [l + k4flag if 'buffer_store_dwordx4' in l else l for l in k4.lines]
    if hflag: ka.lines = [l + hflag if ('buffer_store_dwordx2' in l) else l for l in ka.lines]
    sg = 80
    if instr:
        for i, k in enumerate((ka, k3, k4)): instrument(k, i)
        sg = 102
    ks = [(ka, 128, sg, 128), (k3, 512, 102, 256), (k4, 104, 102 if instr else 32, 104)]
    launches = [("ka_kernel", NP+NV+nb_of(kaopts), 256, KA_LDS), ("k3_kernel", 256, 256, LDS_BYTES), ("k4_kernel", 256, 576, K4LDS)]
    if k3opts and k3opts.get("fuse"):
        ks = ks[:2]; launches = launches[:2]
    build_file(fn, ks, launches, header=HEADER)
if __name__ == "__main__":
    KO = {"bwait": True, "codepf": 7, "bone": 1, "bsleep": 24, "vsleep": 8}
    K3O = {"midbar": 2}
    build("mb/all2.s", kaopts=KO, k3opts=K3O); build("mb/all2_i.s", instr=True, kaopts=KO, k3opts=K3O)
    if len(sys.argv) > 1: build("sequential_preLN__ssm_conv_s4d__geglu_ffn__prompt.s", kaopts=KO, k3opts=K3O)
```

```python
from asmlib import K
import math, struct
from gen_k3 import (WS_HT, WS_CS, WS_PART, WS_DBG, WS_END, WS_SC, K0C, K1C, f2u, VmTracker)
WS_CNT = WS_SC
PSZ = 2048*576*2

UNIT = 12288
NUNIT = 12
LDS_BYTES = UNIT*NUNIT

def gen_k3b(name="k3_kernel", LA=6, RING=8, opts=None):
    opts = opts or {}
    LA = opts.get("LA", LA); RING = opts.get("RING", RING)
    k = K(name)
    vm = VmTracker(63); lg = VmTracker(15)
    vLANE = 0
    vDA = [1, 2, 3]
    vDH = [4, 5, 6]
    vDD = [7, 8, 9]
    vC0, vC1, vS2 = [10, 11], [12, 13], [14, 15]
    vST = 16
    vRB = list(range(17, 33))
    vLH = 33
    vLH1 = 34
    vTMP = list(range(35, 48))
    vACC = [48, 112]
    vH = 176
    vT = 248
    vX = list(range(112, 118))
    vXL = [118, 119]
    vXB = [120, 121]
    vS1 = [122, 123]; vS2s = [124, 125]; vONE = 126; vTA = [127, 128, 129, 130]
    CS2 = opts.get("cs2", False)
    aX = 0; aR = 144; aCS = aR + 4*RING; aBM = aCS + (74 if CS2 else 38)
    aONE = aBM + (8 if CS2 else 16)
    assert aONE + 4 <= 256 and aCS % 2 == 0 and aBM % 2 == 0
    sWM = 8; sWD = 12; sWS = 16
    sW, sJ, sMT = 20, 21, 22
    sW1F, sW1H, sM1 = 23, 24, 25
    sD, sMD = 26, 27
    sDw = 28
    sSO = 32; sPART = 33; sXO, sMX = 34, 35
    sT0, sT1, sT2, sT3 = 36, 37, 38, 39
    nst = [0]
    def stamp():
        if not opts.get("stamps"): return
        k("s_memrealtime s[60:61]" if opts.get("rt") else "s_memtime s[60:61]")
        k("s_waitcnt lgkmcnt(0)")
        k(f"s_mov_b32 s{62 + nst[0]}, s60")
        lg.done = len(lg.q)
        nst[0] += 1
    k(f"""
    s_cmp_ge_u32 s2, 256
    s_cbranch_scc1 L{name}_end
    s_load_dwordx4 s[4:7], s[0:1], 64
    s_load_dwordx2 s[40:41], s[0:1], 80        ; w_down
    s_load_dwordx2 s[42:43], s[0:1], 104       ; ws
    s_load_dwordx2 s[88:89], s[0:1], 88        ; out
    v_lshrrev_b32 v{vTMP[0]}, 6, v0
    v_and_b32 v{vLANE}, 63, v0
    s_nop 0
    v_readfirstlane_b32 s{sW}, v{vTMP[0]}
    """)
    MAP4 = opts.get("map4", False)
    sROT = 95
    if not MAP4:
        k(f"""
        s_and_b32 s{sT0}, s2, 7
        s_lshr_b32 s{sT1}, s2, 3
        s_and_b32 s{sT2}, s{sT1}, 1                 ; parity
        s_lshl_b32 s{sJ}, s{sT0}, 1
        s_add_u32 s{sJ}, s{sJ}, s{sT2}              ; split j
        s_lshr_b32 s{sMT}, s{sT1}, 1                ; m tile
        s_mul_i32 s{sROT}, s{sT2}, {3 if opts.get('rot') else 0}
        """)
    else:
        k(f"""
        s_and_b32 s{sT0}, s2, 7
        s_lshr_b32 s{sT1}, s2, 3
        s_and_b32 s{sT2}, s{sT1}, 3                 ; js
        s_lshr_b32 s{sJ}, s{sT0}, 1
        s_lshl_b32 s{sJ}, s{sJ}, 2
        s_add_u32 s{sJ}, s{sJ}, s{sT2}
        s_and_b32 s{sMT}, s{sT0}, 1
        s_lshl_b32 s{sMT}, s{sMT}, 3
        s_lshr_b32 s{sT1}, s{sT1}, 2
        s_add_u32 s{sMT}, s{sMT}, s{sT1}
        s_lshl_b32 s{sT2}, s{sT2}, 2
        s_lshr_b32 s{sROT}, {opts.get("rotpat", 0x5320)}, s{sT2}
        s_and_b32 s{sROT}, s{sROT}, 15              ; rotation
        """)
    t0, t1, t2, t3, t4, t5, t6 = vTMP[0:7]
    k(f"""
    v_lshrrev_b32 v{t0}, 4, v{vLANE}            ; row 0..3
    v_bfe_u32 v{t1}, v{vLANE}, 1, 3             ; unit32
    v_and_b32 v{t2}, 1, v{vLANE}
    v_lshlrev_b32 v{t2}, 4, v{t2}               ; (sigma16&1)*16
    v_lshlrev_b32 v{t3}, 12, v{t0}              ; row*4096
    v_add_u32 v{t3}, v{t3}, v{t2}
    v_xor_b32 v{t4}, v{t1}, v{t0}               ; par 0
    v_xor_b32 v{t5}, 4, v{t4}                   ; par 1
    v_lshl_add_u32 v{t4}, v{t4}, 5, v{t3}
    v_lshl_add_u32 v{t5}, v{t5}, 5, v{t3}
    """)
    for tp in range(6):
        src = t4 if tp % 2 == 0 else t5
        k(f"v_add_u32 v{vX[tp]}, {(tp % 3)*(4*4096-1024)}, v{src}")
    k(f"""
    v_lshrrev_b32 v{t0}, 3, v{vLANE}
    v_bfe_u32 v{t1}, v{vLANE}, 1, 2
    v_bfe_u32 v{t2}, v{vLANE}, 4, 2
    v_xor_b32 v{t1}, v{t1}, v{t2}
    v_and_b32 v{t2}, 1, v{vLANE}
    v_lshlrev_b32 v{t2}, 4, v{t2}
    v_lshl_add_u32 v{t1}, v{t1}, 5, v{t2}
    v_mul_u32_u24 v{t2}, 9216, v{t0}
    v_add_u32 v{vDA[0]}, v{t2}, v{t1}
    v_mul_u32_u24 v{t2}, 1152, v{t0}
    v_add_u32 v{vDD[0]}, v{t2}, v{t1}
    v_lshrrev_b32 v{t0}, 2, v{vLANE}
    v_bfe_u32 v{t1}, v{vLANE}, 1, 1
    v_bfe_u32 v{t2}, v{vLANE}, 4, 1
    v_xor_b32 v{t1}, v{t1}, v{t2}
    v_and_b32 v{t2}, 1, v{vLANE}
    v_lshlrev_b32 v{t2}, 4, v{t2}
    v_lshl_add_u32 v{t1}, v{t1}, 5, v{t2}
    v_mul_u32_u24 v{t2}, 9216, v{t0}
    v_add_u32 v{vDH[0]}, v{t2}, v{t1}
    """)
    for i in range(1, 3):
        k(f"v_add_u32 v{vDA[i]}, {i*(8*9216-1024)}, v{vDA[0]}")
        k(f"v_add_u32 v{vDD[i]}, {i*(8*1152-1024)}, v{vDD[0]}")
        k(f"v_add_u32 v{vDH[i]}, {i*(16*9216-1024)}, v{vDH[0]}")
    k(f"""
    s_mul_i32 s{sXO}, s{sW}, {24*4096}
    s_lshl_b32 s{sT0}, s{sMT}, 8
    s_add_u32 s{sXO}, s{sXO}, s{sT0}
    s_add_u32 s{sXO}, s{sXO}, {WS_HT}           ; X: + (96p + 24w + 12u)*4096
    s_mul_i32 s{sMX}, s{sW}, {6*1024}
    s_and_b32 s{sT2}, s{sJ}, 1                  ; parity
    s_mul_i32 s{sT0}, s{sJ}, 288                ; F0
    s_lshl_b32 s{sT1}, s{sT2}, 5
    s_add_u32 s{sT1}, s{sT0}, s{sT1}            ; FG0
    s_xor_b32 s{sT3}, s{sT2}, 1
    s_lshl_b32 s{sT3}, s{sT3}, 8
    s_add_u32 s{sT3}, s{sT0}, s{sT3}            ; FH
    s_and_b32 s46, s{sW}, 1
    s_lshr_b32 s47, s{sW}, 1
    ; phase 1: waves 0,1 -> gate unit, waves 2,3 -> up unit. each wave 6 instr: rows 48*(w&1) + 8*t (full) ; rows 96*(w&1)+16t (half)
    s_mul_i32 s{sW1F}, s46, {48*9216}
    s_lshl_b32 s48, s{sT1}, 1
    s_add_u32 s{sW1F}, s{sW1F}, s48
    s_mul_i32 s{sW1H}, s46, {96*9216}
    s_lshl_b32 s48, s{sT3}, 1
    s_add_u32 s{sW1H}, s{sW1H}, s48
    s_mul_i32 s{sM1}, s47, {UNIT}
    s_mul_i32 s48, s46, 6144
    s_add_u32 s{sM1}, s{sM1}, s48
    """)
    sWq = list(range(76, 82)); sXq = list(range(82, 88)); sW1Hq = [92, 93, 94]
    for q in range(6):
        k(f"""
        s_add_u32 s48, s{sROT}, {q}
        s_cmp_ge_u32 s48, 6
        s_cselect_b32 s49, 6, 0
        s_sub_u32 s48, s48, s49
        s_mul_i32 s49, s48, {96*9216}
        s_add_u32 s{sWq[q]}, s{sW1F}, s49
        s_mul_i32 s49, s48, {96*4096}
        s_add_u32 s{sXq[q]}, s{sXO}, s49
        """)
    for q in range(3):
        k(f"""
        s_add_u32 s48, s46, {2*q}
        s_add_u32 s48, s48, s{sROT}
        s_cmp_ge_u32 s48, 6
        s_cselect_b32 s49, 6, 0
        s_sub_u32 s48, s48, s49
        s_mul_i32 s48, s48, {96*9216}
        s_lshl_b32 s49, s{sT3}, 1
        s_add_u32 s{sW1Hq[q]}, s48, s49
        """)
    sDb = [50, 51, 52, 53, 54]
    for n, (rho_add, tcomp) in enumerate(((0, 0), (96, 0), (192, 0), (200, 1), (208, 2))):
        k(f"""
        s_mul_i32 s48, s{sW}, 24
        s_add_u32 s48, s48, {rho_add}
        s_lshl_b32 s49, s{sT2}, 5
        s_add_u32 s48, s48, s49
        s_cmp_ge_u32 s48, 288
        s_cselect_b32 s49, 288, 0
        s_sub_u32 s48, s48, s49
        s_add_u32 s48, s48, s{sT0}
        s_mul_i32 s{sDb[n]}, s48, 1152
        """)
        if tcomp: k(f"s_sub_u32 s{sDb[n]}, s{sDb[n]}, {tcomp*8*1152}")
    k(f"s_mul_i32 s{sMD}, s{sW}, 3072")
    k(f"""
    s_lshl_b32 s48, s{sJ}, 4
    s_add_u32 s48, s48, s{sMT}
    s_lshl_b32 s48, s48, 2
    s_add_u32 s48, s48, s{sW}
    s_mul_i32 s{sPART}, s48, {36*1024}
    s_add_u32 s{sPART}, s{sPART}, {WS_PART}
    v_lshlrev_b32 v{vST}, 4, v{vLANE}
    s_lshl_b32 s44, s{sT1}, 2
    s_add_u32 s44, s44, {WS_CS}
    s_lshl_b32 s45, s{sT3}, 2
    s_add_u32 s45, s45, {WS_CS}
    """)
    k("s_waitcnt lgkmcnt(0)")
    k(f"""
    s_cmp_ge_u32 s{sW}, 2
    s_cselect_b32 s{sWM}, s6, s4
    s_cselect_b32 s{sWM+1}, s7, s5
    s_mov_b32 s{sWM+2}, {576*4608*2}
    s_mov_b32 s{sWM+3}, 0x20000
    s_mov_b32 s{sWD}, s40
    s_mov_b32 s{sWD+1}, s41
    s_mov_b32 s{sWD+2}, {4608*576*2}
    s_mov_b32 s{sWD+3}, 0x20000
    s_mov_b32 s{sWS}, s42
    s_mov_b32 s{sWS+1}, s43
    s_mov_b32 s{sWS+2}, {WS_END}
    s_mov_b32 s{sWS+3}, 0x20000
    s_mov_b32 s90, {PSZ}
    s_mov_b32 s91, 0x20000
    """)
    stamp()
    def dma(voff, srd, i):
        off = f" offset:{i*1024}" if i else ""
        return f"buffer_load_dwordx4 v{voff}, s[{srd}:{srd+3}], s{sSO} offen{off} lds"
    items = []
    for p in range(6): items += [("X", p), ("W", p)]
    items += [("W", p) for p in range(6, 27)]
    items += [("D", p) for p in range(9)]
    upos = {}; u = 0
    for it in items:
        n = 3 if it[0] == "D" else 2
        upos[it] = u % NUNIT
        assert (u % NUNIT) + n <= NUNIT
        u += n
    uabs = {}; u = 0
    for it in items:
        n = 3 if it[0] == "D" else 2
        uabs[it] = (u, u + n); u += n
    def dma_ops(it):
        ty, p = it; base = upos[it]*UNIT
        ops = []
        if ty == "X":
            for g in range(2):
                ops.append(("s", [f"s_add_u32 s{sSO}, s{sXq[p]}, {(12*g)*4096}", f"s_add_u32 m0, s{sMX}, {base + g*3072}"]))
                for t in range(3): ops.append(("d", dma(vX[3*g+t], sWS, t)))
        elif ty == "W" and p < 24:
            grp, q = p // 6, p % 6
            for g in range(2):
                ops.append(("s", [f"s_add_u32 s{sSO}, s{sWq[q]}, {(24*g)*9216 + grp*128}", f"s_add_u32 m0, s{sM1}, {base + g*3072}"]))
                for t in range(3): ops.append(("d", dma(vDA[t], sWM, t)))
        elif ty == "W":
            q = p - 24
            for g in range(2):
                ops.append(("s", [f"s_add_u32 s{sSO}, s{sW1Hq[q]}, {(48*g)*9216}", f"s_add_u32 m0, s{sM1}, {base + g*3072}"]))
                for t in range(3): ops.append(("d", dma(vDH[t], sWM, t)))
        else:
            for u3 in range(2):
                ops.append(("s", [f"s_add_u32 s{sSO}, s{sDb[u3]}, {p*128}", f"s_add_u32 m0, s{sMD}, {base + u3*UNIT}"]))
                for t in range(3): ops.append(("d", dma(vDD[t], sWD, t)))
            for t in range(3):
                l = [f"s_add_u32 s{sSO}, s{sDb[2+t]}, {p*128}"]
                if t == 0: l.append(f"s_add_u32 m0, s{sMD}, {base + 2*UNIT}")
                ops.append(("s", l))
                ops.append(("d", dma(vDD[t], sWD, t)))
        return ops
    def emit_dma_all(it):
        for kind, x in dma_ops(it):
            if kind == "s":
                for l in x: k(l)
                k("s_nop 0")
            else:
                k(x); vm.issue(it)
    issued = []
    for it in items[:2]:
        emit_dma_all(it); issued.append(it)
    def cs_ops():
        per = 72 if CS2 else 36
        L = [(1, f"v_and_b32 v{vTMP[10]}, 15, v{vLANE}"), (1, f"v_mul_u32_u24 v{vTMP[10]}, {per*4}, v{vTMP[10]}"),
             (1, f"s_mul_i32 s44, s{sJ}, {16*per*4}"), (1, f"s_add_u32 s44, s44, {WS_CS}")]
        for n in range(per // 4):
            off = f" offset:{16*n}" if n else ""
            L.append((1, ("load", f"buffer_load_dwordx4 a[{aCS+4*n}:{aCS+4*n+3}], v{vTMP[10]}, s[{sWS}:{sWS+3}], s44 offen{off}")))
        return L
    k(f"""
    v_bfe_u32 v{t0}, v{vLANE}, 2, 2             ; r'
    v_lshrrev_b32 v{t1}, 4, v{vLANE}            ; q
    v_lshl_add_u32 v{t2}, v{t1}, 2, v{t0}       ; rr = 4q + r'
    v_and_b32 v{t3}, 3, v{vLANE}
    v_lshlrev_b32 v{t3}, 3, v{t3}               ; 8c
    v_bfe_u32 v{t4}, v{t2}, 1, 2                ; g = (rr>>1)&3
    v_lshlrev_b32 v{t5}, 7, v{t2}
    v_add_u32 v{t5}, v{t5}, v{t3}
    v_lshl_add_u32 v{t5}, v{t4}, 5, v{t5}
    """)
    vLC0 = vTMP[7]
    k(f"v_mov_b32 v{vLC0}, v{t5}")
    def set_bases_p1():
        L = []
        for wdw in range(3):
            for ft in range(4):
                L.append(f"v_xor_b32 v{vRB[4*wdw+ft]}, {ft*32}, v{vLC0}")
                if wdw: L.append(f"v_add_u32 v{vRB[4*wdw+ft]}, {wdw*49152}, v{vRB[4*wdw+ft]}")
        return L
    def set_bases_p2():
        L = []
        for sl in range(4):
            for nt in range(4):
                L.append(f"v_xor_b32 v{vRB[4*sl+nt]}, {nt*32}, v{vLC0}")
                if sl: L.append(f"v_add_u32 v{vRB[4*sl+nt]}, {sl*36864}, v{vRB[4*sl+nt]}")
        return L
    for l in set_bases_p1(): k(l)
    k(f"""
    ; half lane const: rr*64 + ((q&1)*32) + 8c
    v_lshlrev_b32 v{t5}, 6, v{t2}
    v_add_u32 v{t5}, v{t5}, v{t3}
    v_and_b32 v{t6}, 1, v{t1}
    v_lshl_add_u32 v{vLH}, v{t6}, 5, v{t5}
    v_xor_b32 v{vLH1}, 32, v{vLH}
    ; X lane consts: rr*256 + (((2w+j) ^ (rr&7))*32) + 8c
    v_lshlrev_b32 v{t5}, 8, v{t2}
    v_add_u32 v{t5}, v{t5}, v{t3}
    v_and_b32 v{t6}, 7, v{t2}
    s_lshl_b32 s48, s{sW}, 1
    v_xor_b32 v{t6}, s48, v{t6}
    v_lshl_add_u32 v{vXL[0]}, v{t6}, 5, v{t5}
    v_xor_b32 v{vXL[1]}, 32, v{vXL[0]}
    v_mov_b32 v{vONE}, 0x3f803f80
    """)
    for e in range(4): k(f"v_accvgpr_write_b32 a{aONE+e}, v{vONE}")
    vD1 = [132, 136]; vD2 = [140, 144]
    def stats_mf(p):
        L = []
        for s_ in range(3):
            for j in range(2):
                xs = aX + 4*(2*(3*p+s_) + j)
                first = (p == 0 and s_ == 0)
                L.append(dict(fr=None, acc=vD1[j], A=f"a[{aONE}:{aONE+3}]", B=f"a[{xs}:{xs+3}]", first=first, S=1))
                L.append(dict(fr=None, acc=vD2[j], A=f"a[{xs}:{xs+3}]", B=f"a[{xs}:{xs+3}]", first=first, S=1))
        return L
    NS1 = 27; NS = 36
    def stage_item(st): return ("W", st) if st < NS1 else ("D", st - NS1)
    def acc_reg(st, tile):
        if st < 24: return vACC[(st // 6) % 2] + 4*tile
        if st < 27: return vACC[0] + 4*tile
        return vACC[1] + 32*((st - 27) % 2) + 4*tile
    mf = []; frags = []
    for st in range(NS):
        it = stage_item(st); base = upos[it]*UNIT
        if st < 24:
            grp, q = st // 6, st % 6
            wdw, rel = base // 49152, base % 49152
            for s in range(3):
                for ft in range(4):
                    for mat in range(2):
                        rd = [(vRB[4*wdw+ft], rel + mat*UNIT + s*4096 + i*2048) for i in range(2)]
                        fr = dict(st=st, rd=rd); frags.append(fr)
                        for j in range(2):
                            xs = aX + 4*(2*(3*q+s) + j)
                            mf.append(dict(st=st, fr=fr, acc=acc_reg(st, (ft*2+mat)*2+j), B=f"a[{xs}:{xs+3}]", first=(q == 0 and s == 0), needX=q))
            if grp == 0:
                sm = stats_mf(q)
                start = len(mf) - 48
                blk = mf[start:]; del mf[start:]
                if q == 5:
                    for x in sm: x["st"] = st
                    mf.extend(sm); mf.extend(blk)
                else:
                    for n_, b in enumerate(blk):
                        mf.append(b)
                        if n_ % 4 == 3 and sm:
                            x = sm.pop(0); x["st"] = st; mf.append(x)
                    assert not sm
            if q == 5:
                for ft in range(4):
                    for mat in range(2):
                        idx = 2*(4*grp + ft) + mat; w0 = (aCS + 2*idx) if CS2 else (aCS + (idx & ~1))
                        for j in range(2):
                            bm = (aBM + 4*j) if CS2 else (aBM + 8*j + 4*(idx & 1))
                            mf.append(dict(st=st, fr=None, acc=acc_reg(st, (ft*2+mat)*2+j), A=f"a[{w0}:{w0+3}]", B=f"a[{bm}:{bm+3}]", first=False))
        elif st < 27:
            q = st - 24
            for s in range(6):
                for ft in range(2):
                    for mat in range(2):
                        rd = [("H%d" % ft, base + mat*UNIT + s*2048 + i*1024) for i in range(2)]
                        fr = dict(st=st, rd=rd); frags.append(fr)
                        for j in range(2):
                            xs = aX + 4*(2*(6*q+s) + j)
                            mf.append(dict(st=st, fr=fr, acc=acc_reg(st, (ft*2+mat)*2+j), B=f"a[{xs}:{xs+3}]", first=(q == 0 and s == 0)))
            if q == 2:
                for ft in range(2):
                    for mat in range(2):
                        idx = 2*(16 + ft) + mat; w0 = (aCS + 2*idx) if CS2 else (aCS + (idx & ~1))
                        for j in range(2):
                            bm = (aBM + 4*j) if CS2 else (aBM + 8*j + 4*(idx & 1))
                            mf.append(dict(st=st, fr=None, acc=acc_reg(st, (ft*2+mat)*2+j), A=f"a[{w0}:{w0+3}]", B=f"a[{bm}:{bm+3}]", first=False))
        else:
            sl = upos[it] // 3
            for t in range(9):
                for nt in range(4):
                    rd = [(vRB[4*sl+nt], t*4096 + i*2048) for i in range(2)]
                    fr = dict(st=st, rd=rd); frags.append(fr)
                    for j in range(2):
                        h = vH + 8*t + 4*j
                        mf.append(dict(st=st, fr=fr, acc=acc_reg(st, nt*2+j), B=f"v[{h}:{h+3}]", first=(t == 0), needH=t))
    for n, fr in enumerate(frags):
        fr["n"] = n; fr["reg"] = aR + 4*(n % RING)
    vHB = [vTMP[8], vTMP[9]]
    def lg_room():
        if len(lg.q) - lg.done >= 15:
            k("s_waitcnt lgkmcnt(11)")
            lg.done = len(lg.q) - 11
    def emit_reads(fr, part=None):
        for i, (sel, off) in enumerate(fr["rd"]):
            if part is not None and i != part: continue
            if isinstance(sel, str):
                reg = vHB[int(sel[1])]; base = upos[stage_item(fr["st"])]*UNIT; off = off - base
            else: reg = sel
            assert 0 <= off < 65536, off
            r0 = fr["reg"] + 2*i
            lg_room()
            if not opts.get("noread"): k(f"ds_read_b64_tr_b16 a[{r0}:{r0+1}], v{reg} offset:{off}")
            lg.issue(("f", fr["n"]))
    def x_read_ops(p):
        base = upos[("X", p)]*UNIT
        L = [("v", f"v_add_u32 v{vXB[0]}, {base}, v{vXL[0]}"), ("v", f"v_add_u32 v{vXB[1]}, {base}, v{vXL[1]}")]
        for s in range(3):
            for j in range(2):
                for i in range(2):
                    r = aX + 4*(2*(3*p+s) + j) + 2*i
                    L.append(("x", f"ds_read_b64_tr_b16 a[{r}:{r+1}], v{vXB[j]} offset:{s*8192 + i*4096}"))
        return L
    def finalize_ops():
        ops = []
        m, va, tb, z = vTA[0], vTA[1], vTA[2], vTA[3]
        A = lambda s: ops.append((1, s))
        A("s_nop 7")
        A(f"v_bfe_u32 v{vS1[0]}, v{vLANE}, 2, 2")
        A(f"v_lshrrev_b32 v{vS1[1]}, 4, v{vLANE}")
        A(f"v_cmp_eq_u32 s[56:57], v{vS1[0]}, v{vS1[1]}")
        A(f"v_and_b32 v{vS1[0]}, 3, v{vLANE}")
        A(f"v_cmp_eq_u32 s[58:59], 1, v{vS1[0]}")
        A(f"v_cmp_eq_u32 s[30:31], 2, v{vS1[0]}")
        A(f"v_cmp_eq_u32 vcc, 3, v{vS1[0]}")
        A("s_nop 1")
        for j in range(2):
            s1, s2 = vD1[j], vS2s[j]
            d = vD2[j]
            A(f"v_cndmask_b32 v{s2}, v{d}, v{d+1}, s[58:59]")
            A(f"v_cndmask_b32 v{s2}, v{s2}, v{d+2}, s[30:31]")
            A(f"v_cndmask_b32 v{s2}, v{s2}, v{d+3}, vcc")
            A(f"v_cndmask_b32 v{s2}, 0, v{s2}, s[56:57]")
        for j in range(2):
            s1, s2 = vD1[j], vS2s[j]
            for r in (s2,):
                A(f"v_mov_b32 v{z}, v{r}"); A("s_nop 1"); A(f"v_permlane16_swap_b32 v{r}, v{z}"); A("s_nop 1"); A(f"v_add_f32 v{r}, v{r}, v{z}")
                A(f"v_mov_b32 v{z}, v{r}"); A("s_nop 1"); A(f"v_permlane32_swap_b32 v{r}, v{z}"); A("s_nop 1"); A(f"v_add_f32 v{r}, v{r}, v{z}")
            A(f"v_mul_f32 v{m}, {f2u(1.0/576):#x}, v{s1}")
            A(f"v_mul_f32 v{va}, {f2u(1.0/576):#x}, v{s2}")
            A(f"v_fma_f32 v{va}, -v{m}, v{m}, v{va}")
            A(f"v_max_f32 v{va}, 0, v{va}")
            A(f"v_cvt_pk_bf16_f32 v{tb}, v{m}, v{va}")
            A(f"v_and_b32 v{va}, 0xffff0000, v{tb}")
            A(f"v_add_f32 v{va}, {f2u(1e-5):#x}, v{va}")
            A(f"v_cvt_pk_bf16_f32 v{va}, v{va}, v{va}")
            A(f"v_and_b32 v{va}, 0xffff0000, v{va}")
            A(f"v_sqrt_f32 v{va}, v{va}"); A("s_nop 0")
            A(f"v_cvt_pk_bf16_f32 v{va}, v{va}, v{va}")
            A(f"v_and_b32 v{va}, 0xffff0000, v{va}")
            A(f"v_mul_f32 v{vS2[j]}, v{va}, v{va}")
            A(f"v_rcp_f32 v{va}, v{va}"); A("s_nop 0")
            A(f"v_mul_f32 v{vC0[j]}, {f2u(K0C):#x}, v{va}")
            A(f"v_mul_f32 v{vC1[j]}, v{va}, v{va}")
            A(f"v_mul_f32 v{vC1[j]}, v{vC1[j]}, v{va}")
            A(f"v_mul_f32 v{vC1[j]}, {f2u(K1C):#x}, v{vC1[j]}")
            A(f"v_and_b32 v{tb}, 0xffff, v{tb}")
            A(f"v_xor_b32 v{tb}, 0x8000, v{tb}")
            A(f"v_lshl_or_b32 v{tb}, v{tb}, 16, v{tb}")
            A(f"v_cmp_gt_u32 vcc, 16, v{vLANE}"); A("s_nop 1")
            A(f"v_cndmask_b32 v{tb}, 0, v{tb}, vcc")
            A(f"v_mov_b32 v{m}, 0"); A("s_nop 0")
            if CS2:
                b0 = aBM + 4*j
                for e, src in enumerate((tb, tb, m, m)): A(f"v_accvgpr_write_b32 a{b0+e}, v{src}")
            else:
                b0 = aBM + 8*j
                for e, src in enumerate((tb, m, m, m, m, tb, m, m)):
                    A(f"v_accvgpr_write_b32 a{b0+e}, v{src}")
        ce = 72 if CS2 else 36
        A(f"v_accvgpr_write_b32 a{aCS+ce}, v{m}"); A(f"v_accvgpr_write_b32 a{aCS+ce+1}, v{m}")
        A("s_nop 1")
        return ops
    def gelu_ops(buf, nft, Hbase):
        ops = []
        n = 0
        for ft in range(nft):
            for j in range(2):
                for p in range(2):
                    T = vT + 4*(n % 2); n += 1
                    a0 = buf + 4*((ft*2+0)*2 + j) + 2*p; a1 = a0 + 1
                    b0 = buf + 4*((ft*2+1)*2 + j) + 2*p; b1 = b0 + 1
                    x0, x1, y0, y1 = T, T+1, T+2, T+3
                    hd = Hbase + 8*(ft >> 1) + 4*j + 2*(ft & 1) + p
                    if opts.get("pkgelu"):
                        sel = f"op_sel:[0,{j},{j}] op_sel_hi:[1,{j},{j}]"
                        c = opts.get("pkcost", 2)
                        ops += [(c, f"v_pk_mul_f32 v[{x0}:{x1}], v[{a0}:{a1}], v[{a0}:{a1}]"),
                                (c, f"v_pk_fma_f32 v[{x0}:{x1}], v[{x0}:{x1}], v[{vC1[0]}:{vC1[1]}], v[{vC0[0]}:{vC0[1]}] {sel}"),
                                (c, f"v_pk_mul_f32 v[{x0}:{x1}], v[{a0}:{a1}], v[{x0}:{x1}]"),
                                (2, f"v_exp_f32 v{x0}, v{x0}"), (2, f"v_exp_f32 v{x1}, v{x1}"),
                                (c, f"v_pk_mul_f32 v[{y0}:{y1}], v[{a0}:{a1}], v[{b0}:{b1}]"),
                                (c, f"v_pk_fma_f32 v[{x0}:{x1}], v[{x0}:{x1}], v[{vS2[0]}:{vS2[1]}], v[{vS2[0]}:{vS2[1]}] {sel}"),
                                (2, f"v_rcp_f32 v{x0}, v{x0}"), (2, f"v_rcp_f32 v{x1}, v{x1}"),
                                (1, "s_nop 0"),
                                (c, f"v_pk_mul_f32 v[{y0}:{y1}], v[{y0}:{y1}], v[{x0}:{x1}]"),
                                (1, f"v_cvt_pk_bf16_f32 v{hd}, v{y0}, v{y1}")]
                        continue
                    ops += [(1, f"v_mul_f32 v{x0}, v{a0}, v{a0}"), (1, f"v_mul_f32 v{x1}, v{a1}, v{a1}"),
                            (1, f"v_fma_f32 v{x0}, v{x0}, v{vC1[j]}, v{vC0[j]}"), (1, f"v_fma_f32 v{x1}, v{x1}, v{vC1[j]}, v{vC0[j]}"),
                            (1, f"v_mul_f32 v{x0}, v{a0}, v{x0}"), (1, f"v_mul_f32 v{x1}, v{a1}, v{x1}"),
                            (2, f"v_exp_f32 v{x0}, v{x0}"), (2, f"v_exp_f32 v{x1}, v{x1}"),
                            (1, f"v_mul_f32 v{y0}, v{a0}, v{b0}"), (1, f"v_mul_f32 v{y1}, v{a1}, v{b1}"),
                            (1, f"v_fma_f32 v{x0}, v{x0}, v{vS2[j]}, v{vS2[j]}"), (1, f"v_fma_f32 v{x1}, v{x1}, v{vS2[j]}, v{vS2[j]}"),
                            (2, f"v_rcp_f32 v{x0}, v{x0}"), (2, f"v_rcp_f32 v{x1}, v{x1}"),
                            (1, f"v_mul_f32 v{y0}, v{y0}, v{x0}"), (1, f"v_mul_f32 v{y1}, v{y1}, v{x1}"),
                            (1, f"v_cvt_pk_bf16_f32 v{hd}, v{y0}, v{y1}")]
        return ops
    def epi_ops(st):
        a = st - 27
        ops = []
        if opts.get("resid", True) and not opts.get("fuse", False):
            ops.append((1, ("resid", st)))
        P = vACC[0]
        for ntp in range(2):
            for j in range(2):
                q = P + 4*(2*ntp + j)
                for h2 in range(2):
                    A = acc_reg(st, (2*ntp + h2)*2 + j)
                    ops.append((1, f"v_cvt_pk_bf16_f32 v{q+2*h2}, v{A}, v{A+1}"))
                    ops.append((1, f"v_cvt_pk_bf16_f32 v{q+2*h2+1}, v{A+2}, v{A+3}"))
                ops.append((1, "s_nop 1"))
                ops.append((1, f"v_permlane16_swap_b32 v{q}, v{q+2}"))
                ops.append((1, f"v_permlane16_swap_b32 v{q+1}, v{q+3}"))
                ops.append((1, f"s_add_u32 s{sT0}, s{sPART}, {(a*4 + ntp*2 + j)*1024}"))
                ops.append((1, ("store", f"buffer_store_dwordx4 v[{q}:{q+3}], v{vST}, s[{sWS}:{sWS+3}], s{sT0} offen", a)))
        return ops

    sCH, sHB, sOB, sCNT = 64, 65, 66, 45
    vZ, vCN, vHO, vOO = 3, 4, 5, 6
    def red_setup():
        t0_, t1_ = vTMP[11], vTMP[12]
        return f"""
        s_lshr_b32 s68, s{sJ}, 2                     ; w_src
        s_lshl_b32 s69, s{sMT}, 2
        s_add_u32 s68, s68, s69                      ; rowblk
        s_and_b32 s69, s{sJ}, 3                      ; r
        s_mul_i32 s{sCH}, s68, {36*1024}
        s_lshl_b32 s70, s69, 10
        s_add_u32 s{sCH}, s{sCH}, s70
        s_add_u32 s{sCH}, s{sCH}, {WS_PART}          ; + b*4096 + i*PSZ
        s_and_b32 s70, s69, 1                        ; jm
        s_lshr_b32 s71, s69, 1                       ; ntp
        s_lshl_b32 s72, s68, 1
        s_add_u32 s72, s72, s70
        s_lshl_b32 s{sHB}, s72, 5
        s_lshl_b32 s73, s71, 17
        s_add_u32 s{sHB}, s{sHB}, s73
        s_add_u32 s{sHB}, s{sHB}, {WS_HT}            ; + b*64*4096
        s_mul_i32 s{sOB}, s72, {16*1152}
        s_lshl_b32 s73, s71, 6
        s_add_u32 s{sOB}, s{sOB}, s73                ; + b*128
        v_and_b32 v{t0_}, 15, v{vLANE}
        v_bfe_u32 v{t1_}, v{vLANE}, 4, 1
        v_lshlrev_b32 v{t1_}, 1, v{t1_}
        v_lshrrev_b32 v{vHO}, 5, v{vLANE}
        v_add_u32 v{t1_}, v{t1_}, v{vHO}
        v_lshlrev_b32 v{vHO}, 15, v{t1_}
        v_lshl_add_u32 v{vHO}, v{t0_}, 1, v{vHO}
        v_mul_u32_u24 v{vOO}, 1152, v{t0_}
        v_lshl_add_u32 v{vOO}, v{t1_}, 4, v{vOO}
        v_mov_b32 v{vZ}, 0
        v_lshlrev_b32 v{vCN}, 2, v{vLANE}
        v_min_u32 v{vCN}, 32, v{vCN}
        """
    def early_loads():
        L = [("s", f"s_lshl_b32 s74, s{sW}, 12"), ("s", f"s_add_u32 s74, s74, s{sCH}")]
        for i in range(16):
            L.append(("l", f"buffer_load_dwordx4 a[{4*i}:{4*i+3}], v{vST}, s[{sWS}:{sWS+3}], s74 offen sc1"))
            if i < 15: L.append(("s", f"s_add_u32 s74, s74, {PSZ}"))
        L += [("s", f"s_lshl_b32 s74, s{sW}, 18"), ("s", f"s_add_u32 s74, s74, s{sHB}")]
        for i in range(8):
            L.append(("l", f"buffer_load_ushort a{64+i}, v{vHO}, s[{sWS}:{sWS+3}], s74 offen"))
            if i < 7: L.append(("s", "s_add_u32 s74, s74, 4096"))
        return L
    resid_blocks = []
    def emit_tuple(l):
        if l[0] == "resid":
            st_ = l[1]; a_ = st_ - 27
            k(f"s_cmp_eq_u32 s{sJ}, {a_}\ns_cbranch_scc1 L{name}_res{a_}")
            k.label(f"L{name}_resb{a_}")
            resid_blocks.append(st_)
        else:
            if not (opts.get("nostore") and l[0] == "store"): k(l[1])
            vm.issue(("ST", l[2]) if l[0] == "store" else "CS")
    def emit_resid_code():
        for st_ in resid_blocks:
            a_ = st_ - 27
            k.label(f"L{name}_res{a_}")
            t0_, t1_, t2_, t3_ = vT, vT+1, vT+2, vT+3
            for nt in range(4):
                for j in range(2):
                    A = acc_reg(st_, nt*2 + j)
                    xs = aX + 4*(2*(2*a_ + (nt >> 1)) + j) + 2*(nt & 1)
                    k(f"""
                    v_accvgpr_read_b32 v{t0_}, a{xs}
                    v_accvgpr_read_b32 v{t1_}, a{xs+1}
                    v_lshlrev_b32 v{t2_}, 16, v{t0_}
                    v_and_b32 v{t0_}, 0xffff0000, v{t0_}
                    v_lshlrev_b32 v{t3_}, 16, v{t1_}
                    v_and_b32 v{t1_}, 0xffff0000, v{t1_}
                    v_add_f32 v{A}, v{A}, v{t2_}
                    v_add_f32 v{A+1}, v{A+1}, v{t0_}
                    v_add_f32 v{A+2}, v{A+2}, v{t3_}
                    v_add_f32 v{A+3}, v{A+3}, v{t1_}
                    """)
            k(f"s_branch L{name}_resb{a_}")
    NINIT = opts.get("ninit", 4)
    for it in items[2:NINIT]:
        emit_dma_all(it)
    if opts.get("wpf", True):
        NMT = 8 if MAP4 else 16
        per = 384 // NMT // 2
        k(f"""
        s_and_b32 s56, s{sMT}, {NMT-1}
        s_mul_i32 s56, s56, {2*per}
        s_mul_i32 s57, s46, {per}
        s_add_u32 s56, s56, s57                      ; first line index in [0,384)
        s_mul_hi_u32 s57, s56, 44739243              ; /96
        s_mul_i32 s58, s57, 96
        s_sub_u32 s56, s56, s58
        s_cmp_eq_u32 s57, 0
        s_cselect_b32 s58, s{sWq[2]}, s{sWq[3]}
        s_cmp_eq_u32 s57, 2
        s_cselect_b32 s58, s{sWq[4]}, s58
        s_cmp_eq_u32 s57, 3
        s_cselect_b32 s58, s{sWq[5]}, s58
        s_mul_i32 s57, s46, {48*9216}
        s_sub_u32 s58, s58, s57
        s_mul_i32 s56, s56, 9216
        s_add_u32 s58, s58, s56
        v_mul_u32_u24 v{vTMP[11]}, 9216, v{vLANE}
        v_cmp_gt_u32 vcc, {per}, v{vLANE}
        v_mov_b32 v{vTMP[12]}, 0x7fffffff
        s_nop 0
        v_cndmask_b32 v{vTMP[11]}, v{vTMP[12]}, v{vTMP[11]}, vcc
        buffer_load_dword v{vTMP[12]}, v{vTMP[11]}, s[{sWM}:{sWM+3}], s58 offen
        """)
        vm.issue("PF")
    if opts.get("selfpf", True):
        k(f"""
        s_getpc_b64 s[56:57]
        L{name}_pc0:
        s_sub_u32 s56, s56, L{name}_pc0-{name}
        s_subb_u32 s57, s57, 0
        s_lshl_b32 s58, s{sW}, 13
        v_lshlrev_b32 v{vTMP[11]}, 7, v{vLANE}
        v_add_u32 v{vTMP[11]}, s58, v{vTMP[11]}
        global_load_dword v{vTMP[12]}, v{vTMP[11]}, s[56:57]
        v_add_u32 v{vTMP[11]}, 32768, v{vTMP[11]}
        v_min_u32 v{vTMP[11]}, {opts.get("selfpf_bytes", 54*1024)}, v{vTMP[11]}
        global_load_dword v{vTMP[12]}, v{vTMP[11]}, s[56:57]
        """)
        vm.issue("PF"); vm.issue("PF")
    n = vm.need(("W", 0)); k(f"s_waitcnt vmcnt({n})")
    k("s_barrier")
    stamp()
    for kind, l in x_read_ops(0): k(l)
    k("s_waitcnt lgkmcnt(0)")
    freed = {("X", 0): False}
    next_item = NINIT
    done_items = set()
    def can_issue(idx):
        it = items[idx]; lo, hi = uabs[it]
        for other in items[:idx]:
            a, b = uabs[other]
            if a < hi - NUNIT and b > lo - NUNIT and other not in done_items: return False
        return True
    stage_first = {}
    for idx, d in enumerate(mf): stage_first.setdefault(d["st"], idx)
    stage_len = {st: sum(1 for d in mf if d["st"] == st) for st in range(NS)}
    for f in range(LA): emit_reads(frags[f])
    fillers = []; rate = 0.0; credit = 0.0
    PPF_SCHED = opts.get("ppf_sched", {32: 0, 34: 2})
    sPSZ = 67
    k(f"s_mov_b32 s{sPSZ}, {PSZ}")
    eq = []
    mid_done = True
    xq = []; dmaq = []
    seen_frag = set()
    for idx, d in enumerate(mf):
        st = d["st"]; pos = idx - stage_first[st]
        if pos == 0:
            if opts.get("stamps") and (st < 7 or st in (18, 24, 27, 33)): stamp()
            MID = st < opts.get("midbar", 0)
            need = []
            if not MID:
                if st + 1 < NS: need.append(stage_item(st + 1))
                if st + 1 < 6: need.append(("X", st + 1))
            FUSE = opts.get("fuse", False)
            if FUSE and 30 <= st <= 35: need.append(("ST", st - 30))
            ns = [vm.need(x) for x in need if x in vm.q]
            assert all(x in vm.q for x in need), (st, need)
            assert not any(it in need for it, _ in dmaq), (st, need)
            ns = [x for x in ns if x is not None]
            if st >= 1 or True:
                if ns: k(f"s_waitcnt vmcnt({min(ns)})")
                if st >= 1 and st <= 5:
                    nn = lg.need(("x", st))
                    if nn is not None: k(f"s_waitcnt lgkmcnt({nn})")
                k("s_barrier")
            if FUSE and st == 29:
                k(f"v_mov_b32 v1, 0\nv_mov_b32 v2, 1")
                k(f"s_lshl_b32 s45, s{sMT}, 7\ns_add_u32 s45, s45, {WS_CNT}")
            if FUSE and 30 <= st <= 35:
                k(f"s_cmp_lg_u32 s{sW}, 0\ns_cbranch_scc1 L{name}_sg{st}")
                k(f"s_add_u32 s44, s45, {4*(st-30)}\ns_mov_b64 exec, 1")
                k(f"buffer_atomic_add v2, v1, s[{sWS}:{sWS+3}], s44 offen")
                k("s_mov_b64 exec, -1")
                k.label(f"L{name}_sg{st}")
            if st >= 1: done_items.add(stage_item(st - 1))
            if st <= 5: done_items.add(("X", st))
            while next_item < len(items) and can_issue(next_item):
                for op in dma_ops(items[next_item]): dmaq.append((items[next_item], op))
                next_item += 1
            if st + 1 < 6 and not MID: xq = x_read_ops(st + 1)
            mid_done = not MID
            if st < 6:
                if st >= 1 and False: pass
                assert not fillers, st
                fillers = []
                if st == 1: fillers = cs_ops()
                if st == 5: fillers = finalize_ops()
                span = stage_len[st] - (36 if st == 5 else 8)
                rate = sum(c for c, _ in fillers) / span; credit = -14*rate if st == 5 else 0
            elif st < 24 and st % 6 == 0:
                assert not fillers, st
                g = st // 6
                fillers = gelu_ops(vACC[(g-1) % 2], 4, vH + 16*(g-1))
                if g == 1 and opts.get("wdpf", True):
                    NMT = 8 if MAP4 else 16
                    perw = 2592 // NMT // 4 + (1 if (2592 // NMT) % 4 else 0)
                    pf = [(1, f"s_and_b32 s44, s{sMT}, {NMT-1}"), (1, f"s_mul_i32 s44, s44, {2592 // NMT}"), (1, f"s_mul_i32 s45, s{sW}, {perw}"),
                          (1, f"s_add_u32 s44, s44, s45"), (1, f"s_lshl_b32 s44, s44, 7"), (1, f"s_mul_i32 s45, s{sJ}, {288*1152}"), (1, f"s_add_u32 s44, s44, s45")]
                    for part in range((perw + 63) // 64):
                        pf += [(1, f"v_add_u32 v{vTMP[11]}, {64*part}, v{vLANE}"), (1, f"v_cmp_gt_u32 vcc, {perw}, v{vTMP[11]}"),
                               (1, f"v_lshlrev_b32 v{vTMP[11]}, 7, v{vTMP[11]}"), (1, f"v_mov_b32 v{vTMP[12]}, 0x7fffffff"), (1, "s_nop 0"),
                               (1, f"v_cndmask_b32 v{vTMP[11]}, v{vTMP[12]}, v{vTMP[11]}, vcc"),
                               (1, ("load", f"buffer_load_dword v{vTMP[10]}, v{vTMP[11]}, s[{sWD}:{sWD+3}], s44 offen"))]
                    fillers = pf + fillers
                span = sum(stage_len[s] for s in range(st, st + 6)) - 12
                rate = sum(c for c, _ in fillers) / span; credit = -6*rate
            elif st == 24:
                assert not fillers
                fillers = gelu_ops(vACC[1], 4, vH + 48)
                span = sum(stage_len[s] for s in range(24, 27)) - 12
                rate = sum(c for c, _ in fillers) / span; credit = -6*rate
            elif st == 27:
                assert not fillers
                fillers = gelu_ops(vACC[0], 2, vH + 64)
                span = 56; rate = sum(c for c, _ in fillers) / span; credit = -6*rate
            elif st > 27:
                assert not fillers, (st, len(fillers))
                fillers = epi_ops(st - 1)
                span = stage_len[st] - 16
                rate = sum(c for c, _ in fillers) / span; credit = -6*rate
            if st == 24:
                for l in [f"v_add_u32 v{vHB[0]}, PLACE, v{vLH}"]: pass
        PPF = opts.get("ppf", False) and not opts.get("fuse", False)
        if PPF and st == 30 and pos == 3:
            k(f"""
            v_lshrrev_b32 v3, 3, v{vLANE}
            v_mul_lo_u32 v3, v3, s{sPSZ}
            v_and_b32 v4, 7, v{vLANE}
            v_lshl_add_u32 v3, v4, 7, v3
            s_and_b32 s64, s2, 7                          ; xcd
            s_lshr_b32 s65, s2, 3                         ; t
            s_lshl_b32 s65, s65, 1
            s_lshr_b32 s66, s64, 2
            s_add_u32 s65, s65, s66
            s_mul_i32 s65, s65, 36
            s_and_b32 s66, s64, 3
            s_add_u32 s65, s65, s66
            s_lshl_b32 s65, s65, 10
            s_and_b32 s66, s{sW}, 1
            s_mul_i32 s66, s66, {8*PSZ}
            s_add_u32 s65, s65, s66
            s_lshr_b32 s66, s{sW}, 1
            s_lshl_b32 s66, s66, 12
            s_add_u32 s65, s65, s66
            s_add_u32 s65, s65, {WS_PART}
            """)
        if PPF and pos == 40 and st in PPF_SCHED:
            b0 = PPF_SCHED[st]
            k(f"s_add_u32 s66, s65, {b0*4096}")
            k(f"buffer_load_dword v4, v3, s[{sWS}:{sWS+3}], s66 offen"); vm.issue("PPF")
        EARLY = opts.get("fuse", False) and opts.get("early", True)
        if opts.get("fuse", False) and st == 33 and pos == 1:
            k(red_setup())
        if EARLY and st == 34 and pos == 50:
            k(f"buffer_load_dword v{vTMP[10]}, v{vCN}, s[{sWS}:{sWS+3}], s{sCNT} offen sc1"); vm.issue("SNAP")
        if EARLY and st == 35 and pos == 24:
            nn = vm.need("SNAP")
            if nn is not None: k(f"s_waitcnt vmcnt({nn})")
            k(f"v_readlane_b32 s59, v{vTMP[10]}, s{sW}")
            eq = early_loads()
        if EARLY and st == 35 and pos > 24 and eq:
            while eq:
                kind, l = eq.pop(0); k(l)
                if kind == "l":
                    vm.issue("EARLY"); break
        def flush_fillers():
            nonlocal fillers
            for c, l in fillers:
                if isinstance(l, tuple): emit_tuple(l)
                else: k(l)
            fillers = []
        if st == 5 and d["fr"] is None and pos >= 12 and fillers: flush_fillers()
        if d.get("needH") == 8 and st == 27 and fillers:
            flush_fillers(); k("s_nop 1")
        fr = d["fr"]
        if fr is not None and fr["n"] not in seen_frag:
            seen_frag.add(fr["n"])
            f = fr["n"]
            WG = opts.get("wgran", 2)
            if f % WG == 0:
                tgt = min(f + WG - 1, len(frags) - 1)
                while tgt > f and not (lg.q.count(("f", tgt)) == 2): tgt -= 1
                nn = lg.need(("f", tgt))
            else: nn = lg.need(("f", f))
            if nn is not None: k(f"s_waitcnt lgkmcnt({nn})")
            firstuse = True
        else: firstuse = False
        skipm = (fr is None and opts.get("norank") and "S" not in d) or (fr is None and opts.get("nostat") and "S" in d)
        A = d["A"] if fr is None else f"a[{fr['reg']}:{fr['reg']+3}]"
        C = "0" if d["first"] else f"v[{d['acc']}:{d['acc']+3}]"
        if not skipm: k(f"v_mfma_f32_16x16x32_bf16 v[{d['acc']}:{d['acc']+3}], {A}, {d['B']}, {C}")
        if st == 23 and pos == 4 or (st in (24, 25) and pos == 4):
            nb = upos[stage_item(st + 1)]*UNIT
            pass
        if fr is not None:
            nf = fr["n"] + LA
            if nf < len(frags):
                nfr = frags[nf]
                if (not mid_done) and firstuse and frags[min(nf + opts.get("midlead", 4), len(frags) - 1)]["st"] != st:
                    need2 = [stage_item(st + 1)] + ([("X", st + 1)] if st + 1 < 6 else [])
                    assert all(x in vm.q for x in need2) and not any(it in need2 for it, _ in dmaq), (st, need2)
                    ns2 = [x for x in (vm.need(y) for y in need2) if x is not None]
                    if ns2: k(f"s_waitcnt vmcnt({min(ns2)})")
                    k("s_barrier")
                    if st + 1 < 6: xq = x_read_ops(st + 1)
                    mid_done = True
                if firstuse:
                    if nfr["st"] != frags[nf-1]["st"]:
                        ns_ = nfr["st"]
                        if 24 <= ns_ < 27:
                            nb = upos[stage_item(ns_)]*UNIT
                            k(f"v_add_u32 v{vHB[0]}, {nb}, v{vLH}"); k(f"v_add_u32 v{vHB[1]}, {nb}, v{vLH1}")
                        if ns_ == 27:
                            for l in set_bases_p2(): k(l)
                    emit_reads(nfr, 0)
                else:
                    emit_reads(nfr, 1)
        if xq and pos >= 2:
            kind, l = xq.pop(0)
            if kind == "x": lg_room()
            k(l)
            if kind == "x": lg.issue(("x", st + 1))
            elif xq and xq[0][0] == "v":
                kind, l = xq.pop(0); k(l)
        if dmaq and (pos % (2 if (st < 6 and opts.get("fastdma", False)) else 3) == 1):
            while dmaq:
                it, (kind, x) = dmaq.pop(0)
                if kind == "s":
                    xs = sorted(x, key=lambda l: 0 if " m0," in l else 1)
                    for l in xs: k(l)
                    if not (opts.get("nonop", True) and len(xs) == 2): k("s_nop 0")
                else:
                    if not opts.get("nodma"): k(x)
                    vm.issue(it); break
        credit += rate
        while fillers and credit >= fillers[0][0]:
            c, l = fillers.pop(0); credit -= c
            if isinstance(l, tuple): emit_tuple(l)
            elif not opts.get("nofill"): k(l)
    assert not dmaq and next_item == len(items), (len(dmaq), next_item)
    flush_fillers()
    if not opts.get("fuse", False):
        k("s_nop 7")
        for c, l in epi_ops(NS - 1):
            if isinstance(l, tuple): emit_tuple(l)
            else: k(l)
        k("s_waitcnt vmcnt(0)")
        if opts.get("ppf", False):
            for b0 in opts.get("ppf_tail", (4, 6)):
                k(f"s_add_u32 s66, s65, {b0*4096}")
                k(f"buffer_load_dword v4, v3, s[{sWS}:{sWS+3}], s66 offen")
    else:
        N = name
        SA, HA, SB, HB, SC_, HC = 48, 112, 120, 184, 192, 8
        vT0_, vT1_, ACCR = 22, 23, 32
        EARLY = opts.get("early", True)
        for kind, l in eq: k(l)
        k(f"""
        buffer_load_dword v7, v{vCN}, s[{sWS}:{sWS+3}], s{sCNT} offen sc1
        s_nop 4
        """)
        eo = epi_ops(NS - 1)
        stores = []
        pend_s = None
        for c, l in eo:
            if isinstance(l, tuple): stores.append((pend_s, l[1]))
            elif l.startswith("s_add_u32"): pend_s = l
            else: k(l)
        def poll(tag, sb_expr_reg, spin=True):
            k.label(f"L{N}_{tag}_p")
            k(f"""
            s_lshl_b32 s74, s{sb_expr_reg}, 2
            s_add_u32 s74, s74, s{sCNT}
            buffer_load_dword v7, v{vZ}, s[{sWS}:{sWS+3}], s74 offen sc1
            s_waitcnt vmcnt(0)
            v_readfirstlane_b32 s75, v7
            s_cmp_ge_u32 s75, 16
            s_cbranch_scc1 L{N}_{tag}_ok
            s_add_u32 s63, s63, 1
            s_cmp_lt_u32 s63, 0x40000
            s_cbranch_scc0 L{N}_{tag}_ok
            s_sleep 2
            s_branch L{N}_{tag}_p
            """)
            k.label(f"L{N}_{tag}_ok")
        def loads(S, Hh, sb):
            k(f"s_lshl_b32 s74, s{sb}, 12\ns_add_u32 s74, s74, s{sCH}")
            for i in range(16):
                k(f"buffer_load_dwordx4 v[{S+4*i}:{S+4*i+3}], v{vST}, s[{sWS}:{sWS+3}], s74 offen sc1")
                if i < 15: k(f"s_add_u32 s74, s74, {PSZ}")
            k(f"s_lshl_b32 s74, s{sb}, 18\ns_add_u32 s74, s74, s{sHB}")
            for i in range(8):
                k(f"buffer_load_ushort v{Hh+i}, v{vHO}, s[{sWS}:{sWS+3}], s74 offen")
                if i < 7: k("s_add_u32 s74, s74, 4096")
        def reduce_store(S, Hh, sb, agpr=False):
            if agpr:
                for i in range(64): k(f"v_accvgpr_read_b32 v{S+i}, a{i}")
                for i in range(8): k(f"v_accvgpr_read_b32 v{Hh+i}, a{64+i}")
            for i in range(16):
                for d in range(4):
                    r = S + 4*i + d
                    if i == 0:
                        k(f"v_lshlrev_b32 v{ACCR+2*d}, 16, v{r}\nv_and_b32 v{ACCR+2*d+1}, 0xffff0000, v{r}")
                    else:
                        k(f"v_lshlrev_b32 v{vT0_}, 16, v{r}\nv_and_b32 v{vT1_}, 0xffff0000, v{r}\nv_add_f32 v{ACCR+2*d}, v{ACCR+2*d}, v{vT0_}\nv_add_f32 v{ACCR+2*d+1}, v{ACCR+2*d+1}, v{vT1_}")
            for d in range(4):
                k(f"""
                v_cvt_pk_bf16_f32 v18, v{ACCR+2*d}, v{ACCR+2*d+1}
                v_lshlrev_b32 v19, 16, v18
                v_and_b32 v18, 0xffff0000, v18
                v_lshlrev_b32 v20, 16, v{Hh+2*d}
                v_lshlrev_b32 v21, 16, v{Hh+2*d+1}
                v_add_f32 v19, v19, v20
                v_add_f32 v18, v18, v21
                v_cvt_pk_bf16_f32 v{ACCR+8+d}, v19, v18
                """)
            k(f"s_lshl_b32 s74, s{sb}, 7\ns_add_u32 s74, s74, s{sOB}")
            k(f"buffer_store_dwordx4 v[{ACCR+8}:{ACCR+11}], v{vOO}, s[88:91], s74 offen")
        def redA(tag):
            if EARLY:
                k(f"s_cmp_eq_u32 s58, 0\ns_cbranch_scc1 L{N}_ra{tag}")
                for i in range(64): k(f"v_accvgpr_read_b32 v{SA+i}, a{i}")
                for i in range(8): k(f"v_accvgpr_read_b32 v{HA+i}, a{64+i}")
                k.label(f"L{N}_ra{tag}")
            reduce_store(SA, HA, sB1)
        sB1, sB2, sB3 = 67, 62, 61
        k(f"""
        s_mov_b32 s63, 0
        s_mov_b32 s{sB1}, s{sW}
        s_add_u32 s{sB2}, s{sW}, 4
        s_mov_b32 s{sB3}, 8
        s_waitcnt vmcnt(0)
        v_readlane_b32 s75, v7, s{sB1}
        v_readlane_b32 s60, v7, s{sB2}
        s_nop 3
        s_cmp_ge_u32 s75, 16
        s_cbranch_scc1 L{N}_a_ok
        """)
        poll("a", sB1)
        k.lines.pop()
        k.label(f"L{N}_a_ok")
        for sl, st_ in stores:
            k(sl); k(st_)
        if EARLY:
            k(f"s_mov_b32 s58, 1\ns_cmp_ge_u32 s59, 16\ns_cbranch_scc1 L{N}_havea\ns_mov_b32 s58, 0")
            loads(SA, HA, sB1)
            k(f"s_waitcnt vmcnt(0)")
            k.label(f"L{N}_havea")
        else:
            loads(SA, HA, sB1)
        k(f"""
        s_cmp_ge_u32 s60, 16
        s_cbranch_scc0 L{N}_nob
        """)
        loads(SB, HB, sB2)
        k(f"s_waitcnt vmcnt({24 if EARLY else 48})\ns_branch L{N}_sig")
        k.label(f"L{N}_nob")
        k(f"s_waitcnt vmcnt({0 if EARLY else 24})")
        k.label(f"L{N}_sig")
        k(f"""
        s_barrier
        s_cmp_lg_u32 s{sW}, 0
        s_cbranch_scc1 L{N}_sg36
        v_lshlrev_b32 v1, 2, v{vLANE}
        v_add_u32 v1, 24, v1
        s_mov_b64 exec, 7
        buffer_atomic_add v2, v1, s[{sWS}:{sWS+3}], s{sCNT} offen
        s_mov_b64 exec, -1
        L{N}_sg36:
        """)
        if EARLY:
            k(f"s_cmp_eq_u32 s{sW}, 0\ns_cbranch_scc1 L{N}_skipra")
            redA("e")
            k.label(f"L{N}_skipra")
        k(f"""
        s_cmp_ge_u32 s60, 16
        s_cbranch_scc1 L{N}_hasb
        """)
        poll("b", sB2)
        loads(SB, HB, sB2)
        k.label(f"L{N}_hasb")
        k(f"s_cmp_lg_u32 s{sW}, 0\ns_cbranch_scc1 L{N}_noc")
        poll("c", sB3)
        loads(SC_, HC, sB3)
        k("s_waitcnt vmcnt(24)")
        redA("c")
        reduce_store(SB, HB, sB2)
        k("s_waitcnt vmcnt(2)")
        reduce_store(SC_, HC, sB3)
        k(f"s_branch L{N}_fin")
        k.label(f"L{N}_noc")
        k("s_waitcnt vmcnt(0)")
        if not EARLY: redA("n")
        reduce_store(SB, HB, sB2)
        k.label(f"L{N}_fin")
        k("s_waitcnt vmcnt(0)")
    stamp()
    if opts.get("stamps"):
        k("v_mov_b32 v1, 0")
        for i in range(nst[0]): k(f"v_writelane_b32 v1, s{62+i}, {i}")
        k(f"v_lshlrev_b32 v2, 2, v{vLANE}")
        k(f"s_lshl_b32 s60, s2, 2\ns_add_u32 s60, s60, s{sW}\ns_lshl_b32 s60, s60, 8\ns_add_u32 s60, s60, {WS_DBG}")
        k(f"buffer_store_dword v1, v2, s[{sWS}:{sWS+3}], s60 offen")
        k("s_waitcnt vmcnt(0)")
    k.label(f"L{name}_end")
    k("s_endpgm")
    emit_resid_code()
    return k

if __name__ == "__main__":
    from asmlib import build_file
    V = {"k3b": {}, "k3b_rt": {"stamps": 1, "rt": 1}, "k3b_rt_pk": {"stamps": 1, "rt": 1, "pkgelu": 1}, "k3b_pk": {"pkgelu": 1}, "k3b_rt_norank": {"stamps": 1, "rt": 1, "norank": 1}, "k3b_rt_nostat": {"stamps": 1, "rt": 1, "nostat": 1}, "k3b_rt_nop": {"stamps": 1, "rt": 1, "nonop": False},
         "k3b_rt_w4": {"stamps": 1, "rt": 1, "wgran": 4, "LA": 7, "RING": 12}, "k3b_rt_w3": {"stamps": 1, "rt": 1, "wgran": 3, "LA": 7, "RING": 10},
         "k3b_rt_la4": {"stamps": 1, "rt": 1, "LA": 4}, "k3b_rt_la7": {"stamps": 1, "rt": 1, "LA": 7, "RING": 10}, "k3b_cy": {"stamps": 1}, "k3b_rt_m4": {"stamps": 1, "rt": 1, "map4": True},
         "k3b_rt_m4n": {"stamps": 1, "rt": 1, "map4": True, "rotpat": 0}, "k3b_m4": {"map4": True}}
    for nm, o in (("nostore", {"nostore":1}), ("nostore_nodma", {"nostore":1, "nodma":1}), ("sc1", {"sc1":1}), ("nodma", {"nodma":1}), ("nofill", {"nofill":1}), ("noread", {"noread":1}), ("bare", {"nodma":1,"nofill":1,"noread":1}), ("onlyread", {"nodma":1,"nofill":1})):
        V["k3b_rt_"+nm] = dict(o, stamps=1, rt=1); V["k3b_cy_"+nm] = dict(o, stamps=1)
    for nm, o in V.items():
        k = gen_k3b(opts=o)
        if o.get("sc1"): k.lines = [l + ' sc1' if 'buffer_store_dwordx4' in l else l for l in k.lines]
        build_file(f"mb/{nm}.s", [(k, 512, 102, 256)], [("k3_kernel", 256, 256, LDS_BYTES)])
        print(nm, len(k.lines))
```

```python
from asmlib import K
from gen_k3 import WS_HT, WS_PART, WS_END
PSZ = 2048*576*2
def gen_k4(name="k4_kernel", v2=False, nine=False, remap=True, noh=False):
    k = K(name)
    if nine and remap:
        QMAP = """s_lshr_b32 s17, s2, 2
    s_mul_i32 s17, s17, 36
    s_lshl_b32 s18, s16, 2
    s_add_u32 s17, s17, s18
    s_and_b32 s18, s2, 3
    s_add_u32 s17, s17, s18"""
    else:
        QMAP = f"""s_mul_i32 s17, s2, {9 if nine else 4}
    s_add_u32 s17, s17, s16"""
    k(f"""
    s_getpc_b64 s[4:5]
    v_lshlrev_b32 v1, 7, v0
    v_min_u32 v1, 3328, v1
    global_load_dword v100, v1, s[4:5]
    s_cmp_ge_u32 s2, {256 if nine else 576}
    s_cbranch_scc1 L{name}_end
    s_load_dwordx2 s[4:5], s[0:1], 88          ; out
    s_load_dwordx2 s[6:7], s[0:1], 104         ; ws
    v_lshrrev_b32 v1, 6, v0
    v_and_b32 v2, 63, v0                       ; lane
    s_nop 0
    v_readfirstlane_b32 s16, v1
    {QMAP}
    s_mul_hi_u32 s18, s17, 119304648           ; rowblk = q/36
    s_mul_i32 s19, s18, 36
    s_sub_u32 s19, s17, s19                    ; rem
    s_waitcnt lgkmcnt(0)
    s_mov_b32 s8, s6
    s_mov_b32 s9, s7
    s_mov_b32 s10, {WS_END}
    s_mov_b32 s11, 0x20000
    s_mov_b32 s12, s4
    s_mov_b32 s13, s5
    s_mov_b32 s14, {PSZ}
    s_mov_b32 s15, 0x20000
    v_lshlrev_b32 v3, 4, v2                    ; lane*16
    s_lshl_b32 s20, s17, 10
    s_add_u32 s20, s20, {WS_PART}
    """)
    for j in range(16):
        k(f"buffer_load_dwordx4 v[{16+4*j}:{16+4*j+3}], v3, s[8:11], s20 offen")
        if j < 15: k(f"s_add_u32 s20, s20, {PSZ}")
    if not v2:
        k(f"""
        v_and_b32 v4, 31, v2
        v_lshrrev_b32 v5, 5, v2
        v_lshlrev_b32 v6, 15, v5                   ; 8*(lane>>5)*4096
        v_lshl_add_u32 v6, v4, 1, v6               ; + (lane&31)*2
        s_lshl_b32 s21, s18, 6                     ; 32*rowblk*2
        s_lshl_b32 s22, s19, 16                    ; 16*rem*4096
        s_add_u32 s21, s21, s22
        s_add_u32 s21, s21, {WS_HT}
        """)
    else:
        k(f"""
        v_and_b32 v4, 15, v2
        v_bfe_u32 v5, v2, 4, 1
        v_lshlrev_b32 v5, 1, v5
        v_lshrrev_b32 v8, 5, v2
        v_add_u32 v5, v5, v8                       ; (n offset)/8 = 2*(R&1) + (R>>1)
        v_lshlrev_b32 v6, 15, v5
        v_lshl_add_u32 v6, v4, 1, v6
        s_and_b32 s24, s19, 1                      ; jm
        s_lshr_b32 s25, s19, 1
        s_lshl_b32 s21, s18, 6
        s_lshl_b32 s22, s24, 5
        s_add_u32 s21, s21, s22
        s_lshl_b32 s22, s25, 17                    ; 32*blk*4096
        s_add_u32 s21, s21, s22
        s_add_u32 s21, s21, {WS_HT}
        """)
    for i in range(8):
        if noh: break
        k(f"buffer_load_ushort v{92+i}, v6, s[8:11], s21 offen")
        if i < 7: k("s_add_u32 s21, s21, 4096")
    if not v2:
        k(f"""
        v_mul_u32_u24 v7, 1152, v4
        v_lshl_add_u32 v7, v5, 4, v7
        s_mul_i32 s23, s18, {32*1152}
        s_lshl_b32 s24, s19, 5
        s_add_u32 s23, s23, s24
        """)
    else:
        k(f"""
        v_mul_u32_u24 v7, 1152, v4
        v_lshl_add_u32 v7, v5, 4, v7
        s_mul_i32 s23, s18, {32*1152}
        s_mul_i32 s24, s24, {16*1152}
        s_add_u32 s23, s23, s24
        s_lshl_b32 s25, s25, 6
        s_add_u32 s23, s23, s25
        """)
    for j in range(16):
        k(f"s_waitcnt vmcnt({min(63, 15 - j + (0 if noh else 8))})")
        for d in range(4):
            r = 16 + 4*j + d
            if j == 0:
                k(f"v_lshlrev_b32 v{80+2*d}, 16, v{r}")
                k(f"v_and_b32 v{81+2*d}, 0xffff0000, v{r}")
            else:
                k(f"v_lshlrev_b32 v12, 16, v{r}")
                k(f"v_and_b32 v13, 0xffff0000, v{r}")
                k(f"v_add_f32 v{80+2*d}, v{80+2*d}, v12")
                k(f"v_add_f32 v{81+2*d}, v{81+2*d}, v13")
    k("s_waitcnt vmcnt(0)")
    for d in range(4):
        if noh:
            k(f"v_cvt_pk_bf16_f32 v{88+d}, v{80+2*d}, v{81+2*d}")
            continue
        k(f"""
        v_cvt_pk_bf16_f32 v12, v{80+2*d}, v{81+2*d}
        v_lshlrev_b32 v13, 16, v12
        v_and_b32 v12, 0xffff0000, v12
        v_lshlrev_b32 v14, 16, v{92+2*d}
        v_lshlrev_b32 v15, 16, v{93+2*d}
        v_add_f32 v13, v13, v14
        v_add_f32 v12, v12, v15
        v_cvt_pk_bf16_f32 v{88+d}, v13, v12
        """)
    k(f"""
    buffer_store_dwordx4 v[88:91], v7, s[12:15], s23 offen
    s_waitcnt vmcnt(0)
    """)
    k.label(f"L{name}_end")
    k("s_endpgm")
    return k
```

```python
from asmlib import K
from gen_k3 import WS_XT, WS_UT, WS_HT, WS_CS, WS_END, f2u
from gen_k3 import WS_KG, WS_SC
WS_FL = WS_KG
from gen_k3 import WS_PART
WS_UX2 = WS_PART
TAGX = 0x5bd1e995
WS_UX = WS_XT
from gen_k1 import srd, bf16r, cmul, LOG2E
import gen_k1, math
NP, NV, NB = 256, 576, 144
KA_LDS = 40960
TP = 544; TA = 0; TB = 16*TP; KT = TB + 41*TP
UZ = 2560; UD = UZ; KB = UD + 5120; CS = 4416; RED = KB; XL = 32768
assert KB + 4*CS <= KA_LDS and RED + 24576 <= KA_LDS and KT + 2101*4 <= KA_LDS

def role_P(k, name, opts):
    PITCH = 1216
    R = opts.get("R", 8)
    PEXIT = ""
    if opts.get("pwd") or opts.get("pout"):
        PEXIT = "v_lshlrev_b32 v96, 7, v0\n"
        if opts.get("pwd"):
            PEXIT += f"""    s_mov_b32 s44, s36
    s_mov_b32 s45, s37
    s_mov_b32 s46, {4608*1152}
    s_mov_b32 s47, 0x20000
    s_mul_i32 s48, s2, {162*128}
    v_cmp_gt_u32 vcc, 162, v0
    v_mov_b32 v97, 0x7fffffff
    s_nop 0
    v_cndmask_b32 v97, v97, v96, vcc
    buffer_load_dword v100, v97, s[44:47], s48 offen
"""
        if opts.get("pout"):
            PEXIT += f"""    s_mov_b32 s52, s38
    s_mov_b32 s53, s39
    s_mov_b32 s54, {2048*1152}
    s_mov_b32 s55, 0x20000
    s_mul_i32 s48, s2, {72*128}
    v_cmp_gt_u32 vcc, 72, v0
    v_mov_b32 v97, 0x7fffffff
    s_nop 0
    v_cndmask_b32 v97, v97, v96, vcc
    buffer_load_dword v101, v97, s[52:55], s48 offen
"""
    k(f"""
    s_setprio 3
    s_load_dwordx2 s[4:5], s[0:1], 0           ; x
    s_load_dwordx4 s[24:27], s[0:1], 96
    s_load_dwordx4 s[36:39], s[0:1], 80
    s_and_b32 s16, s2, 7
    s_lshl_b32 s16, s16, 5
    s_lshr_b32 s17, s2, 3
    s_add_u32 s16, s16, s17
    v_and_b32 v1, 63, v0                       ; lane
    v_lshrrev_b32 v2, 6, v0                    ; wave
    v_lshrrev_b32 v3, 5, v1                    ; r (0..1)
    v_and_b32 v4, 31, v1                       ; c
    v_lshl_add_u32 v5, v2, 1, v3
    v_mul_u32_u24 v6, 1152, v5
    v_lshl_add_u32 v6, v4, 4, v6               ; row*1152 + c*16
    s_mul_i32 s17, s16, {8*1152}
    v_cmp_gt_u32 vcc, 8, v4
    v_add_u32 v7, 1024, v6
    v_mov_b32 v8, 0x7fffffff
    v_cndmask_b32 v7, v8, v7, vcc
    v_readfirstlane_b32 s21, v2
    s_waitcnt lgkmcnt(0)
    """)
    srd(k, 8, 4, 5, 2048*1152)
    X = 16
    for i in range(2):
        k(f"buffer_load_dwordx4 v[{X+4*i}:{X+4*i+3}], v6, s[8:11], s17 offen offset:{512*i}")
    k(f"buffer_load_dwordx4 v[{X+8}:{X+11}], v7, s[8:11], s17 offen")
    srd(k, 12, 26, 27, WS_END); srd(k, 28, 24, 25, 256)
    NPT = 0
    if opts.get("ptouch"):
        NPT = 5
        k(f"""
        s_load_dwordx4 s[36:39], s[0:1], 64
        s_load_dwordx4 s[40:43], s[0:1], 80
        v_lshlrev_b32 v96, {opts.get("ptouch_shift", 21)}, v1
        buffer_load_dword v97, v96, s[12:15], 0 offen
        s_waitcnt lgkmcnt(0)
        s_mov_b32 s44, s36
        s_mov_b32 s45, s37
        s_mov_b32 s46, {576*9216}
        s_mov_b32 s47, 0x20000
        buffer_load_dword v100, v96, s[44:47], 0 offen
        s_mov_b32 s48, s38
        s_mov_b32 s49, s39
        s_mov_b32 s50, {576*9216}
        s_mov_b32 s51, 0x20000
        buffer_load_dword v101, v96, s[48:51], 0 offen
        s_mov_b32 s52, s40
        s_mov_b32 s53, s41
        s_mov_b32 s54, {576*9216}
        s_mov_b32 s55, 0x20000
        buffer_load_dword v102, v96, s[52:55], 0 offen
        s_mov_b32 s56, s42
        s_mov_b32 s57, s43
        s_mov_b32 s58, {2048*1152}
        s_mov_b32 s59, 0x20000
        buffer_load_dword v103, v96, s[56:59], 0 offen
        """)
    k(f"""
    s_or_b32 s34, s21, s2
    s_cmp_lg_u32 s34, 0
    s_cbranch_scc1 L{name}_P_nononce
    s_memrealtime s[32:33]
    s_waitcnt lgkmcnt(0)
    s_or_b32 s32, s32, 1
    v_mov_b32 v12, s32
    v_mov_b32 v13, 0
    buffer_store_dword v12, v13, s[28:31], 0 offen sc1
    """)
    k.label(f"L{name}_P_nononce")
    k(f"""
    s_cmp_ge_u32 s2, 16
    s_cbranch_scc1 L{name}_P_nozero
    v_mov_b32 v12, 0
    v_and_b32 v13, 31, v0
    v_lshlrev_b32 v13, 2, v13
    s_lshl_b32 s34, s2, 7
    s_add_u32 s34, s34, {WS_SC}
    buffer_store_dword v12, v13, s[12:15], s34 offen
    """)
    k.label(f"L{name}_P_nozero")
    F = 40
    UOFF = 8*PITCH
    k(f"""
    v_mul_u32_u24 v6, {PITCH}, v5
    v_lshl_add_u32 v6, v4, 4, v6
    v_mov_b32 v9, 0x3f803f80
    v_mov_b32 v10, 0
    v_mov_b32 v11, 0
    v_mov_b32 v99, 0
    s_waitcnt vmcnt({NPT})
    """)
    if opts.get("tags"): k("buffer_load_dword v98, v99, s[28:31], 0 offen sc1")
    for i in range(12):
        k(f"v_dot2_f32_bf16 v{10+(i&1)}, v{X+i}, v9, v{10+(i&1)}")
        k(f"v_lshlrev_b32 v{F+2*i}, 16, v{X+i}")
        k(f"v_and_b32 v{F+2*i+1}, 0xffff0000, v{X+i}")
    for i in range(2): k(f"ds_write_b128 v6, v[{X+4*i}:{X+4*i+3}] offset:{512*i}")
    k("s_nop 0\nv_add_f32 v10, v10, v11")
    def reduce32(reg):
        k(f"""
        s_nop 1
        v_add_f32_dpp v{reg}, v{reg}, v{reg} quad_perm:[1,0,3,2] row_mask:0xf bank_mask:0xf
        s_nop 1
        v_add_f32_dpp v{reg}, v{reg}, v{reg} quad_perm:[2,3,0,1] row_mask:0xf bank_mask:0xf
        s_nop 1
        v_add_f32_dpp v{reg}, v{reg}, v{reg} row_half_mirror row_mask:0xf bank_mask:0xf
        s_nop 1
        v_add_f32_dpp v{reg}, v{reg}, v{reg} row_mirror row_mask:0xf bank_mask:0xf
        v_mov_b32 v14, v{reg}
        s_nop 1
        v_permlane16_swap_b32 v{reg}, v14
        s_nop 1
        v_add_f32 v{reg}, v{reg}, v14
        """)
    k("v_mov_b32 v14, v10") if False else None
    reduce32(10)
    k(f"v_mul_f32 v10, {f2u(1.0/576):#x}, v10        ; mean")
    k("v_mov_b32 v11, 0\nv_mov_b32 v12, 0\nv_mov_b32 v15, 0")
    for i in range(16):
        t = 13 + (i & 1)
        k(f"v_sub_f32 v{t}, v{F+i}, v10")
        k(f"v_fmac_f32 v{11+(i&1)}, v{t}, v{t}")
    for i in range(16, 24):
        t = 13 + (i & 1)
        k(f"v_sub_f32 v{t}, v{F+i}, v10")
        k(f"v_fmac_f32 v15, v{t}, v{t}")
    k("""
    v_add_f32 v11, v11, v12
    v_cndmask_b32 v15, 0, v15, vcc
    v_add_f32 v11, v11, v15
    """)
    reduce32(11)
    k(f"""
    v_mul_f32 v11, {f2u(1.0/576):#x}, v11        ; var
    v_cvt_pk_bf16_f32 v12, v10, v11
    v_lshlrev_b32 v10, 16, v12                   ; m (bf16)
    v_and_b32 v11, 0xffff0000, v12
    v_add_f32 v11, {f2u(1e-5):#x}, v11
    """)
    bf16r(k, 11, 11)
    k("v_sqrt_f32 v11, v11\ns_nop 0")
    bf16r(k, 11, 11)
    k("v_rcp_f32 v11, v11\ns_nop 0")
    U = 80
    for i in range(12):
        a_, b_ = F+2*i, F+2*i+1
        t = 13 + (i & 1)
        k(f"""
        v_sub_f32 v{a_}, v{a_}, v10
        v_sub_f32 v{b_}, v{b_}, v10
        v_cvt_pk_bf16_f32 v{t}, v{a_}, v{b_}
        v_lshlrev_b32 v{a_}, 16, v{t}
        v_and_b32 v{b_}, 0xffff0000, v{t}
        v_mul_f32 v{a_}, v{a_}, v11
        v_mul_f32 v{b_}, v{b_}, v11
        v_cvt_pk_bf16_f32 v{t}, v{a_}, v{b_}
        v_lshlrev_b32 v{a_}, 16, v{t}
        v_and_b32 v{b_}, 0xffff0000, v{t}
        v_cvt_pk_f16_f32 v{U+i}, v{a_}, v{b_}
        """)
        if i % 4 == 3 and i < 8:
            k(f"ds_write_b128 v6, v[{U+i-3}:{U+i}] offset:{UOFF+512*(i//4)}")
    k("s_and_saveexec_b64 s[18:19], vcc")
    k(f"ds_write_b128 v6, v[{X+8}:{X+11}] offset:1024")
    k(f"ds_write_b128 v6, v[{U+8}:{U+11}] offset:{UOFF+1024}")
    k("s_mov_b64 exec, s[18:19]")
    if opts.get("tags"):
        k(f"""
        v_bfe_u32 v6, v1, 2, 2                       ; r'
        v_bfe_u32 v7, v1, 4, 1                       ; g&1
        v_lshl_add_u32 v6, v7, 2, v6                 ; row
        v_mul_u32_u24 v6, {PITCH}, v6
        v_and_b32 v7, 3, v1
        v_lshl_add_u32 v6, v7, 3, v6                 ; + 8c
        v_lshrrev_b32 v7, 5, v1                      ; g>>1 : 0 -> u, 1 -> x
        v_xor_b32 v7, 1, v7
        v_mul_u32_u24 v7, {UOFF}, v7
        v_add_u32 v6, v6, v7
        v_lshl_add_u32 v6, v2, 5, v6                 ; + wave*16 d*2B
        v_and_b32 v9, 15, v1
        v_lshl_add_u32 v9, v2, 4, v9                 ; d local
        v_lshlrev_b32 v9, 6, v9                      ; d*64
        v_lshrrev_b32 v7, 4, v1
        v_lshl_add_u32 v8, v7, 4, v9                 ; + g*16
        s_mul_i32 s18, s16, {576*64}
        s_add_u32 s18, s18, {WS_UX2}
        s_mov_b32 s22, 0
        """)
        k.label(f"L{name}_P_nc")
        k(f"""
        s_waitcnt vmcnt(0)
        v_readfirstlane_b32 s23, v98
        s_cmp_lg_u32 s23, 0
        s_cbranch_scc1 L{name}_P_nok
        s_add_u32 s22, s22, 1
        s_cmp_lt_u32 s22, 0x40000
        s_cbranch_scc0 L{name}_P_nok
        s_sleep 2
        buffer_load_dword v98, v99, s[28:31], 0 offen sc1
        s_branch L{name}_P_nc
        """)
        k.label(f"L{name}_P_nok")
        k(f"s_xor_b32 s24, s23, {TAGX:#x}")
        for it in range(9):
            k(f"v_mov_b32 v{18+4*it}, s23\nv_mov_b32 v{19+4*it}, s24")
        k("s_waitcnt lgkmcnt(0)\ns_barrier")
        for it in range(9):
            k(f"ds_read_b64_tr_b16 v[{16+4*it}:{17+4*it}], v6 offset:{it*128}")
        for it in range(9):
            k(f"s_waitcnt lgkmcnt({8-it})")
            k(f"buffer_store_dwordx4 v[{16+4*it}:{19+4*it}], v8, s[12:15], s18 offen sc1")
            if it < 8: k(f"s_add_u32 s18, s18, {64*64}")
        k(f"s_branch L{name}_end")
        k("")
        return
    k(f"""
    v_bfe_u32 v6, v1, 2, 2                       ; r'
    v_mul_u32_u24 v6, {PITCH}, v6
    v_and_b32 v7, 3, v1
    v_lshl_add_u32 v6, v7, 3, v6                 ; + 8c
    v_bfe_u32 v7, v1, 4, 1                       ; array
    v_xor_b32 v8, 1, v7
    v_mul_u32_u24 v8, {UOFF}, v8
    v_add_u32 v6, v6, v8
    v_lshrrev_b32 v8, 5, v1                      ; dsub
    v_lshl_add_u32 v6, v8, 5, v6                 ; + dsub*16 d*2B
    v_lshl_add_u32 v6, v2, 6, v6                 ; + wave*32 d*2B
    v_and_b32 v9, 15, v1
    v_lshl_add_u32 v9, v8, 4, v9
    v_lshl_add_u32 v9, v2, 5, v9                 ; d local
    v_lshlrev_b32 v9, 5, v9                      ; d*32
    v_lshl_add_u32 v8, v7, 4, v9                 ; + array*16
    s_mul_i32 s18, s16, {576*32}
    s_add_u32 s18, s18, {WS_UX}
    v_mov_b32 v13, 0
    s_waitcnt lgkmcnt(0)
    s_barrier
    """)
    for it in range(5):
        Rg = 16 + 4*it
        if it == 4: k(f"s_cmp_ge_u32 s21, 2\ns_cbranch_scc1 L{name}_P_st")
        k(f"ds_read_b64_tr_b16 v[{Rg}:{Rg+1}], v6 offset:{it*256}")
        k(f"ds_read_b64_tr_b16 v[{Rg+2}:{Rg+3}], v6 offset:{it*256 + 4*PITCH}")
    k("s_waitcnt lgkmcnt(0)")
    k(f"s_add_u32 s22, s18, {4*128*32}")
    k(f"buffer_store_dwordx4 v[32:35], v8, s[12:15], s22 offen sc1")
    k.label(f"L{name}_P_st")
    for it in range(4):
        Rg = 16 + 4*it
        k(f"s_waitcnt lgkmcnt({max(0, 6 - 2*it)})" if False else "s_waitcnt lgkmcnt(0)") if it == 0 else None
        k(f"buffer_store_dwordx4 v[{Rg}:{Rg+3}], v8, s[12:15], s18 offen sc1")
        k(f"s_add_u32 s18, s18, {128*32}")
    k.label(f"L{name}_P_sig")
    k(f"""
    s_cmp_lg_u32 s21, 0
    s_cbranch_scc1 L{name}_P_w
    s_mov_b32 s22, 0
    """)
    k.label(f"L{name}_P_np")
    k(f"""
    buffer_load_dword v12, v13, s[28:31], 0 offen sc1
    s_waitcnt vmcnt(0)
    v_readfirstlane_b32 s23, v12
    s_cmp_lg_u32 s23, 0
    s_cbranch_scc1 L{name}_P_w
    s_add_u32 s22, s22, 1
    s_cmp_lt_u32 s22, 0x40000
    s_cbranch_scc0 L{name}_P_w
    s_sleep 4
    s_branch L{name}_P_np
    """)
    k.label(f"L{name}_P_w")
    k(f"""
    s_waitcnt vmcnt(0)
    s_barrier
    s_cmp_lg_u32 s21, 0
    s_cbranch_scc1 L{name}_P_pf
    v_cmp_gt_u32 vcc, {R}, v1
    s_and_saveexec_b64 s[18:19], vcc
    v_lshlrev_b32 v6, 10, v1                     ; replica*1024
    s_lshl_b32 s22, s2, 2
    s_add_u32 s22, s22, {WS_FL}
    buffer_store_dword v12, v6, s[12:15], s22 offen sc1
    s_mov_b64 exec, s[18:19]
    L{name}_P_pf:
    {PEXIT}
    s_branch L{name}_end
    """)

def poll_flags(k, name, tag, srd_dbg, srd_ws, sleep, vA, vB, sT, R=8):
    k(f"""
    v_mov_b32 v{vB}, 0
    s_mov_b32 s{sT}, 0
    """)
    k.label(f"L{name}_{tag}_np")
    k(f"""
    buffer_load_dword v{vA}, v{vB}, s[{srd_dbg}:{srd_dbg+3}], 0 offen sc1
    s_waitcnt vmcnt(0)
    v_readfirstlane_b32 s{sT+1}, v{vA}
    s_cmp_lg_u32 s{sT+1}, 0
    s_cbranch_scc1 L{name}_{tag}_gotn
    s_add_u32 s{sT}, s{sT}, 1
    s_cmp_lt_u32 s{sT}, 0x40000
    s_cbranch_scc0 L{name}_{tag}_gotn
    s_sleep 4
    s_branch L{name}_{tag}_np
    """)
    k.label(f"L{name}_{tag}_gotn")
    k(f"""
    s_and_b32 s{sT+2}, s2, {R-1}
    s_lshl_b32 s{sT+2}, s{sT+2}, 10
    s_add_u32 s{sT+2}, s{sT+2}, {WS_FL}
    v_lshlrev_b32 v{vB}, 4, v1
    """)
    k.label(f"L{name}_{tag}_poll")
    k(f"""
    buffer_load_dwordx4 v[{vA}:{vA+3}], v{vB}, s[{srd_ws}:{srd_ws+3}], s{sT+2} offen sc1
    s_waitcnt vmcnt(0)
    v_cmp_ne_u32 vcc, s{sT+1}, v{vA}
    v_cmp_ne_u32 s[{sT+4}:{sT+5}], s{sT+1}, v{vA+1}
    s_or_b64 vcc, vcc, s[{sT+4}:{sT+5}]
    v_cmp_ne_u32 s[{sT+4}:{sT+5}], s{sT+1}, v{vA+2}
    s_or_b64 vcc, vcc, s[{sT+4}:{sT+5}]
    v_cmp_ne_u32 s[{sT+4}:{sT+5}], s{sT+1}, v{vA+3}
    s_or_b64 vcc, vcc, s[{sT+4}:{sT+5}]
    s_cbranch_vccz L{name}_{tag}_go
    s_add_u32 s{sT}, s{sT}, 1
    s_cmp_lt_u32 s{sT}, 0x40000
    s_cbranch_scc0 L{name}_{tag}_go
    s_sleep {sleep}
    s_branch L{name}_{tag}_poll
    """)
    k.label(f"L{name}_{tag}_go")

def role_B(k, name, opts):
    BS = opts.get("bsplit", False)
    BHALF = "s_cmp_ge_u32 s26, 144\n    s_cselect_b32 s28, 1, 0\n    s_cselect_b32 s27, 144, 0\n    s_sub_u32 s26, s26, s27" if BS else "s_mov_b32 s28, 0"
    if opts.get("bxcd", True):
        BMAP = """s_and_b32 s18, s26, 7
    s_mul_i32 s18, s18, 9
    s_lshr_b32 s19, s26, 3
    s_cmp_ge_u32 s19, 9
    s_cselect_b32 s20, 1, 0
    s_cselect_b32 s27, 9, 0
    s_sub_u32 s19, s19, s27
    s_add_u32 s18, s18, s19                     ; cidx"""
    else:
        BMAP = """s_cmp_ge_u32 s26, 72
    s_cselect_b32 s19, 72, 0
    s_cselect_b32 s20, 1, 0
    s_sub_u32 s18, s26, s19                     ; cidx"""
    k(f"""
    s_load_dwordx4 s[4:7], s[0:1], 64
    s_load_dwordx2 s[24:25], s[0:1], 80         ; w_down
    s_load_dwordx4 s[32:35], s[0:1], 96
    s_sub_u32 s26, s2, {NP+NV}
    {BHALF}
    {BMAP}
    v_lshrrev_b32 v1, 3, v0                     ; rg
    v_and_b32 v2, 7, v0                         ; c
    v_mul_u32_u24 v3, 9216, v1
    v_lshl_add_u32 v3, v2, 4, v3
    s_waitcnt lgkmcnt(0)
    s_cmp_eq_u32 s20, 1
    s_cselect_b32 s8, s6, s4
    s_cselect_b32 s9, s7, s5
    s_mov_b32 s10, {576*9216}
    s_mov_b32 s11, 0x20000
    """)
    srd(k, 12, 34, 35, WS_END)
    if opts.get("codepf"):
        k(f"""
        s_getpc_b64 s[44:45]
        L{name}_pc:
        s_add_u32 s44, s44, k3_kernel-L{name}_pc
        s_addc_u32 s45, s45, 0
        s_lshr_b32 s46, s26, 3
        s_min_u32 s46, s46, {opts.get("codepf")-1}
        s_lshl_b32 s46, s46, 13
        v_and_b32 v60, 63, v0
        v_lshlrev_b32 v60, 7, v60
        v_add_u32 v60, s46, v60
        global_load_dword v92, v60, s[44:45]
        """)
        if opts.get("kdpf"):
            k(f"""
            s_getpc_b64 s[44:45]
            s_add_u32 s44, s44, Lkd_start@rel32@lo+4
            s_addc_u32 s45, s45, Lkd_start@rel32@hi+12
            v_and_b32 v60, 3, v0
            v_lshlrev_b32 v60, 6, v60
            global_load_dword v93, v60, s[44:45]
            """)
    if opts.get("tlbpf"):
        k(f"""
        s_and_b32 s44, s26, 7
        s_mul_i32 s44, s44, 1152
        s_lshr_b32 s45, s26, 3
        s_lshl_b32 s45, s45, 6
        s_add_u32 s44, s44, s45
        s_lshl_b32 s44, s44, 12
        s_add_u32 s44, s44, {WS_PART}
        v_and_b32 v60, 63, v0
        v_lshlrev_b32 v60, 12, v60
        buffer_load_dword v94, v60, s[12:15], s44 offen
        """)
    if opts.get("bwait", True):
        srd(k, 36, 32, 33, 256)
        k(f"v_and_b32 v1, 63, v0\nv_lshrrev_b32 v60, 6, v0\ns_nop 0\nv_readfirstlane_b32 s40, v60\ns_nop 3\ns_cmp_lg_u32 s40, 0\ns_cbranch_scc1 L{name}_B_nopoll")
        if opts.get("bone"):
            k(f"""
            v_mov_b32 v64, 0
            s_mov_b32 s41, 0
            """)
            k.label(f"L{name}_B1_nc")
            k(f"""
            buffer_load_dword v60, v64, s[36:39], 0 offen sc1
            s_waitcnt vmcnt(0)
            v_readfirstlane_b32 s42, v60
            s_cmp_lg_u32 s42, 0
            s_cbranch_scc1 L{name}_B1_ok
            s_add_u32 s41, s41, 1
            s_cmp_lt_u32 s41, 0x10000
            s_cbranch_scc0 L{name}_B1_ok
            s_sleep 8
            s_branch L{name}_B1_nc
            """)
            k.label(f"L{name}_B1_ok")
            k(f"""
            s_and_b32 s43, s2, 7
            s_lshl_b32 s43, s43, 10
            s_add_u32 s43, s43, {WS_FL}
            v_and_b32 v64, {opts["bone"]-1}, v1
            s_and_b32 s44, s26, 31
            s_lshl_b32 s44, s44, 3
            v_add_u32 v64, s44, v64
            v_and_b32 v64, 255, v64
            v_lshlrev_b32 v64, 2, v64
            """)
            k.label(f"L{name}_B1_pl")
            k(f"""
            buffer_load_dword v60, v64, s[12:15], s43 offen sc1
            s_waitcnt vmcnt(0)
            v_cmp_ne_u32 vcc, s42, v60
            s_cbranch_vccz L{name}_B1_go
            s_add_u32 s41, s41, 1
            s_cmp_lt_u32 s41, 0x10000
            s_cbranch_scc0 L{name}_B1_go
            s_sleep {opts.get("bsleep", 16)}
            s_branch L{name}_B1_pl
            """)
            k.label(f"L{name}_B1_go")
        elif not opts.get("tags"):
            poll_flags(k, name, "B", 36, 12, opts.get("bsleep", 16), 60, 64, 40, opts.get("R", 8))
        else:
            k(f"""
            v_mov_b32 v64, 0
            s_mov_b32 s41, 0
            """)
            k.label(f"L{name}_B_nc")
            k(f"""
            buffer_load_dword v60, v64, s[36:39], 0 offen sc1
            s_waitcnt vmcnt(0)
            v_readfirstlane_b32 s42, v60
            s_cmp_lg_u32 s42, 0
            s_cbranch_scc1 L{name}_B_nok
            s_add_u32 s41, s41, 1
            s_cmp_lt_u32 s41, 0x10000
            s_cbranch_scc0 L{name}_B_nok
            s_sleep 8
            s_branch L{name}_B_nc
            """)
            k.label(f"L{name}_B_nok")
            k(f"""
            v_and_b32 v64, 7, v1
            v_lshlrev_b32 v64, 5, v64
            v_add_u32 v64, 31, v64                      ; rb = 31, 63, ..., 255
            v_mul_u32_u24 v64, {576*64}, v64
            s_lshl_b32 s43, s26, 8
            s_add_u32 s43, s43, {WS_UX2}
            """)
            k.label(f"L{name}_B_pl")
            k(f"""
            buffer_load_dwordx4 v[60:63], v64, s[12:15], s43 offen sc1
            s_waitcnt vmcnt(0)
            v_cmp_ne_u32 vcc, s42, v62
            s_cbranch_vccz L{name}_B_pok
            s_add_u32 s41, s41, 1
            s_cmp_lt_u32 s41, 0x10000
            s_cbranch_scc0 L{name}_B_pok
            s_sleep {opts.get("bsleep", 16)}
            s_branch L{name}_B_pl
            """)
            k.label(f"L{name}_B_pok")
        if opts.get("bprio"): k(f"s_setprio {opts['bprio']}")
        k.label(f"L{name}_B_nopoll")
        k("s_barrier\nv_lshrrev_b32 v1, 3, v0")
    k("s_lshl_b32 s21, s18, 7")
    NL = 9 if BS else 18
    if BS: k(f"s_mul_i32 s29, s28, {288*9216}\ns_add_u32 s21, s21, s29")
    BD = min(opts.get("bdepth", 18), NL)
    def bload(i):
        k(f"buffer_load_dwordx4 v[{16+4*i}:{16+4*i+3}], v3, s[8:11], s21 offen")
        if i < NL - 1: k(f"s_add_u32 s21, s21, {32*9216}")
    for i in range(BD): bload(i)
    NPF = 0
    if opts.get("wdpf"):
        NPF = 2
        srd(k, 28, 24, 25, 4608*1152)
        k(f"""
        s_mul_i32 s27, s26, {288*128}
        v_lshlrev_b32 v14, 7, v0
        buffer_load_dword v90, v14, s[28:31], s27 offen
        v_cmp_gt_u32 vcc, 32, v0
        v_add_u32 v15, {256*128}, v14
        v_mov_b32 v91, 0x7fffffff
        v_cndmask_b32 v15, v91, v15, vcc
        buffer_load_dword v91, v15, s[28:31], s27 offen
        """)
    for i in range(NL):
        issued = min(NL, BD + i)
        k(f"s_waitcnt vmcnt({issued - 1 - i + NPF})")
        if BD + i < NL: bload(BD + i)
        for d in range(4):
            r = 16+4*i+d
            if i == 0:
                k(f"v_lshlrev_b32 v{4+2*d}, 16, v{r}\nv_and_b32 v{5+2*d}, 0xffff0000, v{r}")
            else:
                k(f"v_lshlrev_b32 v12, 16, v{r}\nv_and_b32 v13, 0xffff0000, v{r}\nv_add_f32 v{4+2*d}, v{4+2*d}, v12\nv_add_f32 v{5+2*d}, v{5+2*d}, v13")
    k(f"""
    v_lshlrev_b32 v12, 8, v1
    v_lshl_add_u32 v12, v2, 5, v12
    ds_write_b128 v12, v[4:7]
    ds_write_b128 v12, v[8:11] offset:16
    s_waitcnt lgkmcnt(0)
    s_barrier
    v_cmp_gt_u32 vcc, 64, v0
    s_and_saveexec_b64 s[22:23], vcc
    s_cbranch_execz L{name}_end
    v_lshlrev_b32 v12, 2, v0
    """)
    for i in range(32):
        k(f"ds_read_b32 v{16+i}, v12 offset:{256*i}")
        if i in (14, 29): k("s_waitcnt lgkmcnt(0)")
    k("s_waitcnt lgkmcnt(0)")
    for st in (16, 8, 4, 2, 1):
        for i in range(st): k(f"v_add_f32 v{16+i}, v{16+i}, v{16+i+st}")
    k(f"""
    v_cvt_pk_bf16_f32 v13, v16, v16
    v_and_b32 v14, 0xffff0000, v13
    v_sub_f32 v14, v16, v14
    v_cvt_pk_bf16_f32 v14, v14, v14
    v_and_b32 v13, 0xffff, v13
    v_and_b32 v14, 0xffff0000, v14
    v_or_b32 v13, v13, v14
    s_lshl_b32 s22, s18, 6
    v_add_u32 v15, s22, v0                      ; f
    s_mov_b32 s22, 14913081
    v_mul_hi_u32 v16, v15, s22                  ; j
    v_mul_u32_u24 v17, 288, v16
    v_sub_u32 v17, v15, v17                     ; local
    v_and_b32 v18, 1, v16
    v_lshlrev_b32 v19, 5, v18
    v_sub_u32 v19, v17, v19
    v_cmp_gt_i32 vcc, 0, v19
    v_add_u32 v20, 288, v19
    s_nop 0
    v_cndmask_b32 v19, v19, v20, vcc
    v_lshrrev_b32 v20, 4, v19
    v_and_b32 v19, 15, v19
    v_lshl_add_u32 v19, v16, 4, v19
    v_mul_u32_u24 v19, 36, v19
    v_lshl_add_u32 v19, v20, 1, v19
    v_add_u32 v19, s20, v19
    {"v_lshlrev_b32 v19, 1, v19" if BS else ""}
    {"v_add_u32 v19, s28, v19" if BS else ""}
    v_lshlrev_b32 v12, 2, v19
    s_mov_b32 s21, {WS_CS}
    buffer_store_dword v13, v12, s[12:15], s21 offen
    s_branch L{name}_end
    """)

def role_V(k, name, opts):
    k(f"""
    s_load_dwordx4 s[4:7], s[0:1], 8
    s_load_dwordx4 s[24:27], s[0:1], 24
    s_load_dwordx4 s[28:31], s[0:1], 40
    s_load_dwordx4 s[48:51], s[0:1], 96
    s_sub_u32 s16, s2, {NP}
    s_and_b32 s18, s16, 7
    s_mul_i32 s18, s18, 72
    s_lshr_b32 s16, s16, 3
    s_add_u32 s16, s16, s18
    v_and_b32 v1, 63, v0                        ; lane
    v_lshrrev_b32 v2, 6, v0                     ; wave
    v_and_b32 v3, 1, v2
    v_lshl_add_u32 v4, v3, 6, v1                ; n
    v_lshlrev_b32 v5, 1, v4                     ; n*2
    v_xor_b32 v6, 128, v5
    v_readfirstlane_b32 s17, v2
    s_lshl_b32 s18, s16, 8                      ; d*256
    s_lshl_b32 s19, s16, 1
    v_mov_b32 v7, s19
    s_waitcnt lgkmcnt(0)
    """)
    srd(k, 8, 4, 5, 576*256); srd(k, 12, 6, 7, 576*256); srd(k, 32, 24, 25, 576*256); srd(k, 36, 26, 27, 576*256)
    srd(k, 40, 28, 29, 576*2); srd(k, 52, 30, 31, 576*2); srd(k, 44, 50, 51, WS_END); srd(k, 56, 48, 49, 256)
    k("""
    buffer_load_ushort v8, v5, s[8:11], s18 offen
    buffer_load_ushort v14, v7, s[40:43], 0 offen
    buffer_load_ushort v9, v5, s[12:15], s18 offen
    buffer_load_ushort v10, v5, s[32:35], s18 offen
    buffer_load_ushort v11, v5, s[36:39], s18 offen
    buffer_load_ushort v12, v6, s[32:35], s18 offen
    buffer_load_ushort v13, v6, s[36:39], s18 offen
    buffer_load_ushort v62, v7, s[52:55], 0 offen       ; D_skip
    """)
    for i in range(8):
        sh = {0: 0, 1: 1, 2: 2, 3: 2}.get(i, 3)
        r = 40 + i
        if sh == 0: k(f"v_lshlrev_b32 v{r}, 2, v0")
        else:
            k(f"""
            v_add_u32 v38, {256*i}, v0
            v_bfe_u32 v39, v38, {sh}, 1
            v_add_u32 v38, v38, v39
            v_add_u32 v38, {(1 << (sh-1)) - 1}, v38
            v_lshrrev_b32 v38, {sh}, v38
            v_lshlrev_b32 v{r}, {sh+2}, v38
            """)
    k("s_waitcnt vmcnt(0)")
    for r in (8, 9, 10, 11, 12, 13, 14, 62): k(f"v_lshlrev_b32 v{r}, 16, v{r}")
    k(f"""
    v_mul_f32 v14, {f2u(LOG2E):#x}, v14
    v_mul_f32 v8, {f2u(LOG2E):#x}, v8
    v_exp_f32 v14, v14
    v_exp_f32 v8, v8
    v_add_f32 v15, |v10|, |v11|
    v_add_f32 v16, |v12|, |v13|
    v_add_f32 v15, v15, v16
    """)
    bf16r(k, 14, 14); bf16r(k, 8, 8)
    k("""
    s_nop 1
    v_add_f32_dpp v15, v15, v15 quad_perm:[1,0,3,2] row_mask:0xf bank_mask:0xf
    s_nop 1
    v_add_f32_dpp v15, v15, v15 quad_perm:[2,3,0,1] row_mask:0xf bank_mask:0xf
    s_nop 1
    v_add_f32_dpp v15, v15, v15 row_half_mirror row_mask:0xf bank_mask:0xf
    s_nop 1
    v_add_f32_dpp v15, v15, v15 row_mirror row_mask:0xf bank_mask:0xf
    s_nop 1
    v_readlane_b32 s20, v15, 0
    v_readlane_b32 s21, v15, 16
    v_readlane_b32 s22, v15, 32
    v_readlane_b32 s23, v15, 48
    s_nop 1
    v_mov_b32 v15, s20
    v_add_f32 v15, s21, v15
    v_add_f32 v15, s22, v15
    v_add_f32 v15, s23, v15
    v_mul_f32 v15, v15, v14
    v_add_f32 v15, v15, v15
    v_frexp_exp_i32_f32 v16, v15
    v_sub_u32 v17, 13, v16
    v_mov_b32 v18, 1.0
    v_ldexp_f32 v19, v18, v17                    ; S
    v_sub_u32 v17, 0, v17
    v_ldexp_f32 v63, v18, v17
    """)
    k(f"""
    v_mul_f32 v8, v8, v14
    v_mul_f32 v9, v9, v14
    v_mul_f32 v8, {f2u(-LOG2E):#x}, v8
    v_mul_f32 v9, 0.15915494, v9
    """)
    AL, BE = 8, 9
    def direct(dr, di, p, t0=21, t1=22):
        k(f"""
        v_mul_f32 v{t0}, {f2u(float(p)):#x}, v{AL}
        v_mul_f32 v{t1}, {f2u(float(p)):#x}, v{BE}
        v_exp_f32 v{t0}, v{t0}
        v_fract_f32 v{t1}, v{t1}
        s_nop 0
        v_cos_f32 v{dr}, v{t1}
        v_sin_f32 v{di}, v{t1}
        s_nop 0
        v_mul_f32 v{dr}, v{dr}, v{t0}
        v_mul_f32 v{di}, v{di}, v{t0}
        """)
    k("v_lshlrev_b32 v23, 2, v4")
    def put(tab, row, re, im, neg=False, tmp=24):
        if neg: k(f"v_cvt_pk_f16_f32 v{tmp}, v{re}, -v{im}")
        else: k(f"v_cvt_pk_f16_f32 v{tmp}, v{re}, v{im}")
        k(f"ds_write_b32 v23, v{tmp} offset:{tab + row*TP}")
    k(f"s_cmp_ge_u32 s17, 2\ns_cbranch_scc1 L{name}_V_part1")
    direct(30, 31, 1); direct(32, 33, 16)
    k("""
    v_mul_f32 v25, v19, v14
    v_add_f32 v25, v25, v25
    v_mul_f32 v34, v10, v25
    v_mul_f32 v35, v11, v25
    v_mov_b32 v26, 1.0
    v_mov_b32 v27, 0
    """)
    fr, fi, er, ei = 34, 35, 26, 27
    for r in range(16):
        put(TA, r, fr, fi, neg=True, tmp=24)
        put(TB, r, er, ei, tmp=25)
        if r < 15:
            nf = 36 if fr == 34 else 34; ne = 28 if er == 26 else 26
            cmul(k, nf, nf+1, fr, fi, 32, 33)
            cmul(k, ne, ne+1, er, ei, 30, 31)
            fr, fi, er, ei = nf, nf+1, ne, ne+1
    k(f"s_branch L{name}_V_join")
    k.label(f"L{name}_V_part1")
    direct(30, 31, 2); direct(32, 33, 256)
    cmul(k, 34, 35, 30, 31, 30, 31)
    cmul(k, 36, 37, 34, 35, 34, 35)
    cmul(k, 38, 39, 32, 33, 32, 33)
    cmul(k, 48, 49, 38, 39, 38, 39)
    cmul(k, 50, 51, 48, 49, 48, 49)
    put(TB, 40, 50, 51)
    cr_, ci_ = 32, 33
    put(TB, 16, cr_, ci_)
    for c in range(1, 8):
        n_ = 52 if cr_ != 52 else 54
        cmul(k, n_, n_+1, cr_, ci_, 30, 31); cr_, ci_ = n_, n_+1
        put(TB, 16 + c, cr_, ci_, tmp=24 + (c & 1))
    cmul(k, 56, 57, 38, 39, 32, 33)
    for base, (b0, b1) in ((24, (38, 39)), (28, (56, 57))):
        cr_, ci_ = b0, b1
        put(TB, base, cr_, ci_)
        for c in range(1, 4):
            n_ = 52 if cr_ != 52 else 54
            cmul(k, n_, n_+1, cr_, ci_, 34, 35); cr_, ci_ = n_, n_+1
            put(TB, base + c, cr_, ci_, tmp=24 + (c & 1))
    cr_, ci_ = 48, 49
    for g in range(4):
        put(TB, 32 + 2*g, cr_, ci_)
        cmul(k, 58, 59, cr_, ci_, 36, 37)
        put(TB, 32 + 2*g + 1, 58, 59, tmp=25)
        if g < 3:
            n_ = 52 if cr_ != 52 else 54
            cmul(k, n_, n_+1, cr_, ci_, 32, 33); cr_, ci_ = n_, n_+1
    k.label(f"L{name}_V_join")
    k("s_waitcnt lgkmcnt(0)\ns_barrier")
    k(f"""
    v_and_b32 v4, 15, v1                          ; a / col / b
    v_lshrrev_b32 v5, 4, v1                       ; q
    s_cmp_ge_u32 s17, 3
    s_cbranch_scc1 L{name}_V_skipmm
    v_mul_u32_u24 v26, {TP}, v4
    v_lshl_add_u32 v26, v5, 4, v26
    s_mul_i32 s20, s17, {16*TP}
    v_add_u32 v27, s20, v26
    """)
    for t in range(8):
        k(f"ds_read_b128 v[{64+8*t}:{64+8*t+3}], v26 offset:{TA + 64*t}")
        k(f"ds_read_b128 v[{68+8*t}:{68+8*t+3}], v27 offset:{TB + 64*t}")
        if t == 6: k("s_waitcnt lgkmcnt(8)")
    k(f"""
    v_mov_b32 v32, v4
    s_cmp_eq_u32 s17, 0
    s_cbranch_scc1 L{name}_V_oready
    s_cmp_eq_u32 s17, 1
    s_cbranch_scc0 L{name}_V_t2
    v_lshlrev_b32 v33, 1, v4
    v_add_u32 v33, 256, v33
    v_and_b32 v34, 3, v4
    v_lshlrev_b32 v34, 2, v34
    v_bfe_u32 v35, v4, 2, 1
    v_lshlrev_b32 v35, 8, v35
    v_add_u32 v34, v34, v35
    v_add_u32 v34, 512, v34
    v_cmp_gt_u32 vcc, 8, v4
    s_nop 1
    v_cndmask_b32 v32, v34, v33, vcc
    s_branch L{name}_V_oready
    """)
    k.label(f"L{name}_V_t2")
    k(f"""
    v_lshrrev_b32 v33, 1, v4
    v_lshlrev_b32 v33, 8, v33
    v_and_b32 v34, 1, v4
    v_lshl_add_u32 v33, v34, 3, v33
    v_add_u32 v33, 1024, v33
    v_cmp_gt_u32 vcc, 9, v4
    v_mov_b32 v34, 2052
    s_nop 0
    v_cndmask_b32 v32, v34, v33, vcc
    """)
    k.label(f"L{name}_V_oready")
    k(f"""
    v_lshl_add_u32 v33, v5, 6, v32
    v_min_u32 v34, 2100, v33
    v_add_u32 v35, 16, v33
    v_min_u32 v35, 2100, v35
    v_add_u32 v36, 32, v33
    v_min_u32 v36, 2100, v36
    v_add_u32 v37, 48, v33
    v_min_u32 v37, 2100, v37
    v_lshlrev_b32 v34, 2, v34
    v_lshlrev_b32 v35, 2, v35
    v_lshlrev_b32 v36, 2, v36
    v_lshlrev_b32 v37, 2, v37
    """)
    for t in range(8):
        k(f"s_waitcnt lgkmcnt({min(15, 2*(7-t))})")
        C = "0" if t == 0 else "v[28:31]"
        k(f"v_mfma_f32_16x16x32_f16 v[28:31], v[{64+8*t}:{64+8*t+3}], v[{68+8*t}:{68+8*t+3}], {C}")
    k(f"""
    s_nop 7
    ds_write_b32 v34, v28 offset:{KT}
    ds_write_b32 v35, v29 offset:{KT}
    ds_write_b32 v36, v30 offset:{KT}
    ds_write_b32 v37, v31 offset:{KT}
    """)
    k.label(f"L{name}_V_skipmm")
    k("s_waitcnt lgkmcnt(0)\ns_barrier")
    if opts.get("tags"): k("v_mov_b32 v58, 0\nbuffer_load_dword v57, v58, s[56:59], 0 offen sc1")
    for i in range(8): k(f"ds_read_b32 v{48+i}, v{40+i} offset:{KT}")
    k(f"""
    v_mov_b32 v16, 0
    v_mov_b32 v17, 0
    v_mov_b32 v18, 0
    v_mov_b32 v19, 0
    v_lshlrev_b32 v14, 4, v0                   ; tid*16
    v_cmp_gt_u32 vcc, 160, v0
    s_and_saveexec_b64 s[22:23], vcc
    ds_write_b128 v14, v[16:19]
    s_mov_b64 exec, s[22:23]
    v_cmp_gt_u32 vcc, 32, v0
    v_lshrrev_b32 v15, 3, v0
    v_mul_u32_u24 v15, {CS}, v15
    v_and_b32 v20, 7, v0
    v_lshl_add_u32 v15, v20, 4, v15
    s_and_saveexec_b64 s[22:23], vcc
    ds_write_b128 v15, v[16:19] offset:{KB}
    s_mov_b64 exec, s[22:23]
    v_lshlrev_b32 v15, 1, v0
    s_waitcnt lgkmcnt(0)
    """)
    for i in range(8):
        k(f"v_cvt_f16_f32 v{48+i}, v{48+i}")
        k(f"ds_write_b16 v15, v{48+i} offset:{KB + 128 + 512*i}")
    k("s_waitcnt lgkmcnt(0)\ns_barrier")
    k(f"""
    ds_read_b128 v[24:27], v14 offset:{KB + 128}
    ds_read_b64 v[22:23], v14 offset:{KB + 120}
    """)
    if not opts.get("tags"):
        k(f"""
        s_cmp_lg_u32 s17, 0
        s_cbranch_scc1 L{name}_V_nopoll
        """)
        poll_flags(k, name, "V", 56, 44, opts.get("vsleep", 4), 56, 21, 60, opts.get("R", 8))
    k.label(f"L{name}_V_nopoll")
    k(f"""
    s_waitcnt lgkmcnt(0)
    v_alignbit_b32 v28, v23, v22, 16
    v_alignbit_b32 v29, v24, v23, 16
    v_alignbit_b32 v30, v25, v24, 16
    v_alignbit_b32 v31, v26, v25, 16
    v_alignbit_b32 v32, v27, v26, 16
    v_mov_b32 v36, v29
    v_mov_b32 v37, v30
    v_mov_b32 v38, v31
    v_mov_b32 v39, v32
    v_mov_b32 v40, v23
    v_mov_b32 v41, v24
    v_mov_b32 v42, v25
    v_mov_b32 v43, v26
    ds_write_b128 v14, v[28:31] offset:{KB + 3*CS + 128}
    ds_write_b128 v14, v[36:39] offset:{KB + 1*CS + 128}
    ds_write_b128 v14, v[40:43] offset:{KB + 2*CS + 128}
    s_barrier
    """)
    if opts.get("tags"):
        k(f"""
        v_mul_u32_u24 v20, {576*64}, v0
        s_lshl_b32 s19, s16, 6
        s_add_u32 s19, s19, {WS_UX2}               ; + d*64
        v_lshrrev_b32 v56, 3, v0
        v_mul_u32_u24 v56, 160, v56
        v_and_b32 v49, 7, v0
        v_lshl_add_u32 v56, v49, 4, v56
        v_lshlrev_b32 v7, 3, v4
        v_lshrrev_b32 v21, 1, v5
        v_add_u32 v7, v7, v21
        s_lshl_b32 s25, s17, 1
        v_add_u32 v7, s25, v7
        v_mul_u32_u24 v7, {576*64}, v7
        v_and_b32 v21, 1, v5
        v_lshl_add_u32 v7, v21, 4, v7              ; + (q&1)*16
        s_add_u32 s25, s19, 32
        s_add_u32 s26, s25, {128*576*64}
        v_lshlrev_b32 v6, 7, v4
        v_lshl_add_u32 v6, v5, 3, v6               ; h^T offset: a*128 + q*8
        s_lshl_b32 s23, s17, 5                     ; mb*32
        s_lshl_b32 s24, s16, 12
        s_add_u32 s24, s24, s23
        s_mov_b32 s60, 0
        """)
        k.label(f"L{name}_V_nc")
        k(f"""
        s_waitcnt vmcnt(0)
        v_readfirstlane_b32 s61, v57
        s_cmp_lg_u32 s61, 0
        s_cbranch_scc1 L{name}_V_nok
        s_add_u32 s60, s60, 1
        s_cmp_lt_u32 s60, 0x40000
        s_cbranch_scc0 L{name}_V_nok
        s_sleep 2
        buffer_load_dword v57, v58, s[56:59], 0 offen sc1
        s_branch L{name}_V_nc
        """)
        k.label(f"L{name}_V_nok")
        k(f"s_xor_b32 s62, s61, {TAGX:#x}")
        k.label(f"L{name}_V_ld")
        k(f"""
        buffer_load_dwordx4 v[44:47], v20, s[44:47], s19 offen sc1
        buffer_load_dwordx4 v[48:51], v20, s[44:47], s19 offen offset:16 sc1
        buffer_load_dwordx4 v[8:11], v7, s[44:47], s25 offen sc1
        buffer_load_dwordx4 v[52:55], v7, s[44:47], s26 offen sc1
        s_waitcnt vmcnt(0)
        v_cmp_ne_u32 vcc, s61, v46
        v_cmp_ne_u32 s[64:65], s62, v47
        s_or_b64 vcc, vcc, s[64:65]
        v_cmp_ne_u32 s[64:65], s61, v50
        s_or_b64 vcc, vcc, s[64:65]
        v_cmp_ne_u32 s[64:65], s62, v51
        s_or_b64 vcc, vcc, s[64:65]
        v_cmp_ne_u32 s[64:65], s61, v10
        s_or_b64 vcc, vcc, s[64:65]
        v_cmp_ne_u32 s[64:65], s62, v11
        s_or_b64 vcc, vcc, s[64:65]
        v_cmp_ne_u32 s[64:65], s61, v54
        s_or_b64 vcc, vcc, s[64:65]
        v_cmp_ne_u32 s[64:65], s62, v55
        s_or_b64 vcc, vcc, s[64:65]
        s_cbranch_vccz L{name}_V_ldok
        s_add_u32 s60, s60, 1
        s_cmp_lt_u32 s60, 0x40000
        s_cbranch_scc0 L{name}_V_ldok
        s_sleep {opts.get("vsleep", 4)}
        s_branch L{name}_V_ld
        """)
        k.label(f"L{name}_V_ldok")
        k(f"""
        v_mov_b32 v10, v52
        v_mov_b32 v11, v53
        ds_write_b64 v56, v[44:45] offset:{UD}
        ds_write_b64 v56, v[48:49] offset:{UD + 8}
        """)
    else:
        if opts.get("mergeux", True):
            k(f"""
            v_lshrrev_b32 v21, 1, v0                   ; rb (0..127)
            v_mul_u32_u24 v20, {576*32}, v21
            v_and_b32 v49, 1, v0                       ; piece
            v_lshl_add_u32 v20, v49, 4, v20
            s_lshl_b32 s19, s16, 5
            s_add_u32 s19, s19, {WS_UX}                ; + d*32
            s_add_u32 s25, s19, {128*576*32}
            buffer_load_dwordx4 v[44:47], v20, s[44:47], s19 offen sc1
            buffer_load_dwordx4 v[8:11], v20, s[44:47], s25 offen sc1
            v_lshrrev_b32 v48, 3, v21
            v_mul_u32_u24 v48, 160, v48
            v_and_b32 v50, 7, v21
            v_lshl_add_u32 v48, v50, 4, v48
            v_add_u32 v48, {UD}, v48
            v_lshlrev_b32 v50, 4, v21
            v_add_u32 v50, {XL}, v50
            v_cmp_eq_u32 vcc, 1, v49
            v_mov_b32 v51, {16*160}
            v_mov_b32 v53, 2048
            v_cndmask_b32 v48, v48, v50, vcc
            v_cndmask_b32 v51, v51, v53, vcc
            v_add_u32 v51, v48, v51
            v_lshlrev_b32 v6, 7, v4
            v_lshl_add_u32 v6, v5, 3, v6               ; h^T offset: a*128 + q*8
            s_lshl_b32 s23, s17, 5                     ; mb*32
            s_lshl_b32 s24, s16, 12
            s_add_u32 s24, s24, s23
            """)
        else:
            k(f"""
            v_mul_u32_u24 v20, {576*32}, v0
            s_lshl_b32 s19, s16, 5
            s_add_u32 s19, s19, {WS_UX}                ; + d*32
            buffer_load_dwordx4 v[44:47], v20, s[44:47], s19 offen sc1
            v_lshrrev_b32 v48, 3, v0
            v_mul_u32_u24 v48, 160, v48
            v_and_b32 v49, 7, v0
            v_lshl_add_u32 v48, v49, 4, v48
            v_lshlrev_b32 v7, 3, v4
            v_lshrrev_b32 v21, 1, v5
            v_add_u32 v7, v7, v21
            s_lshl_b32 s25, s17, 1
            v_add_u32 v7, s25, v7                      ; 8a + 2mb + (q>>1)
            v_mul_u32_u24 v7, {576*32}, v7
            v_and_b32 v21, 1, v5
            v_lshl_add_u32 v7, v21, 3, v7
            s_add_u32 s25, s19, 16
            buffer_load_dwordx2 v[8:9], v7, s[44:47], s25 offen sc1
            s_add_u32 s25, s25, {128*576*32}
            buffer_load_dwordx2 v[10:11], v7, s[44:47], s25 offen sc1
            v_lshlrev_b32 v6, 7, v4
            v_lshl_add_u32 v6, v5, 3, v6               ; h^T offset: a*128 + q*8
            s_lshl_b32 s23, s17, 5                     ; mb*32
            s_lshl_b32 s24, s16, 12
            s_add_u32 s24, s24, s23
            """)
    if opts.get("tags"): UWR = ""
    elif opts.get("mergeux", True): UWR = "s_waitcnt vmcnt(1)\n    ds_write_b128 v48, v[44:47]\n    s_waitcnt vmcnt(0)\n    ds_write_b128 v51, v[8:11]"
    else: UWR = f"s_waitcnt vmcnt(2)\n    ds_write_b128 v48, v[44:47] offset:{UD}"
    k(f"""
    v_bfe_u32 v52, v1, 2, 2
    v_mul_u32_u24 v52, {CS}, v52
    v_and_b32 v53, 3, v1
    v_lshl_add_u32 v52, v53, 3, v52
    v_lshlrev_b32 v53, 4, v5
    v_sub_u32 v52, v52, v53
    s_lshl_b32 s27, s17, 9
    s_add_u32 s27, s27, {KB + 128 - 64 - 8}
    v_add_u32 v12, s27, v52                    ; A base
    v_mul_u32_u24 v53, 160, v4
    v_lshl_add_u32 v53, v5, 4, v53
    s_mul_i32 s27, s17, {4*160}
    s_sub_u32 s27, {UD - 3*160}, s27
    v_add_u32 v13, s27, v53                    ; B base
    {UWR}
    s_waitcnt lgkmcnt(0)
    s_barrier
    """)
    ACC = 16; BSET = [48, 64]; A1, A2 = 80, 104; RNG = 6
    def loadsB(si):
        L = []
        for na in range(2):
            for kk in range(2):
                r = BSET[si & 1] + 4*(2*na + kk)
                L.append(f"ds_read_b128 v[{r}:{r+3}], v13 offset:{(16*na + 3 - si)*160 + 64*kk}")
        return L
    def loadsA(tas):
        L = []
        for ta in tas:
            for rng in range(2):
                base = (A1 if rng == 0 else A2) + 4*(ta % RNG)
                for i in range(2):
                    L.append(f"ds_read_b64_tr_b16 v[{base+2*i}:{base+2*i+1}], v12 offset:{32*ta + 8*(1-i) + (2048 if rng else 0)}")
        return L
    k("v_mov_b32 v14, v62\nv_mov_b32 v15, v63")
    L0 = loadsB(0) + loadsA(range(0, 6))
    for n, l in enumerate(L0):
        k(l)
        if n in (11, 19): k("s_waitcnt lgkmcnt(4)")
    first = {}
    def mfmas(si, kk, mbs):
        out = []
        Bb = BSET[si & 1]
        for mb in mbs:
            ta = 4*si + 2 + mb - 2*kk
            for rng, na, bsel in ((0, 0, 0), (0, 1, 1), (1, 1, 0)):
                acc = ACC + 8*mb + 4*na
                A = (A1 if rng == 0 else A2) + 4*(ta % RNG)
                B = Bb + 4*(2*bsel + kk)
                C = f"v[{acc}:{acc+3}]" if (mb, na) in first else "0"
                first[(mb, na)] = 1
                out.append(f"v_mfma_f32_16x16x32_f16 v[{acc}:{acc+3}], v[{A}:{A+3}], v[{B}:{B+3}], {C}")
        return out
    for si in range(4):
        k("s_waitcnt lgkmcnt(0)")
        for m in mfmas(si, 1, range(4)): k(m)
        if si < 3:
            for l in loadsB(si + 1) + loadsA([4*si + 6, 4*si + 7]): k(l)
        for m in mfmas(si, 0, range(2)): k(m)
        mm = mfmas(si, 0, range(2, 4))
        if si < 3:
            k("s_waitcnt lgkmcnt(6)")
            for l in loadsA([4*si + 8, 4*si + 9]): k(l)
        for m in mm: k(m)
    k(f"""
    s_barrier
    v_lshlrev_b32 v12, 4, v1
    s_mul_i32 s27, s17, {6*1024}
    v_add_u32 v12, s27, v12
    """)
    for mb in range(4):
        k(f"s_cmp_eq_u32 s17, {mb}\ns_cbranch_scc1 L{name}_skw{mb}")
        k(f"s_sub_u32 s28, {mb + 3}, s17\ns_and_b32 s28, s28, 3\ns_lshl_b32 s28, s28, 11\nv_add_u32 v13, s28, v12")
        for na in range(2):
            acc = ACC + 8*mb + 4*na
            k(f"ds_write_b128 v13, v[{acc}:{acc+3}] offset:{RED + na*1024}")
        k.label(f"L{name}_skw{mb}")
    for mb in range(4):
        k(f"s_cmp_lg_u32 s17, {mb}\ns_cbranch_scc1 L{name}_mv{mb}")
        for i in range(8): k(f"v_mov_b32 v{48+i}, v{ACC+8*mb+i}")
        k.label(f"L{name}_mv{mb}")
    k("s_waitcnt lgkmcnt(0)\ns_barrier")
    XRD = ""
    if opts.get("mergeux", True) and not opts.get("tags"):
        XRD = f"v_add_u32 v12, s23, v6\n    ds_read_b64 v[8:9], v12 offset:{XL}\n    ds_read_b64 v[10:11], v12 offset:{XL + 2048}"
    k("v_lshlrev_b32 v12, 4, v1")
    for t in range(3):
        k(f"""
        s_sub_u32 s28, s17, {1+t}
        s_and_b32 s28, s28, 3
        s_mul_i32 s28, s28, {6*1024}
        s_add_u32 s28, s28, {t*2048}
        v_add_u32 v13, s28, v12
        ds_read_b128 v[{56+8*t}:{56+8*t+3}], v13 offset:{RED}
        ds_read_b128 v[{60+8*t}:{60+8*t+3}], v13 offset:{RED+1024}
        """)
    k(f"""
    v_mul_u32_u24 v13, 160, v4
    v_lshl_add_u32 v13, v5, 3, v13
    v_add_u32 v13, s23, v13
    ds_read_b64 v[80:81], v13 offset:{UD}
    ds_read_b64 v[82:83], v13 offset:{UD + 16*160}
    {XRD}
    s_waitcnt vmcnt(0) lgkmcnt(0)
    """)
    for t in range(3):
        for i in range(8): k(f"v_add_f32 v{48+i}, v{48+i}, v{56+8*t+i}")
    for na in range(2):
        Y = 48 + 4*na
        for p in range(2):
            y0, y1 = Y + 2*p, Y + 2*p + 1
            ur = 80 + 2*na + p; xr = 8 + 2*na + p
            k(f"""
            v_mul_f32 v{y0}, v{y0}, v15
            v_mul_f32 v{y1}, v{y1}, v15
            v_cvt_pk_bf16_f32 v84, v{y0}, v{y1}
            v_cvt_f32_f16 v85, v{ur}
            v_cvt_f32_f16_sdwa v86, v{ur} dst_sel:DWORD dst_unused:UNUSED_PAD src0_sel:WORD_1
            v_mul_f32 v85, v85, v14
            v_mul_f32 v86, v86, v14
            v_cvt_pk_bf16_f32 v85, v85, v86
            v_lshlrev_b32 v86, 16, v84
            v_and_b32 v84, 0xffff0000, v84
            v_lshlrev_b32 v87, 16, v85
            v_and_b32 v85, 0xffff0000, v85
            v_add_f32 v86, v86, v87
            v_add_f32 v84, v84, v85
            v_cvt_pk_bf16_f32 v84, v86, v84
            v_lshlrev_b32 v86, 16, v84
            v_and_b32 v84, 0xffff0000, v84
            v_lshlrev_b32 v87, 16, v{xr}
            v_and_b32 v85, 0xffff0000, v{xr}
            v_add_f32 v86, v86, v87
            v_add_f32 v84, v84, v85
            v_cvt_pk_bf16_f32 v{88 + 2*na + p}, v86, v84
            """)
    if opts.get("hcoal", True) and opts.get("mergeux", True) and not opts.get("tags"):
        k(f"""
        ds_write_b64 v12, v[88:89] offset:{XL}
        ds_write_b64 v12, v[90:91] offset:{XL + 2048}
        v_lshlrev_b32 v13, 4, v0
        s_lshl_b32 s25, s16, 12
        s_add_u32 s25, s25, {WS_HT}
        s_waitcnt lgkmcnt(0)
        s_barrier
        ds_read_b128 v[88:91], v13 offset:{XL}
        s_waitcnt lgkmcnt(0)
        buffer_store_dwordx4 v[88:91], v13, s[44:47], s25 offen
        """)
    else:
        k(f"""
        s_add_u32 s25, s24, {WS_HT}
        buffer_store_dwordx2 v[88:89], v6, s[44:47], s25 offen
        buffer_store_dwordx2 v[90:91], v6, s[44:47], s25 offen offset:2048
        """)

def nb_of(opts): return 288 if (opts or {}).get("bsplit") else 144
def gen_ka(name="ka_kernel", opts=None):
    opts = opts or {}
    NB = nb_of(opts)
    k = K(name)
    if opts.get("selfpf", True):
        k(f"""
        s_getpc_b64 s[4:5]
        L{name}_pc0:
        v_lshlrev_b32 v1, 7, v0
        v_min_u32 v1, {opts.get("selfpf_bytes", 14336) - 128}, v1
        global_load_dword v127, v1, s[4:5]
        """)
    k(f"""
    s_cmp_ge_u32 s2, {NP+NV+NB}
    s_cbranch_scc1 L{name}_end
    s_cmp_ge_u32 s2, {NP+NV}
    s_cbranch_scc1 L{name}_B
    s_cmp_ge_u32 s2, {NP}
    s_cbranch_scc1 L{name}_V
    """)
    role_P(k, name, opts)
    k.label(f"L{name}_B")
    role_B(k, name, opts)
    k.label(f"L{name}_V")
    role_V(k, name, opts)
    k.label(f"L{name}_end")
    k("s_endpgm")
    return k
if __name__ == "__main__":
    from asmlib import build_file
    k = gen_ka()
    build_file("mb/ka.s", [(k, 128, 80, 128)], [("ka_kernel", NP+NV+NB, 256, KA_LDS)])
```

```python
from asmlib import K
from gen_k3 import WS_HT, WS_PART, WS_END
PSZ = 2048*576*2
def gen_k4(name="k4_kernel", v2=False, nine=False, remap=True, noh=False, smpf=0):
    k = K(name)
    if nine and remap:
        QMAP = """s_lshr_b32 s17, s2, 2
    s_mul_i32 s17, s17, 36
    s_lshl_b32 s18, s16, 2
    s_add_u32 s17, s17, s18
    s_and_b32 s18, s2, 3
    s_add_u32 s17, s17, s18"""
    else:
        QMAP = f"""s_mul_i32 s17, s2, {9 if nine else 4}
    s_add_u32 s17, s17, s16"""
    k(f"""
    s_getpc_b64 s[4:5]
    v_lshlrev_b32 v1, 7, v0
    v_min_u32 v1, 3328, v1
    global_load_dword v100, v1, s[4:5]
    s_cmp_ge_u32 s2, {256 if nine else 576}
    s_cbranch_scc1 L{name}_end
    s_load_dwordx2 s[4:5], s[0:1], 88          ; out
    s_load_dwordx2 s[6:7], s[0:1], 104         ; ws
    v_lshrrev_b32 v1, 6, v0
    v_and_b32 v2, 63, v0                       ; lane
    s_nop 0
    v_readfirstlane_b32 s16, v1
    {QMAP}
    s_mul_hi_u32 s18, s17, 119304648           ; rowblk = q/36
    s_mul_i32 s19, s18, 36
    s_sub_u32 s19, s17, s19                    ; rem
    s_waitcnt lgkmcnt(0)
    s_mov_b32 s8, s6
    s_mov_b32 s9, s7
    s_mov_b32 s10, {WS_END}
    s_mov_b32 s11, 0x20000
    s_mov_b32 s12, s4
    s_mov_b32 s13, s5
    s_mov_b32 s14, {PSZ}
    s_mov_b32 s15, 0x20000
    v_lshlrev_b32 v3, 4, v2                    ; lane*16
    s_lshl_b32 s20, s17, 10
    s_add_u32 s20, s20, {WS_PART}
    """)
    if smpf:
        k(f"s_add_u32 s26, s6, s20\ns_addc_u32 s27, s7, 0\ns_add_u32 s26, s26, {(16-smpf)*PSZ}\ns_addc_u32 s27, s27, 0")
    def smbatch(jj):
        for i in range(8): k(f"s_load_dword s{28+ (8*(jj&1)) + i}, s[26:27], {i*128}")
        k(f"s_add_u32 s26, s26, {PSZ}\ns_addc_u32 s27, s27, 0")
    if smpf: smbatch(0)
    for j in range(16 - smpf):
        k(f"buffer_load_dwordx4 v[{16+4*j}:{16+4*j+3}], v3, s[8:11], s20 offen")
        if j < 15: k(f"s_add_u32 s20, s20, {PSZ}")
    for jj in range(1, smpf):
        k("s_waitcnt lgkmcnt(0)")
        smbatch(jj)
    if smpf: k("s_waitcnt lgkmcnt(0)")
    for j in range(16 - smpf, 16):
        k(f"buffer_load_dwordx4 v[{16+4*j}:{16+4*j+3}], v3, s[8:11], s20 offen")
        if j < 15: k(f"s_add_u32 s20, s20, {PSZ}")
    if not v2:
        k(f"""
        v_and_b32 v4, 31, v2
        v_lshrrev_b32 v5, 5, v2
        v_lshlrev_b32 v6, 15, v5                   ; 8*(lane>>5)*4096
        v_lshl_add_u32 v6, v4, 1, v6               ; + (lane&31)*2
        s_lshl_b32 s21, s18, 6                     ; 32*rowblk*2
        s_lshl_b32 s22, s19, 16                    ; 16*rem*4096
        s_add_u32 s21, s21, s22
        s_add_u32 s21, s21, {WS_HT}
        """)
    else:
        k(f"""
        v_and_b32 v4, 15, v2
        v_bfe_u32 v5, v2, 4, 1
        v_lshlrev_b32 v5, 1, v5
        v_lshrrev_b32 v8, 5, v2
        v_add_u32 v5, v5, v8                       ; (n offset)/8 = 2*(R&1) + (R>>1)
        v_lshlrev_b32 v6, 15, v5
        v_lshl_add_u32 v6, v4, 1, v6
        s_and_b32 s24, s19, 1                      ; jm
        s_lshr_b32 s25, s19, 1
        s_lshl_b32 s21, s18, 6
        s_lshl_b32 s22, s24, 5
        s_add_u32 s21, s21, s22
        s_lshl_b32 s22, s25, 17                    ; 32*blk*4096
        s_add_u32 s21, s21, s22
        s_add_u32 s21, s21, {WS_HT}
        """)
    for i in range(8):
        if noh: break
        k(f"buffer_load_ushort v{92+i}, v6, s[8:11], s21 offen")
        if i < 7: k("s_add_u32 s21, s21, 4096")
    if not v2:
        k(f"""
        v_mul_u32_u24 v7, 1152, v4
        v_lshl_add_u32 v7, v5, 4, v7
        s_mul_i32 s23, s18, {32*1152}
        s_lshl_b32 s24, s19, 5
        s_add_u32 s23, s23, s24
        """)
    else:
        k(f"""
        v_mul_u32_u24 v7, 1152, v4
        v_lshl_add_u32 v7, v5, 4, v7
        s_mul_i32 s23, s18, {32*1152}
        s_mul_i32 s24, s24, {16*1152}
        s_add_u32 s23, s23, s24
        s_lshl_b32 s25, s25, 6
        s_add_u32 s23, s23, s25
        """)
    for j in range(16):
        k(f"s_waitcnt vmcnt({min(63, 15 - j + (0 if noh else 8))})")
        for d in range(4):
            r = 16 + 4*j + d
            if j == 0:
                k(f"v_lshlrev_b32 v{80+2*d}, 16, v{r}")
                k(f"v_and_b32 v{81+2*d}, 0xffff0000, v{r}")
            else:
                k(f"v_lshlrev_b32 v12, 16, v{r}")
                k(f"v_and_b32 v13, 0xffff0000, v{r}")
                k(f"v_add_f32 v{80+2*d}, v{80+2*d}, v12")
                k(f"v_add_f32 v{81+2*d}, v{81+2*d}, v13")
    k("s_waitcnt vmcnt(0)")
    for d in range(4):
        if noh:
            k(f"v_cvt_pk_bf16_f32 v{88+d}, v{80+2*d}, v{81+2*d}")
            continue
        k(f"""
        v_cvt_pk_bf16_f32 v12, v{80+2*d}, v{81+2*d}
        v_lshlrev_b32 v13, 16, v12
        v_and_b32 v12, 0xffff0000, v12
        v_lshlrev_b32 v14, 16, v{92+2*d}
        v_lshlrev_b32 v15, 16, v{93+2*d}
        v_add_f32 v13, v13, v14
        v_add_f32 v12, v12, v15
        v_cvt_pk_bf16_f32 v{88+d}, v13, v12
        """)
    k(f"""
    buffer_store_dwordx4 v[88:91], v7, s[12:15], s23 offen
    s_waitcnt vmcnt(0)
    """)
    k.label(f"L{name}_end")
    k("s_endpgm")
    return k
```

```python
from asmlib import K
from gen_k3 import WS_XT, WS_UT, WS_HT, WS_CS, WS_END, f2u
from gen_k3 import WS_KG, WS_SC
WS_FL = WS_KG
from gen_k3 import WS_PART
WS_UX2 = WS_PART
TAGX = 0x5bd1e995
WS_UX = WS_XT
from gen_k1 import srd, bf16r, cmul, LOG2E
import gen_k1, math
NP, NV, NB = 256, 576, 144
KA_LDS = 40960
TP = 544; TA = 0; TB = 16*TP; KT = TB + 41*TP
UZ = 2560; UD = UZ; KB = UD + 5120; CS = 4416; RED = KB; XL = 32768
assert KB + 4*CS <= KA_LDS and RED + 24576 <= KA_LDS and KT + 2101*4 <= KA_LDS

def role_P(k, name, opts):
    PITCH = 1216
    R = opts.get("R", 8)
    PEXIT = ""
    if opts.get("pwd") or opts.get("pout"):
        PEXIT = "v_lshlrev_b32 v96, 7, v0\n"
        if opts.get("pwd"):
            PEXIT += f"""    s_mov_b32 s44, s36
    s_mov_b32 s45, s37
    s_mov_b32 s46, {4608*1152}
    s_mov_b32 s47, 0x20000
    s_mul_i32 s48, s2, {162*128}
    v_cmp_gt_u32 vcc, 162, v0
    v_mov_b32 v97, 0x7fffffff
    s_nop 0
    v_cndmask_b32 v97, v97, v96, vcc
    buffer_load_dword v100, v97, s[44:47], s48 offen
"""
        if opts.get("pout"):
            PEXIT += f"""    s_mov_b32 s52, s38
    s_mov_b32 s53, s39
    s_mov_b32 s54, {2048*1152}
    s_mov_b32 s55, 0x20000
    s_mul_i32 s48, s2, {72*128}
    v_cmp_gt_u32 vcc, 72, v0
    v_mov_b32 v97, 0x7fffffff
    s_nop 0
    v_cndmask_b32 v97, v97, v96, vcc
    buffer_load_dword v101, v97, s[52:55], s48 offen
"""
    k(f"""
    s_setprio 3
    s_load_dwordx2 s[4:5], s[0:1], 0           ; x
    s_load_dwordx4 s[24:27], s[0:1], 96
    s_load_dwordx4 s[36:39], s[0:1], 80
    s_and_b32 s16, s2, 7
    s_lshl_b32 s16, s16, 5
    s_lshr_b32 s17, s2, 3
    s_add_u32 s16, s16, s17
    v_and_b32 v1, 63, v0                       ; lane
    v_lshrrev_b32 v2, 6, v0                    ; wave
    v_lshrrev_b32 v3, 5, v1                    ; r (0..1)
    v_and_b32 v4, 31, v1                       ; c
    v_lshl_add_u32 v5, v2, 1, v3
    v_mul_u32_u24 v6, 1152, v5
    v_lshl_add_u32 v6, v4, 4, v6               ; row*1152 + c*16
    s_mul_i32 s17, s16, {8*1152}
    v_cmp_gt_u32 vcc, 8, v4
    v_add_u32 v7, 1024, v6
    v_mov_b32 v8, 0x7fffffff
    v_cndmask_b32 v7, v8, v7, vcc
    v_readfirstlane_b32 s21, v2
    s_waitcnt lgkmcnt(0)
    """)
    srd(k, 8, 4, 5, 2048*1152)
    X = 16
    for i in range(2):
        k(f"buffer_load_dwordx4 v[{X+4*i}:{X+4*i+3}], v6, s[8:11], s17 offen offset:{512*i}")
    k(f"buffer_load_dwordx4 v[{X+8}:{X+11}], v7, s[8:11], s17 offen")
    srd(k, 12, 26, 27, WS_END); srd(k, 28, 24, 25, 256)
    NPT = 0
    if opts.get("ptouch"):
        NPT = 5
        k(f"""
        s_load_dwordx4 s[36:39], s[0:1], 64
        s_load_dwordx4 s[40:43], s[0:1], 80
        v_lshlrev_b32 v96, {opts.get("ptouch_shift", 21)}, v1
        buffer_load_dword v97, v96, s[12:15], 0 offen
        s_waitcnt lgkmcnt(0)
        s_mov_b32 s44, s36
        s_mov_b32 s45, s37
        s_mov_b32 s46, {576*9216}
        s_mov_b32 s47, 0x20000
        buffer_load_dword v100, v96, s[44:47], 0 offen
        s_mov_b32 s48, s38
        s_mov_b32 s49, s39
        s_mov_b32 s50, {576*9216}
        s_mov_b32 s51, 0x20000
        buffer_load_dword v101, v96, s[48:51], 0 offen
        s_mov_b32 s52, s40
        s_mov_b32 s53, s41
        s_mov_b32 s54, {576*9216}
        s_mov_b32 s55, 0x20000
        buffer_load_dword v102, v96, s[52:55], 0 offen
        s_mov_b32 s56, s42
        s_mov_b32 s57, s43
        s_mov_b32 s58, {2048*1152}
        s_mov_b32 s59, 0x20000
        buffer_load_dword v103, v96, s[56:59], 0 offen
        """)
    k(f"""
    s_or_b32 s34, s21, s2
    s_cmp_lg_u32 s34, 0
    s_cbranch_scc1 L{name}_P_nononce
    s_memrealtime s[32:33]
    s_waitcnt lgkmcnt(0)
    s_or_b32 s32, s32, 1
    v_mov_b32 v12, s32
    v_mov_b32 v13, 0
    buffer_store_dword v12, v13, s[28:31], 0 offen sc1
    """)
    k.label(f"L{name}_P_nononce")
    k(f"""
    s_cmp_ge_u32 s2, 16
    s_cbranch_scc1 L{name}_P_nozero
    v_mov_b32 v12, 0
    v_and_b32 v13, 31, v0
    v_lshlrev_b32 v13, 2, v13
    s_lshl_b32 s34, s2, 7
    s_add_u32 s34, s34, {WS_SC}
    buffer_store_dword v12, v13, s[12:15], s34 offen
    """)
    k.label(f"L{name}_P_nozero")
    F = 40
    UOFF = 8*PITCH
    P64 = opts.get("pair64", False)
    PBASE = (f"s_lshr_b32 s18, s16, 1\n    s_mul_i32 s18, s18, {576*64}\n    s_and_b32 s22, s16, 1\n    s_lshl_b32 s22, s22, 5\n    s_add_u32 s18, s18, s22" if P64
             else f"s_mul_i32 s18, s16, {576*32}")
    DSTEP = 64 if P64 else 32
    k(f"""
    v_mul_u32_u24 v6, {PITCH}, v5
    v_lshl_add_u32 v6, v4, 4, v6
    v_mov_b32 v9, 0x3f803f80
    v_mov_b32 v10, 0
    v_mov_b32 v11, 0
    v_mov_b32 v99, 0
    s_waitcnt vmcnt({NPT})
    """)
    if opts.get("tags"): k("buffer_load_dword v98, v99, s[28:31], 0 offen sc1")
    for i in range(12):
        k(f"v_dot2_f32_bf16 v{10+(i&1)}, v{X+i}, v9, v{10+(i&1)}")
        k(f"v_lshlrev_b32 v{F+2*i}, 16, v{X+i}")
        k(f"v_and_b32 v{F+2*i+1}, 0xffff0000, v{X+i}")
    for i in range(2): k(f"ds_write_b128 v6, v[{X+4*i}:{X+4*i+3}] offset:{512*i}")
    k("s_nop 0\nv_add_f32 v10, v10, v11")
    def reduce32(reg):
        k(f"""
        s_nop 1
        v_add_f32_dpp v{reg}, v{reg}, v{reg} quad_perm:[1,0,3,2] row_mask:0xf bank_mask:0xf
        s_nop 1
        v_add_f32_dpp v{reg}, v{reg}, v{reg} quad_perm:[2,3,0,1] row_mask:0xf bank_mask:0xf
        s_nop 1
        v_add_f32_dpp v{reg}, v{reg}, v{reg} row_half_mirror row_mask:0xf bank_mask:0xf
        s_nop 1
        v_add_f32_dpp v{reg}, v{reg}, v{reg} row_mirror row_mask:0xf bank_mask:0xf
        v_mov_b32 v14, v{reg}
        s_nop 1
        v_permlane16_swap_b32 v{reg}, v14
        s_nop 1
        v_add_f32 v{reg}, v{reg}, v14
        """)
    k("v_mov_b32 v14, v10") if False else None
    reduce32(10)
    k(f"v_mul_f32 v10, {f2u(1.0/576):#x}, v10        ; mean")
    k("v_mov_b32 v11, 0\nv_mov_b32 v12, 0\nv_mov_b32 v15, 0")
    for i in range(16):
        t = 13 + (i & 1)
        k(f"v_sub_f32 v{t}, v{F+i}, v10")
        k(f"v_fmac_f32 v{11+(i&1)}, v{t}, v{t}")
    for i in range(16, 24):
        t = 13 + (i & 1)
        k(f"v_sub_f32 v{t}, v{F+i}, v10")
        k(f"v_fmac_f32 v15, v{t}, v{t}")
    k("""
    v_add_f32 v11, v11, v12
    v_cndmask_b32 v15, 0, v15, vcc
    v_add_f32 v11, v11, v15
    """)
    reduce32(11)
    k(f"""
    v_mul_f32 v11, {f2u(1.0/576):#x}, v11        ; var
    v_cvt_pk_bf16_f32 v12, v10, v11
    v_lshlrev_b32 v10, 16, v12                   ; m (bf16)
    v_and_b32 v11, 0xffff0000, v12
    v_add_f32 v11, {f2u(1e-5):#x}, v11
    """)
    bf16r(k, 11, 11)
    k("v_sqrt_f32 v11, v11\ns_nop 0")
    bf16r(k, 11, 11)
    k("v_rcp_f32 v11, v11\ns_nop 0")
    U = 80
    for i in range(12):
        a_, b_ = F+2*i, F+2*i+1
        t = 13 + (i & 1)
        k(f"""
        v_sub_f32 v{a_}, v{a_}, v10
        v_sub_f32 v{b_}, v{b_}, v10
        v_cvt_pk_bf16_f32 v{t}, v{a_}, v{b_}
        v_lshlrev_b32 v{a_}, 16, v{t}
        v_and_b32 v{b_}, 0xffff0000, v{t}
        v_mul_f32 v{a_}, v{a_}, v11
        v_mul_f32 v{b_}, v{b_}, v11
        v_cvt_pk_bf16_f32 v{t}, v{a_}, v{b_}
        v_lshlrev_b32 v{a_}, 16, v{t}
        v_and_b32 v{b_}, 0xffff0000, v{t}
        v_cvt_pk_f16_f32 v{U+i}, v{a_}, v{b_}
        """)
        if i % 4 == 3 and i < 8:
            k(f"ds_write_b128 v6, v[{U+i-3}:{U+i}] offset:{UOFF+512*(i//4)}")
    k("s_and_saveexec_b64 s[18:19], vcc")
    k(f"ds_write_b128 v6, v[{X+8}:{X+11}] offset:1024")
    k(f"ds_write_b128 v6, v[{U+8}:{U+11}] offset:{UOFF+1024}")
    k("s_mov_b64 exec, s[18:19]")
    if opts.get("tags"):
        k(f"""
        v_bfe_u32 v6, v1, 2, 2                       ; r'
        v_bfe_u32 v7, v1, 4, 1                       ; g&1
        v_lshl_add_u32 v6, v7, 2, v6                 ; row
        v_mul_u32_u24 v6, {PITCH}, v6
        v_and_b32 v7, 3, v1
        v_lshl_add_u32 v6, v7, 3, v6                 ; + 8c
        v_lshrrev_b32 v7, 5, v1                      ; g>>1 : 0 -> u, 1 -> x
        v_xor_b32 v7, 1, v7
        v_mul_u32_u24 v7, {UOFF}, v7
        v_add_u32 v6, v6, v7
        v_lshl_add_u32 v6, v2, 5, v6                 ; + wave*16 d*2B
        v_and_b32 v9, 15, v1
        v_lshl_add_u32 v9, v2, 4, v9                 ; d local
        v_lshlrev_b32 v9, 6, v9                      ; d*64
        v_lshrrev_b32 v7, 4, v1
        v_lshl_add_u32 v8, v7, 4, v9                 ; + g*16
        s_mul_i32 s18, s16, {576*64}
        s_add_u32 s18, s18, {WS_UX2}
        s_mov_b32 s22, 0
        """)
        k.label(f"L{name}_P_nc")
        k(f"""
        s_waitcnt vmcnt(0)
        v_readfirstlane_b32 s23, v98
        s_cmp_lg_u32 s23, 0
        s_cbranch_scc1 L{name}_P_nok
        s_add_u32 s22, s22, 1
        s_cmp_lt_u32 s22, 0x40000
        s_cbranch_scc0 L{name}_P_nok
        s_sleep 2
        buffer_load_dword v98, v99, s[28:31], 0 offen sc1
        s_branch L{name}_P_nc
        """)
        k.label(f"L{name}_P_nok")
        k(f"s_xor_b32 s24, s23, {TAGX:#x}")
        for it in range(9):
            k(f"v_mov_b32 v{18+4*it}, s23\nv_mov_b32 v{19+4*it}, s24")
        k("s_waitcnt lgkmcnt(0)\ns_barrier")
        for it in range(9):
            k(f"ds_read_b64_tr_b16 v[{16+4*it}:{17+4*it}], v6 offset:{it*128}")
        for it in range(9):
            k(f"s_waitcnt lgkmcnt({8-it})")
            k(f"buffer_store_dwordx4 v[{16+4*it}:{19+4*it}], v8, s[12:15], s18 offen sc1")
            if it < 8: k(f"s_add_u32 s18, s18, {64*64}")
        k(f"s_branch L{name}_end")
        k("")
        return
    k(f"""
    v_bfe_u32 v6, v1, 2, 2                       ; r'
    v_mul_u32_u24 v6, {PITCH}, v6
    v_and_b32 v7, 3, v1
    v_lshl_add_u32 v6, v7, 3, v6                 ; + 8c
    v_bfe_u32 v7, v1, 4, 1                       ; array
    v_xor_b32 v8, 1, v7
    v_mul_u32_u24 v8, {UOFF}, v8
    v_add_u32 v6, v6, v8
    v_lshrrev_b32 v8, 5, v1                      ; dsub
    v_lshl_add_u32 v6, v8, 5, v6                 ; + dsub*16 d*2B
    v_lshl_add_u32 v6, v2, 6, v6                 ; + wave*32 d*2B
    v_and_b32 v9, 15, v1
    v_lshl_add_u32 v9, v8, 4, v9
    v_lshl_add_u32 v9, v2, 5, v9                 ; d local
    v_lshlrev_b32 v9, {6 if P64 else 5}, v9                      ; d*32 (d*64)
    v_lshl_add_u32 v8, v7, 4, v9                 ; + array*16
    {PBASE}
    s_add_u32 s18, s18, {WS_UX}
    v_mov_b32 v13, 0
    s_waitcnt lgkmcnt(0)
    s_barrier
    """)
    for it in range(5):
        Rg = 16 + 4*it
        if it == 4: k(f"s_cmp_ge_u32 s21, 2\ns_cbranch_scc1 L{name}_P_st")
        k(f"ds_read_b64_tr_b16 v[{Rg}:{Rg+1}], v6 offset:{it*256}")
        k(f"ds_read_b64_tr_b16 v[{Rg+2}:{Rg+3}], v6 offset:{it*256 + 4*PITCH}")
    k("s_waitcnt lgkmcnt(0)")
    k(f"s_add_u32 s22, s18, {4*128*DSTEP}")
    k(f"buffer_store_dwordx4 v[32:35], v8, s[12:15], s22 offen sc1")
    k.label(f"L{name}_P_st")
    for it in range(4):
        Rg = 16 + 4*it
        k(f"s_waitcnt lgkmcnt({max(0, 6 - 2*it)})" if False else "s_waitcnt lgkmcnt(0)") if it == 0 else None
        k(f"buffer_store_dwordx4 v[{Rg}:{Rg+3}], v8, s[12:15], s18 offen sc1")
        k(f"s_add_u32 s18, s18, {128*DSTEP}")
    k.label(f"L{name}_P_sig")
    k(f"""
    s_cmp_lg_u32 s21, 0
    s_cbranch_scc1 L{name}_P_w
    s_mov_b32 s22, 0
    """)
    k.label(f"L{name}_P_np")
    k(f"""
    buffer_load_dword v12, v13, s[28:31], 0 offen sc1
    s_waitcnt vmcnt(0)
    v_readfirstlane_b32 s23, v12
    s_cmp_lg_u32 s23, 0
    s_cbranch_scc1 L{name}_P_w
    s_add_u32 s22, s22, 1
    s_cmp_lt_u32 s22, 0x40000
    s_cbranch_scc0 L{name}_P_w
    s_sleep 4
    s_branch L{name}_P_np
    """)
    k.label(f"L{name}_P_w")
    k(f"""
    s_waitcnt vmcnt(0)
    s_barrier
    s_cmp_lg_u32 s21, 0
    s_cbranch_scc1 L{name}_P_pf
    v_cmp_gt_u32 vcc, {R}, v1
    s_and_saveexec_b64 s[18:19], vcc
    v_lshlrev_b32 v6, 10, v1                     ; replica*1024
    s_lshl_b32 s22, s2, 2
    s_add_u32 s22, s22, {WS_FL}
    buffer_store_dword v12, v6, s[12:15], s22 offen sc1
    s_mov_b64 exec, s[18:19]
    L{name}_P_pf:
    {PEXIT}
    s_branch L{name}_end
    """)

def role_P16(k, name, opts):
    PITCH = 1216
    R = opts.get("R", 8)
    k(f"""
    s_setprio 3
    s_load_dwordx2 s[4:5], s[0:1], 0           ; x
    s_load_dwordx4 s[24:27], s[0:1], 96
    s_and_b32 s16, s2, 7
    s_lshl_b32 s16, s16, 4
    s_lshr_b32 s17, s2, 3
    s_add_u32 s16, s16, s17
    v_and_b32 v1, 63, v0                       ; lane
    v_lshrrev_b32 v2, 6, v0                    ; wave
    v_lshrrev_b32 v3, 4, v1                    ; r (0..3)
    v_and_b32 v4, 15, v1                       ; c
    v_lshl_add_u32 v5, v2, 2, v3
    v_mul_u32_u24 v6, 1152, v5
    v_lshl_add_u32 v6, v4, 4, v6               ; row*1152 + c*16
    s_mul_i32 s17, s16, {16*1152}
    v_cmp_gt_u32 vcc, 8, v4
    v_add_u32 v7, 1024, v6
    v_mov_b32 v8, 0x7fffffff
    v_cndmask_b32 v7, v8, v7, vcc
    v_readfirstlane_b32 s21, v2
    s_waitcnt lgkmcnt(0)
    """)
    srd(k, 8, 4, 5, 2048*1152)
    X = 16
    for i in range(4):
        k(f"buffer_load_dwordx4 v[{X+4*i}:{X+4*i+3}], v6, s[8:11], s17 offen offset:{256*i}")
    k(f"buffer_load_dwordx4 v[{X+16}:{X+19}], v7, s[8:11], s17 offen")
    srd(k, 12, 26, 27, WS_END); srd(k, 28, 24, 25, 256)
    k(f"""
    s_or_b32 s34, s21, s2
    s_cmp_lg_u32 s34, 0
    s_cbranch_scc1 L{name}_P_nononce
    s_memrealtime s[32:33]
    s_waitcnt lgkmcnt(0)
    s_or_b32 s32, s32, 1
    v_mov_b32 v12, s32
    v_mov_b32 v13, 0
    buffer_store_dword v12, v13, s[28:31], 0 offen sc1
    """)
    k.label(f"L{name}_P_nononce")
    F = 40; UOFF = 16*PITCH
    k(f"""
    v_mul_u32_u24 v6, {PITCH}, v5
    v_lshl_add_u32 v6, v4, 4, v6
    v_mov_b32 v9, 0x3f803f80
    v_mov_b32 v10, 0
    v_mov_b32 v11, 0
    s_waitcnt vmcnt(0)
    """)
    for i in range(20):
        k(f"v_dot2_f32_bf16 v{10+(i&1)}, v{X+i}, v9, v{10+(i&1)}")
        k(f"v_lshlrev_b32 v{F+2*i}, 16, v{X+i}")
        k(f"v_and_b32 v{F+2*i+1}, 0xffff0000, v{X+i}")
    for i in range(4): k(f"ds_write_b128 v6, v[{X+4*i}:{X+4*i+3}] offset:{256*i}")
    k("v_add_f32 v10, v10, v11")
    def reduce16(reg):
        k(f"""
        s_nop 1
        v_add_f32_dpp v{reg}, v{reg}, v{reg} quad_perm:[1,0,3,2] row_mask:0xf bank_mask:0xf
        s_nop 1
        v_add_f32_dpp v{reg}, v{reg}, v{reg} quad_perm:[2,3,0,1] row_mask:0xf bank_mask:0xf
        s_nop 1
        v_add_f32_dpp v{reg}, v{reg}, v{reg} row_half_mirror row_mask:0xf bank_mask:0xf
        s_nop 1
        v_add_f32_dpp v{reg}, v{reg}, v{reg} row_mirror row_mask:0xf bank_mask:0xf
        """)
    reduce16(10)
    k(f"v_mul_f32 v10, {f2u(1.0/576):#x}, v10        ; mean")
    k("v_mov_b32 v11, 0\nv_mov_b32 v12, 0\nv_mov_b32 v15, 0")
    for i in range(32):
        t = 13 + (i & 1)
        k(f"v_sub_f32 v{t}, v{F+i}, v10")
        k(f"v_fmac_f32 v{11+(i&1)}, v{t}, v{t}")
    for i in range(32, 40):
        t = 13 + (i & 1)
        k(f"v_sub_f32 v{t}, v{F+i}, v10")
        k(f"v_fmac_f32 v15, v{t}, v{t}")
    k("""
    v_add_f32 v11, v11, v12
    v_cndmask_b32 v15, 0, v15, vcc
    v_add_f32 v11, v11, v15
    """)
    reduce16(11)
    k(f"""
    v_mul_f32 v11, {f2u(1.0/576):#x}, v11        ; var
    v_cvt_pk_bf16_f32 v12, v10, v11
    v_lshlrev_b32 v10, 16, v12                   ; m (bf16)
    v_and_b32 v11, 0xffff0000, v12
    v_add_f32 v11, {f2u(1e-5):#x}, v11
    """)
    bf16r(k, 11, 11)
    k("v_sqrt_f32 v11, v11\ns_nop 0")
    bf16r(k, 11, 11)
    k("v_rcp_f32 v11, v11\ns_nop 0")
    U = 80
    for i in range(20):
        a_, b_ = F+2*i, F+2*i+1
        t = 13 + (i & 1)
        k(f"""
        v_sub_f32 v{a_}, v{a_}, v10
        v_sub_f32 v{b_}, v{b_}, v10
        v_cvt_pk_bf16_f32 v{t}, v{a_}, v{b_}
        v_lshlrev_b32 v{a_}, 16, v{t}
        v_and_b32 v{b_}, 0xffff0000, v{t}
        v_mul_f32 v{a_}, v{a_}, v11
        v_mul_f32 v{b_}, v{b_}, v11
        v_cvt_pk_bf16_f32 v{t}, v{a_}, v{b_}
        v_lshlrev_b32 v{a_}, 16, v{t}
        v_and_b32 v{b_}, 0xffff0000, v{t}
        v_cvt_pk_f16_f32 v{U+i}, v{a_}, v{b_}
        """)
        if i % 4 == 3 and i < 16:
            k(f"ds_write_b128 v6, v[{U+i-3}:{U+i}] offset:{UOFF+256*(i//4)}")
    k("s_and_saveexec_b64 s[18:19], vcc")
    k(f"ds_write_b128 v6, v[{X+16}:{X+19}] offset:1024")
    k(f"ds_write_b128 v6, v[{U+16}:{U+19}] offset:{UOFF+1024}")
    k("s_mov_b64 exec, s[18:19]")
    k(f"""
    v_bfe_u32 v6, v1, 2, 2                       ; r'
    v_and_b32 v7, 1, v3
    v_lshl_add_u32 v6, v7, 3, v6
    v_mul_u32_u24 v6, {PITCH}, v6
    v_and_b32 v7, 3, v1
    v_lshl_add_u32 v6, v7, 3, v6                 ; + 8c
    v_lshrrev_b32 v7, 1, v3                      ; 0: u, 1: x
    v_xor_b32 v7, 1, v7
    v_mul_u32_u24 v7, {UOFF}, v7
    v_add_u32 v6, v6, v7
    v_lshl_add_u32 v6, v2, 5, v6                 ; + wave*16 d*2B
    v_and_b32 v7, 15, v1
    v_lshl_add_u32 v7, v2, 4, v7                 ; d local
    v_lshlrev_b32 v8, 6, v7                      ; d*64
    v_lshl_add_u32 v8, v3, 4, v8                 ; + piece*16
    s_mul_i32 s18, s16, {576*64}
    s_add_u32 s18, s18, {WS_UX}
    v_mov_b32 v13, 0
    s_waitcnt lgkmcnt(0)
    s_barrier
    """)
    for it in range(9):
        Rg = 16 + 4*it
        k(f"ds_read_b64_tr_b16 v[{Rg}:{Rg+1}], v6 offset:{it*128}")
        k(f"ds_read_b64_tr_b16 v[{Rg+2}:{Rg+3}], v6 offset:{it*128 + 4*PITCH}")
        if it == 6: k("s_waitcnt lgkmcnt(8)")
    for it in range(9):
        Rg = 16 + 4*it
        k(f"s_waitcnt lgkmcnt({min(15, 2*(8-it))})")
        k(f"buffer_store_dwordx4 v[{Rg}:{Rg+3}], v8, s[12:15], s18 offen sc1")
        if it < 8: k(f"s_add_u32 s18, s18, {64*64}")
    k(f"""
    s_cmp_lg_u32 s21, 0
    s_cbranch_scc1 L{name}_P_w
    s_mov_b32 s22, 0
    """)
    k.label(f"L{name}_P_np")
    k(f"""
    buffer_load_dword v12, v13, s[28:31], 0 offen sc1
    s_waitcnt vmcnt(0)
    v_readfirstlane_b32 s23, v12
    s_cmp_lg_u32 s23, 0
    s_cbranch_scc1 L{name}_P_w
    s_add_u32 s22, s22, 1
    s_cmp_lt_u32 s22, 0x40000
    s_cbranch_scc0 L{name}_P_w
    s_sleep 4
    s_branch L{name}_P_np
    """)
    k.label(f"L{name}_P_w")
    k(f"""
    s_waitcnt vmcnt(0)
    s_barrier
    s_cmp_lg_u32 s21, 0
    s_cbranch_scc1 L{name}_end
    v_cmp_gt_u32 vcc, {R}, v1
    s_and_saveexec_b64 s[18:19], vcc
    v_lshlrev_b32 v6, 10, v1                     ; replica*1024
    s_lshl_b32 s22, s2, 2
    s_add_u32 s22, s22, {WS_FL}
    buffer_store_dword v12, v6, s[12:15], s22 offen sc1
    s_branch L{name}_end
    """)

def poll_flags(k, name, tag, srd_dbg, srd_ws, sleep, vA, vB, sT, R=8, pre=None, nfl=256):
    k(f"""
    v_mov_b32 v{vB}, 0
    s_mov_b32 s{sT}, 0
    """)
    if pre is not None:
        k(f"""
        s_waitcnt vmcnt(0)
        v_readfirstlane_b32 s{sT+1}, v{pre}
        s_cmp_lg_u32 s{sT+1}, 0
        s_cbranch_scc1 L{name}_{tag}_gotn
        """)
    k.label(f"L{name}_{tag}_np")
    k(f"""
    buffer_load_dword v{vA}, v{vB}, s[{srd_dbg}:{srd_dbg+3}], 0 offen sc1
    s_waitcnt vmcnt(0)
    v_readfirstlane_b32 s{sT+1}, v{vA}
    s_cmp_lg_u32 s{sT+1}, 0
    s_cbranch_scc1 L{name}_{tag}_gotn
    s_add_u32 s{sT}, s{sT}, 1
    s_cmp_lt_u32 s{sT}, 0x40000
    s_cbranch_scc0 L{name}_{tag}_gotn
    s_sleep 4
    s_branch L{name}_{tag}_np
    """)
    k.label(f"L{name}_{tag}_gotn")
    k(f"""
    s_and_b32 s{sT+2}, s2, {R-1}
    s_lshl_b32 s{sT+2}, s{sT+2}, 10
    s_add_u32 s{sT+2}, s{sT+2}, {WS_FL}
    v_lshlrev_b32 v{vB}, {4 if nfl == 256 else 3}, v1
    """)
    k.label(f"L{name}_{tag}_poll")
    if nfl == 256:
        k(f"""
        buffer_load_dwordx4 v[{vA}:{vA+3}], v{vB}, s[{srd_ws}:{srd_ws+3}], s{sT+2} offen sc1
        s_waitcnt vmcnt(0)
        v_cmp_ne_u32 vcc, s{sT+1}, v{vA}
        v_cmp_ne_u32 s[{sT+4}:{sT+5}], s{sT+1}, v{vA+1}
        s_or_b64 vcc, vcc, s[{sT+4}:{sT+5}]
        v_cmp_ne_u32 s[{sT+4}:{sT+5}], s{sT+1}, v{vA+2}
        s_or_b64 vcc, vcc, s[{sT+4}:{sT+5}]
        v_cmp_ne_u32 s[{sT+4}:{sT+5}], s{sT+1}, v{vA+3}
        s_or_b64 vcc, vcc, s[{sT+4}:{sT+5}]
        """)
    else:
        k(f"""
        buffer_load_dwordx2 v[{vA}:{vA+1}], v{vB}, s[{srd_ws}:{srd_ws+3}], s{sT+2} offen sc1
        s_waitcnt vmcnt(0)
        v_cmp_ne_u32 vcc, s{sT+1}, v{vA}
        v_cmp_ne_u32 s[{sT+4}:{sT+5}], s{sT+1}, v{vA+1}
        s_or_b64 vcc, vcc, s[{sT+4}:{sT+5}]
        """)
    k(f"""
    s_cbranch_vccz L{name}_{tag}_go
    s_add_u32 s{sT}, s{sT}, 1
    s_cmp_lt_u32 s{sT}, 0x40000
    s_cbranch_scc0 L{name}_{tag}_go
    s_sleep {sleep}
    s_branch L{name}_{tag}_poll
    """)
    k.label(f"L{name}_{tag}_go")

def role_B(k, name, opts):
    NP = np_of(opts)
    BS = opts.get("bsplit", False)
    BHALF = "s_cmp_ge_u32 s26, 144\n    s_cselect_b32 s28, 1, 0\n    s_cselect_b32 s27, 144, 0\n    s_sub_u32 s26, s26, s27" if BS else "s_mov_b32 s28, 0"
    if opts.get("bxcd", True):
        BMAP = """s_and_b32 s18, s26, 7
    s_mul_i32 s18, s18, 9
    s_lshr_b32 s19, s26, 3
    s_cmp_ge_u32 s19, 9
    s_cselect_b32 s20, 1, 0
    s_cselect_b32 s27, 9, 0
    s_sub_u32 s19, s19, s27
    s_add_u32 s18, s18, s19                     ; cidx"""
    else:
        BMAP = """s_cmp_ge_u32 s26, 72
    s_cselect_b32 s19, 72, 0
    s_cselect_b32 s20, 1, 0
    s_sub_u32 s18, s26, s19                     ; cidx"""
    k(f"""
    s_load_dwordx4 s[4:7], s[0:1], 64
    s_load_dwordx2 s[24:25], s[0:1], 80         ; w_down
    s_load_dwordx4 s[32:35], s[0:1], 96
    s_sub_u32 s26, s2, {NP+NV}
    {BHALF}
    {BMAP}
    v_lshrrev_b32 v1, 3, v0                     ; rg
    v_and_b32 v2, 7, v0                         ; c
    v_mul_u32_u24 v3, 9216, v1
    v_lshl_add_u32 v3, v2, 4, v3
    s_waitcnt lgkmcnt(0)
    s_cmp_eq_u32 s20, 1
    s_cselect_b32 s8, s6, s4
    s_cselect_b32 s9, s7, s5
    s_mov_b32 s10, {576*9216}
    s_mov_b32 s11, 0x20000
    """)
    srd(k, 12, 34, 35, WS_END)
    if opts.get("codepf"):
        k(f"""
        s_getpc_b64 s[44:45]
        L{name}_pc:
        s_add_u32 s44, s44, k3_kernel-L{name}_pc
        s_addc_u32 s45, s45, 0
        s_lshr_b32 s46, s26, 3
        s_min_u32 s46, s46, {opts.get("codepf")-1}
        s_lshl_b32 s46, s46, 13
        v_and_b32 v60, 63, v0
        v_lshlrev_b32 v60, 7, v60
        v_add_u32 v60, s46, v60
        global_load_dword v92, v60, s[44:45]
        """)
        if opts.get("kdpf"):
            k(f"""
            s_getpc_b64 s[44:45]
            s_add_u32 s44, s44, Lkd_start@rel32@lo+4
            s_addc_u32 s45, s45, Lkd_start@rel32@hi+12
            v_and_b32 v60, 3, v0
            v_lshlrev_b32 v60, 6, v60
            global_load_dword v93, v60, s[44:45]
            """)
    if opts.get("tlbpf"):
        k(f"""
        s_and_b32 s44, s26, 7
        s_mul_i32 s44, s44, 1152
        s_lshr_b32 s45, s26, 3
        s_lshl_b32 s45, s45, 6
        s_add_u32 s44, s44, s45
        s_lshl_b32 s44, s44, 12
        s_add_u32 s44, s44, {WS_PART}
        v_and_b32 v60, 63, v0
        v_lshlrev_b32 v60, 12, v60
        buffer_load_dword v94, v60, s[12:15], s44 offen
        """)
    if opts.get("bwait", True):
        srd(k, 36, 32, 33, 256)
        k(f"v_and_b32 v1, 63, v0\nv_lshrrev_b32 v60, 6, v0\ns_nop 0\nv_readfirstlane_b32 s40, v60\ns_nop 3\ns_cmp_lg_u32 s40, 0\ns_cbranch_scc1 L{name}_B_nopoll")
        if opts.get("vdone"):
            k(f"""
            v_mov_b32 v64, 0
            s_mov_b32 s41, 0
            """)
            k.label(f"L{name}_Bv_nc")
            k(f"""
            buffer_load_dword v60, v64, s[36:39], 0 offen sc1
            s_waitcnt vmcnt(0)
            v_readfirstlane_b32 s42, v60
            s_cmp_lg_u32 s42, 0
            s_cbranch_scc1 L{name}_Bv_ok
            s_add_u32 s41, s41, 1
            s_cmp_lt_u32 s41, 0x10000
            s_cbranch_scc0 L{name}_Bv_ok
            s_sleep 16
            s_branch L{name}_Bv_nc
            """)
            k.label(f"L{name}_Bv_ok")
            nv = opts["vdone"]
            k(f"""
            s_mul_i32 s43, s26, {opts.get("vdone_stride", 4)}
            v_and_b32 v64, {nv-1}, v1
            v_add_u32 v64, s43, v64
            v_min_u32 v64, 575, v64
            v_lshlrev_b32 v64, 2, v64
            s_mov_b32 s43, {WS_FL + 16384}
            """)
            k.label(f"L{name}_Bv_pl")
            k(f"""
            buffer_load_dword v60, v64, s[12:15], s43 offen sc1
            s_waitcnt vmcnt(0)
            v_cmp_ne_u32 vcc, s42, v60
            s_cbranch_vccz L{name}_Bv_go
            s_add_u32 s41, s41, 1
            s_cmp_lt_u32 s41, 0x10000
            s_cbranch_scc0 L{name}_Bv_go
            s_sleep {opts.get("bsleep", 16)}
            s_branch L{name}_Bv_pl
            """)
            k.label(f"L{name}_Bv_go")
        elif opts.get("bone"):
            k(f"""
            v_mov_b32 v64, 0
            s_mov_b32 s41, 0
            """)
            k.label(f"L{name}_B1_nc")
            k(f"""
            buffer_load_dword v60, v64, s[36:39], 0 offen sc1
            s_waitcnt vmcnt(0)
            v_readfirstlane_b32 s42, v60
            s_cmp_lg_u32 s42, 0
            s_cbranch_scc1 L{name}_B1_ok
            s_add_u32 s41, s41, 1
            s_cmp_lt_u32 s41, 0x10000
            s_cbranch_scc0 L{name}_B1_ok
            s_sleep 8
            s_branch L{name}_B1_nc
            """)
            k.label(f"L{name}_B1_ok")
            k(f"""
            s_and_b32 s43, s2, 7
            s_lshl_b32 s43, s43, 10
            s_add_u32 s43, s43, {WS_FL}
            v_and_b32 v64, {opts["bone"]-1}, v1
            s_and_b32 s44, s26, 31
            s_lshl_b32 s44, s44, 3
            v_add_u32 v64, s44, v64
            v_and_b32 v64, {np_of(opts)-1}, v64
            v_lshlrev_b32 v64, 2, v64
            """)
            k.label(f"L{name}_B1_pl")
            k(f"""
            buffer_load_dword v60, v64, s[12:15], s43 offen sc1
            s_waitcnt vmcnt(0)
            v_cmp_ne_u32 vcc, s42, v60
            s_cbranch_vccz L{name}_B1_go
            s_add_u32 s41, s41, 1
            s_cmp_lt_u32 s41, 0x10000
            s_cbranch_scc0 L{name}_B1_go
            s_sleep {opts.get("bsleep", 16)}
            s_branch L{name}_B1_pl
            """)
            k.label(f"L{name}_B1_go")
        elif not opts.get("tags"):
            poll_flags(k, name, "B", 36, 12, opts.get("bsleep", 16), 60, 64, 40, opts.get("R", 8), nfl=np_of(opts))
        else:
            k(f"""
            v_mov_b32 v64, 0
            s_mov_b32 s41, 0
            """)
            k.label(f"L{name}_B_nc")
            k(f"""
            buffer_load_dword v60, v64, s[36:39], 0 offen sc1
            s_waitcnt vmcnt(0)
            v_readfirstlane_b32 s42, v60
            s_cmp_lg_u32 s42, 0
            s_cbranch_scc1 L{name}_B_nok
            s_add_u32 s41, s41, 1
            s_cmp_lt_u32 s41, 0x10000
            s_cbranch_scc0 L{name}_B_nok
            s_sleep 8
            s_branch L{name}_B_nc
            """)
            k.label(f"L{name}_B_nok")
            k(f"""
            v_and_b32 v64, 7, v1
            v_lshlrev_b32 v64, 5, v64
            v_add_u32 v64, 31, v64                      ; rb = 31, 63, ..., 255
            v_mul_u32_u24 v64, {576*64}, v64
            s_lshl_b32 s43, s26, 8
            s_add_u32 s43, s43, {WS_UX2}
            """)
            k.label(f"L{name}_B_pl")
            k(f"""
            buffer_load_dwordx4 v[60:63], v64, s[12:15], s43 offen sc1
            s_waitcnt vmcnt(0)
            v_cmp_ne_u32 vcc, s42, v62
            s_cbranch_vccz L{name}_B_pok
            s_add_u32 s41, s41, 1
            s_cmp_lt_u32 s41, 0x10000
            s_cbranch_scc0 L{name}_B_pok
            s_sleep {opts.get("bsleep", 16)}
            s_branch L{name}_B_pl
            """)
            k.label(f"L{name}_B_pok")
        if opts.get("bprio"): k(f"s_setprio {opts['bprio']}")
        if opts.get("bdelay"): k(f"s_sleep {opts['bdelay']}")
        k.label(f"L{name}_B_nopoll")
        k("s_barrier\nv_lshrrev_b32 v1, 3, v0")
    k("s_lshl_b32 s21, s18, 7")
    NL = 9 if BS else 18
    if BS: k(f"s_mul_i32 s29, s28, {288*9216}\ns_add_u32 s21, s21, s29")
    BD = min(opts.get("bdepth", 18), NL)
    def bload(i):
        k(f"buffer_load_dwordx4 v[{16+4*i}:{16+4*i+3}], v3, s[8:11], s21 offen")
        if i < NL - 1: k(f"s_add_u32 s21, s21, {32*9216}")
    for i in range(BD): bload(i)
    NPF = 0
    if opts.get("wdpf"):
        NPF = 2
        srd(k, 28, 24, 25, 4608*1152)
        k(f"""
        s_mul_i32 s27, s26, {288*128}
        v_lshlrev_b32 v14, 7, v0
        buffer_load_dword v90, v14, s[28:31], s27 offen
        v_cmp_gt_u32 vcc, 32, v0
        v_add_u32 v15, {256*128}, v14
        v_mov_b32 v91, 0x7fffffff
        v_cndmask_b32 v15, v91, v15, vcc
        buffer_load_dword v91, v15, s[28:31], s27 offen
        """)
    for i in range(NL):
        issued = min(NL, BD + i)
        k(f"s_waitcnt vmcnt({issued - 1 - i + NPF})")
        if BD + i < NL: bload(BD + i)
        for d in range(4):
            r = 16+4*i+d
            if i == 0:
                k(f"v_lshlrev_b32 v{4+2*d}, 16, v{r}\nv_and_b32 v{5+2*d}, 0xffff0000, v{r}")
            else:
                k(f"v_lshlrev_b32 v12, 16, v{r}\nv_and_b32 v13, 0xffff0000, v{r}\nv_add_f32 v{4+2*d}, v{4+2*d}, v12\nv_add_f32 v{5+2*d}, v{5+2*d}, v13")
    k(f"""
    v_lshlrev_b32 v12, 8, v1
    v_lshl_add_u32 v12, v2, 5, v12
    ds_write_b128 v12, v[4:7]
    ds_write_b128 v12, v[8:11] offset:16
    s_waitcnt lgkmcnt(0)
    s_barrier
    v_cmp_gt_u32 vcc, 64, v0
    s_and_saveexec_b64 s[22:23], vcc
    s_cbranch_execz L{name}_end
    v_lshlrev_b32 v12, 2, v0
    """)
    for i in range(32):
        k(f"ds_read_b32 v{16+i}, v12 offset:{256*i}")
        if i in (14, 29): k("s_waitcnt lgkmcnt(0)")
    k("s_waitcnt lgkmcnt(0)")
    for st in (16, 8, 4, 2, 1):
        for i in range(st): k(f"v_add_f32 v{16+i}, v{16+i}, v{16+i+st}")
    k(f"""
    v_cvt_pk_bf16_f32 v13, v16, v16
    v_and_b32 v14, 0xffff0000, v13
    v_sub_f32 v14, v16, v14
    v_cvt_pk_bf16_f32 v14, v14, v14
    v_and_b32 v13, 0xffff, v13
    v_and_b32 v14, 0xffff0000, v14
    v_or_b32 v13, v13, v14
    s_lshl_b32 s22, s18, 6
    v_add_u32 v15, s22, v0                      ; f
    s_mov_b32 s22, 14913081
    v_mul_hi_u32 v16, v15, s22                  ; j
    v_mul_u32_u24 v17, 288, v16
    v_sub_u32 v17, v15, v17                     ; local
    v_and_b32 v18, 1, v16
    v_lshlrev_b32 v19, 5, v18
    v_sub_u32 v19, v17, v19
    v_cmp_gt_i32 vcc, 0, v19
    v_add_u32 v20, 288, v19
    s_nop 0
    v_cndmask_b32 v19, v19, v20, vcc
    v_lshrrev_b32 v20, 4, v19
    v_and_b32 v19, 15, v19
    v_lshl_add_u32 v19, v16, 4, v19
    v_mul_u32_u24 v19, 36, v19
    v_lshl_add_u32 v19, v20, 1, v19
    v_add_u32 v19, s20, v19
    {"v_lshlrev_b32 v19, 1, v19" if BS else ""}
    {"v_add_u32 v19, s28, v19" if BS else ""}
    v_lshlrev_b32 v12, 2, v19
    s_mov_b32 s21, {WS_CS}
    buffer_store_dword v13, v12, s[12:15], s21 offen
    s_branch L{name}_end
    """)

def role_V(k, name, opts):
    NP = np_of(opts)
    k(f"""
    s_load_dwordx4 s[4:7], s[0:1], 8
    s_load_dwordx4 s[24:27], s[0:1], 24
    s_load_dwordx4 s[28:31], s[0:1], 40
    s_load_dwordx4 s[48:51], s[0:1], 96
    s_sub_u32 s16, s2, {NP}
    s_and_b32 s18, s16, 7
    s_mul_i32 s18, s18, 72
    s_lshr_b32 s16, s16, 3
    s_add_u32 s16, s16, s18
    v_and_b32 v1, 63, v0                        ; lane
    v_lshrrev_b32 v2, 6, v0                     ; wave
    v_and_b32 v3, 1, v2
    v_lshl_add_u32 v4, v3, 6, v1                ; n
    v_lshlrev_b32 v5, 1, v4                     ; n*2
    v_xor_b32 v6, 128, v5
    v_readfirstlane_b32 s17, v2
    s_lshl_b32 s18, s16, 8                      ; d*256
    s_lshl_b32 s19, s16, 1
    v_mov_b32 v7, s19
    s_waitcnt lgkmcnt(0)
    """)
    srd(k, 8, 4, 5, 576*256); srd(k, 12, 6, 7, 576*256); srd(k, 32, 24, 25, 576*256); srd(k, 36, 26, 27, 576*256)
    srd(k, 40, 28, 29, 576*2); srd(k, 52, 30, 31, 576*2); srd(k, 44, 50, 51, WS_END); srd(k, 56, 48, 49, 256)
    k("""
    buffer_load_ushort v8, v5, s[8:11], s18 offen
    buffer_load_ushort v14, v7, s[40:43], 0 offen
    buffer_load_ushort v9, v5, s[12:15], s18 offen
    buffer_load_ushort v10, v5, s[32:35], s18 offen
    buffer_load_ushort v11, v5, s[36:39], s18 offen
    buffer_load_ushort v12, v6, s[32:35], s18 offen
    buffer_load_ushort v13, v6, s[36:39], s18 offen
    buffer_load_ushort v62, v7, s[52:55], 0 offen       ; D_skip
    """)
    for i in range(8):
        sh = {0: 0, 1: 1, 2: 2, 3: 2}.get(i, 3)
        r = 40 + i
        if sh == 0: k(f"v_lshlrev_b32 v{r}, 2, v0")
        else:
            k(f"""
            v_add_u32 v38, {256*i}, v0
            v_bfe_u32 v39, v38, {sh}, 1
            v_add_u32 v38, v38, v39
            v_add_u32 v38, {(1 << (sh-1)) - 1}, v38
            v_lshrrev_b32 v38, {sh}, v38
            v_lshlrev_b32 v{r}, {sh+2}, v38
            """)
    k("s_waitcnt vmcnt(0)")
    if opts.get("earlynonce", False) and not opts.get("tags"):
        k("v_mov_b32 v61, 0\nbuffer_load_dword v60, v61, s[56:59], 0 offen sc1")
    for r in (8, 9, 10, 11, 12, 13, 14, 62): k(f"v_lshlrev_b32 v{r}, 16, v{r}")
    k(f"""
    v_mul_f32 v14, {f2u(LOG2E):#x}, v14
    v_mul_f32 v8, {f2u(LOG2E):#x}, v8
    v_exp_f32 v14, v14
    v_exp_f32 v8, v8
    v_add_f32 v15, |v10|, |v11|
    v_add_f32 v16, |v12|, |v13|
    v_add_f32 v15, v15, v16
    """)
    bf16r(k, 14, 14); bf16r(k, 8, 8)
    k("""
    s_nop 1
    v_add_f32_dpp v15, v15, v15 quad_perm:[1,0,3,2] row_mask:0xf bank_mask:0xf
    s_nop 1
    v_add_f32_dpp v15, v15, v15 quad_perm:[2,3,0,1] row_mask:0xf bank_mask:0xf
    s_nop 1
    v_add_f32_dpp v15, v15, v15 row_half_mirror row_mask:0xf bank_mask:0xf
    s_nop 1
    v_add_f32_dpp v15, v15, v15 row_mirror row_mask:0xf bank_mask:0xf
    s_nop 1
    v_readlane_b32 s20, v15, 0
    v_readlane_b32 s21, v15, 16
    v_readlane_b32 s22, v15, 32
    v_readlane_b32 s23, v15, 48
    s_nop 1
    v_mov_b32 v15, s20
    v_add_f32 v15, s21, v15
    v_add_f32 v15, s22, v15
    v_add_f32 v15, s23, v15
    v_mul_f32 v15, v15, v14
    v_add_f32 v15, v15, v15
    v_frexp_exp_i32_f32 v16, v15
    v_sub_u32 v17, 13, v16
    v_mov_b32 v18, 1.0
    v_ldexp_f32 v19, v18, v17                    ; S
    v_sub_u32 v17, 0, v17
    v_ldexp_f32 v63, v18, v17
    """)
    k(f"""
    v_mul_f32 v8, v8, v14
    v_mul_f32 v9, v9, v14
    v_mul_f32 v8, {f2u(-LOG2E):#x}, v8
    v_mul_f32 v9, 0.15915494, v9
    """)
    AL, BE = 8, 9
    def direct(dr, di, p, t0=21, t1=22):
        k(f"""
        v_mul_f32 v{t0}, {f2u(float(p)):#x}, v{AL}
        v_mul_f32 v{t1}, {f2u(float(p)):#x}, v{BE}
        v_exp_f32 v{t0}, v{t0}
        v_fract_f32 v{t1}, v{t1}
        s_nop 0
        v_cos_f32 v{dr}, v{t1}
        v_sin_f32 v{di}, v{t1}
        s_nop 0
        v_mul_f32 v{dr}, v{dr}, v{t0}
        v_mul_f32 v{di}, v{di}, v{t0}
        """)
    k("v_lshlrev_b32 v23, 2, v4")
    def put(tab, row, re, im, neg=False, tmp=24):
        if neg: k(f"v_cvt_pk_f16_f32 v{tmp}, v{re}, -v{im}")
        else: k(f"v_cvt_pk_f16_f32 v{tmp}, v{re}, v{im}")
        k(f"ds_write_b32 v23, v{tmp} offset:{tab + row*TP}")
    k(f"s_cmp_ge_u32 s17, 2\ns_cbranch_scc1 L{name}_V_part1")
    direct(30, 31, 1); direct(32, 33, 16)
    k("""
    v_mul_f32 v25, v19, v14
    v_add_f32 v25, v25, v25
    v_mul_f32 v34, v10, v25
    v_mul_f32 v35, v11, v25
    v_mov_b32 v26, 1.0
    v_mov_b32 v27, 0
    """)
    fr, fi, er, ei = 34, 35, 26, 27
    for r in range(16):
        put(TA, r, fr, fi, neg=True, tmp=24)
        put(TB, r, er, ei, tmp=25)
        if r < 15:
            nf = 36 if fr == 34 else 34; ne = 28 if er == 26 else 26
            cmul(k, nf, nf+1, fr, fi, 32, 33)
            cmul(k, ne, ne+1, er, ei, 30, 31)
            fr, fi, er, ei = nf, nf+1, ne, ne+1
    k(f"s_branch L{name}_V_join")
    k.label(f"L{name}_V_part1")
    direct(30, 31, 2); direct(32, 33, 256)
    cmul(k, 34, 35, 30, 31, 30, 31)
    cmul(k, 36, 37, 34, 35, 34, 35)
    cmul(k, 38, 39, 32, 33, 32, 33)
    cmul(k, 48, 49, 38, 39, 38, 39)
    cmul(k, 50, 51, 48, 49, 48, 49)
    put(TB, 40, 50, 51)
    cr_, ci_ = 32, 33
    put(TB, 16, cr_, ci_)
    for c in range(1, 8):
        n_ = 52 if cr_ != 52 else 54
        cmul(k, n_, n_+1, cr_, ci_, 30, 31); cr_, ci_ = n_, n_+1
        put(TB, 16 + c, cr_, ci_, tmp=24 + (c & 1))
    cmul(k, 56, 57, 38, 39, 32, 33)
    for base, (b0, b1) in ((24, (38, 39)), (28, (56, 57))):
        cr_, ci_ = b0, b1
        put(TB, base, cr_, ci_)
        for c in range(1, 4):
            n_ = 52 if cr_ != 52 else 54
            cmul(k, n_, n_+1, cr_, ci_, 34, 35); cr_, ci_ = n_, n_+1
            put(TB, base + c, cr_, ci_, tmp=24 + (c & 1))
    cr_, ci_ = 48, 49
    for g in range(4):
        put(TB, 32 + 2*g, cr_, ci_)
        cmul(k, 58, 59, cr_, ci_, 36, 37)
        put(TB, 32 + 2*g + 1, 58, 59, tmp=25)
        if g < 3:
            n_ = 52 if cr_ != 52 else 54
            cmul(k, n_, n_+1, cr_, ci_, 32, 33); cr_, ci_ = n_, n_+1
    k.label(f"L{name}_V_join")
    k("s_waitcnt lgkmcnt(0)\ns_barrier")
    k(f"""
    v_and_b32 v4, 15, v1                          ; a / col / b
    v_lshrrev_b32 v5, 4, v1                       ; q
    s_cmp_ge_u32 s17, 3
    s_cbranch_scc1 L{name}_V_skipmm
    v_mul_u32_u24 v26, {TP}, v4
    v_lshl_add_u32 v26, v5, 4, v26
    s_mul_i32 s20, s17, {16*TP}
    v_add_u32 v27, s20, v26
    """)
    for t in range(8):
        k(f"ds_read_b128 v[{64+8*t}:{64+8*t+3}], v26 offset:{TA + 64*t}")
        k(f"ds_read_b128 v[{68+8*t}:{68+8*t+3}], v27 offset:{TB + 64*t}")
        if t == 6: k("s_waitcnt lgkmcnt(8)")
    k(f"""
    v_mov_b32 v32, v4
    s_cmp_eq_u32 s17, 0
    s_cbranch_scc1 L{name}_V_oready
    s_cmp_eq_u32 s17, 1
    s_cbranch_scc0 L{name}_V_t2
    v_lshlrev_b32 v33, 1, v4
    v_add_u32 v33, 256, v33
    v_and_b32 v34, 3, v4
    v_lshlrev_b32 v34, 2, v34
    v_bfe_u32 v35, v4, 2, 1
    v_lshlrev_b32 v35, 8, v35
    v_add_u32 v34, v34, v35
    v_add_u32 v34, 512, v34
    v_cmp_gt_u32 vcc, 8, v4
    s_nop 1
    v_cndmask_b32 v32, v34, v33, vcc
    s_branch L{name}_V_oready
    """)
    k.label(f"L{name}_V_t2")
    k(f"""
    v_lshrrev_b32 v33, 1, v4
    v_lshlrev_b32 v33, 8, v33
    v_and_b32 v34, 1, v4
    v_lshl_add_u32 v33, v34, 3, v33
    v_add_u32 v33, 1024, v33
    v_cmp_gt_u32 vcc, 9, v4
    v_mov_b32 v34, 2052
    s_nop 0
    v_cndmask_b32 v32, v34, v33, vcc
    """)
    k.label(f"L{name}_V_oready")
    k(f"""
    v_lshl_add_u32 v33, v5, 6, v32
    v_min_u32 v34, 2100, v33
    v_add_u32 v35, 16, v33
    v_min_u32 v35, 2100, v35
    v_add_u32 v36, 32, v33
    v_min_u32 v36, 2100, v36
    v_add_u32 v37, 48, v33
    v_min_u32 v37, 2100, v37
    v_lshlrev_b32 v34, 2, v34
    v_lshlrev_b32 v35, 2, v35
    v_lshlrev_b32 v36, 2, v36
    v_lshlrev_b32 v37, 2, v37
    """)
    for t in range(8):
        k(f"s_waitcnt lgkmcnt({min(15, 2*(7-t))})")
        C = "0" if t == 0 else "v[28:31]"
        k(f"v_mfma_f32_16x16x32_f16 v[28:31], v[{64+8*t}:{64+8*t+3}], v[{68+8*t}:{68+8*t+3}], {C}")
    k(f"""
    s_nop 7
    ds_write_b32 v34, v28 offset:{KT}
    ds_write_b32 v35, v29 offset:{KT}
    ds_write_b32 v36, v30 offset:{KT}
    ds_write_b32 v37, v31 offset:{KT}
    """)
    k.label(f"L{name}_V_skipmm")
    k("s_waitcnt lgkmcnt(0)\ns_barrier")
    if opts.get("tags"): k("v_mov_b32 v58, 0\nbuffer_load_dword v57, v58, s[56:59], 0 offen sc1")
    for i in range(8): k(f"ds_read_b32 v{48+i}, v{40+i} offset:{KT}")
    k(f"""
    v_mov_b32 v16, 0
    v_mov_b32 v17, 0
    v_mov_b32 v18, 0
    v_mov_b32 v19, 0
    v_lshlrev_b32 v14, 4, v0                   ; tid*16
    v_cmp_gt_u32 vcc, 160, v0
    s_and_saveexec_b64 s[22:23], vcc
    ds_write_b128 v14, v[16:19]
    s_mov_b64 exec, s[22:23]
    v_cmp_gt_u32 vcc, 32, v0
    v_lshrrev_b32 v15, 3, v0
    v_mul_u32_u24 v15, {CS}, v15
    v_and_b32 v20, 7, v0
    v_lshl_add_u32 v15, v20, 4, v15
    s_and_saveexec_b64 s[22:23], vcc
    ds_write_b128 v15, v[16:19] offset:{KB}
    s_mov_b64 exec, s[22:23]
    v_lshlrev_b32 v15, 1, v0
    s_waitcnt lgkmcnt(0)
    """)
    for i in range(8):
        k(f"v_cvt_f16_f32 v{48+i}, v{48+i}")
        k(f"ds_write_b16 v15, v{48+i} offset:{KB + 128 + 512*i}")
    k("s_waitcnt lgkmcnt(0)\ns_barrier")
    k(f"""
    ds_read_b128 v[24:27], v14 offset:{KB + 128}
    ds_read_b64 v[22:23], v14 offset:{KB + 120}
    """)
    if not opts.get("tags"):
        k(f"""
        s_cmp_lg_u32 s17, 0
        s_cbranch_scc1 L{name}_V_nopoll
        """)
        poll_flags(k, name, "V", 56, 44, opts.get("vsleep", 4), 56, 21, 60, opts.get("R", 8), pre=(60 if opts.get("earlynonce", False) else None), nfl=np_of(opts))
    k.label(f"L{name}_V_nopoll")
    k(f"""
    s_waitcnt lgkmcnt(0)
    v_alignbit_b32 v28, v23, v22, 16
    v_alignbit_b32 v29, v24, v23, 16
    v_alignbit_b32 v30, v25, v24, 16
    v_alignbit_b32 v31, v26, v25, 16
    v_alignbit_b32 v32, v27, v26, 16
    v_mov_b32 v36, v29
    v_mov_b32 v37, v30
    v_mov_b32 v38, v31
    v_mov_b32 v39, v32
    v_mov_b32 v40, v23
    v_mov_b32 v41, v24
    v_mov_b32 v42, v25
    v_mov_b32 v43, v26
    ds_write_b128 v14, v[28:31] offset:{KB + 3*CS + 128}
    ds_write_b128 v14, v[36:39] offset:{KB + 1*CS + 128}
    ds_write_b128 v14, v[40:43] offset:{KB + 2*CS + 128}
    s_barrier
    """)
    if opts.get("tags"):
        k(f"""
        v_mul_u32_u24 v20, {576*64}, v0
        s_lshl_b32 s19, s16, 6
        s_add_u32 s19, s19, {WS_UX2}               ; + d*64
        v_lshrrev_b32 v56, 3, v0
        v_mul_u32_u24 v56, 160, v56
        v_and_b32 v49, 7, v0
        v_lshl_add_u32 v56, v49, 4, v56
        v_lshlrev_b32 v7, 3, v4
        v_lshrrev_b32 v21, 1, v5
        v_add_u32 v7, v7, v21
        s_lshl_b32 s25, s17, 1
        v_add_u32 v7, s25, v7
        v_mul_u32_u24 v7, {576*64}, v7
        v_and_b32 v21, 1, v5
        v_lshl_add_u32 v7, v21, 4, v7              ; + (q&1)*16
        s_add_u32 s25, s19, 32
        s_add_u32 s26, s25, {128*576*64}
        v_lshlrev_b32 v6, 7, v4
        v_lshl_add_u32 v6, v5, 3, v6               ; h^T offset: a*128 + q*8
        s_lshl_b32 s23, s17, 5                     ; mb*32
        s_lshl_b32 s24, s16, 12
        s_add_u32 s24, s24, s23
        s_mov_b32 s60, 0
        """)
        k.label(f"L{name}_V_nc")
        k(f"""
        s_waitcnt vmcnt(0)
        v_readfirstlane_b32 s61, v57
        s_cmp_lg_u32 s61, 0
        s_cbranch_scc1 L{name}_V_nok
        s_add_u32 s60, s60, 1
        s_cmp_lt_u32 s60, 0x40000
        s_cbranch_scc0 L{name}_V_nok
        s_sleep 2
        buffer_load_dword v57, v58, s[56:59], 0 offen sc1
        s_branch L{name}_V_nc
        """)
        k.label(f"L{name}_V_nok")
        k(f"s_xor_b32 s62, s61, {TAGX:#x}")
        k.label(f"L{name}_V_ld")
        k(f"""
        buffer_load_dwordx4 v[44:47], v20, s[44:47], s19 offen sc1
        buffer_load_dwordx4 v[48:51], v20, s[44:47], s19 offen offset:16 sc1
        buffer_load_dwordx4 v[8:11], v7, s[44:47], s25 offen sc1
        buffer_load_dwordx4 v[52:55], v7, s[44:47], s26 offen sc1
        s_waitcnt vmcnt(0)
        v_cmp_ne_u32 vcc, s61, v46
        v_cmp_ne_u32 s[64:65], s62, v47
        s_or_b64 vcc, vcc, s[64:65]
        v_cmp_ne_u32 s[64:65], s61, v50
        s_or_b64 vcc, vcc, s[64:65]
        v_cmp_ne_u32 s[64:65], s62, v51
        s_or_b64 vcc, vcc, s[64:65]
        v_cmp_ne_u32 s[64:65], s61, v10
        s_or_b64 vcc, vcc, s[64:65]
        v_cmp_ne_u32 s[64:65], s62, v11
        s_or_b64 vcc, vcc, s[64:65]
        v_cmp_ne_u32 s[64:65], s61, v54
        s_or_b64 vcc, vcc, s[64:65]
        v_cmp_ne_u32 s[64:65], s62, v55
        s_or_b64 vcc, vcc, s[64:65]
        s_cbranch_vccz L{name}_V_ldok
        s_add_u32 s60, s60, 1
        s_cmp_lt_u32 s60, 0x40000
        s_cbranch_scc0 L{name}_V_ldok
        s_sleep {opts.get("vsleep", 4)}
        s_branch L{name}_V_ld
        """)
        k.label(f"L{name}_V_ldok")
        k(f"""
        v_mov_b32 v10, v52
        v_mov_b32 v11, v53
        ds_write_b64 v56, v[44:45] offset:{UD}
        ds_write_b64 v56, v[48:49] offset:{UD + 8}
        """)
    else:
        if opts.get("pair64", False) or opts.get("p16", False):
            k(f"""
            v_lshrrev_b32 v21, 2, v0                   ; rbp
            v_mul_u32_u24 v20, {576*64}, v21
            v_and_b32 v49, 3, v0                       ; piece
            v_lshl_add_u32 v20, v49, 4, v20
            s_lshl_b32 s19, s16, 6
            s_add_u32 s19, s19, {WS_UX}                ; + d*64
            s_add_u32 s25, s19, {64*576*64}
            buffer_load_dwordx4 v[44:47], v20, s[44:47], s19 offen sc1
            buffer_load_dwordx4 v[8:11], v20, s[44:47], s25 offen sc1
            v_lshlrev_b32 v21, 1, v21
            {"v_and_b32 v50, 1, v49" if opts.get("p16") else "v_lshrrev_b32 v50, 1, v49"}
            v_add_u32 v21, v21, v50                    ; rb (0..127)
            {"v_lshrrev_b32 v49, 1, v49" if opts.get("p16") else "v_and_b32 v49, 1, v49"}                      ; array
            v_lshrrev_b32 v48, 3, v21
            v_mul_u32_u24 v48, 160, v48
            v_and_b32 v50, 7, v21
            v_lshl_add_u32 v48, v50, 4, v48
            v_add_u32 v48, {UD}, v48
            v_lshlrev_b32 v50, 4, v21
            v_add_u32 v50, {XL}, v50
            v_cmp_eq_u32 vcc, 1, v49
            v_mov_b32 v51, {16*160}
            v_mov_b32 v53, 2048
            v_cndmask_b32 v48, v48, v50, vcc
            v_cndmask_b32 v51, v51, v53, vcc
            v_add_u32 v51, v48, v51
            v_lshlrev_b32 v6, 7, v4
            v_lshl_add_u32 v6, v5, 3, v6
            s_lshl_b32 s23, s17, 5
            s_lshl_b32 s24, s16, 12
            s_add_u32 s24, s24, s23
            """)
        elif opts.get("mergeux", True):
            k(f"""
            v_lshrrev_b32 v21, 1, v0                   ; rb (0..127)
            v_mul_u32_u24 v20, {576*32}, v21
            v_and_b32 v49, 1, v0                       ; piece
            v_lshl_add_u32 v20, v49, 4, v20
            s_lshl_b32 s19, s16, 5
            s_add_u32 s19, s19, {WS_UX}                ; + d*32
            s_add_u32 s25, s19, {128*576*32}
            buffer_load_dwordx4 v[44:47], v20, s[44:47], s19 offen sc1
            buffer_load_dwordx4 v[8:11], v20, s[44:47], s25 offen sc1
            v_lshrrev_b32 v48, 3, v21
            v_mul_u32_u24 v48, 160, v48
            v_and_b32 v50, 7, v21
            v_lshl_add_u32 v48, v50, 4, v48
            v_add_u32 v48, {UD}, v48
            v_lshlrev_b32 v50, 4, v21
            v_add_u32 v50, {XL}, v50
            v_cmp_eq_u32 vcc, 1, v49
            v_mov_b32 v51, {16*160}
            v_mov_b32 v53, 2048
            v_cndmask_b32 v48, v48, v50, vcc
            v_cndmask_b32 v51, v51, v53, vcc
            v_add_u32 v51, v48, v51
            v_lshlrev_b32 v6, 7, v4
            v_lshl_add_u32 v6, v5, 3, v6               ; h^T offset: a*128 + q*8
            s_lshl_b32 s23, s17, 5                     ; mb*32
            s_lshl_b32 s24, s16, 12
            s_add_u32 s24, s24, s23
            """)
        else:
            k(f"""
            v_mul_u32_u24 v20, {576*32}, v0
            s_lshl_b32 s19, s16, 5
            s_add_u32 s19, s19, {WS_UX}                ; + d*32
            buffer_load_dwordx4 v[44:47], v20, s[44:47], s19 offen sc1
            v_lshrrev_b32 v48, 3, v0
            v_mul_u32_u24 v48, 160, v48
            v_and_b32 v49, 7, v0
            v_lshl_add_u32 v48, v49, 4, v48
            v_lshlrev_b32 v7, 3, v4
            v_lshrrev_b32 v21, 1, v5
            v_add_u32 v7, v7, v21
            s_lshl_b32 s25, s17, 1
            v_add_u32 v7, s25, v7                      ; 8a + 2mb + (q>>1)
            v_mul_u32_u24 v7, {576*32}, v7
            v_and_b32 v21, 1, v5
            v_lshl_add_u32 v7, v21, 3, v7
            s_add_u32 s25, s19, 16
            buffer_load_dwordx2 v[8:9], v7, s[44:47], s25 offen sc1
            s_add_u32 s25, s25, {128*576*32}
            buffer_load_dwordx2 v[10:11], v7, s[44:47], s25 offen sc1
            v_lshlrev_b32 v6, 7, v4
            v_lshl_add_u32 v6, v5, 3, v6               ; h^T offset: a*128 + q*8
            s_lshl_b32 s23, s17, 5                     ; mb*32
            s_lshl_b32 s24, s16, 12
            s_add_u32 s24, s24, s23
            """)
    if opts.get("tags"): UWR = ""
    elif opts.get("mergeux", True):
        UWR = "s_waitcnt vmcnt(1)\n    ds_write_b128 v48, v[44:47]\n    s_waitcnt vmcnt(0)\n    ds_write_b128 v51, v[8:11]"
        if opts.get("vdone"):
            VD = f"""
    s_cmp_lg_u32 s17, 0
    s_cbranch_scc1 L{name}_V_nodone
    s_sub_u32 s20, s2, {NP}
    s_lshl_b32 s20, s20, 2
    s_add_u32 s20, s20, {WS_FL + 16384}
    v_mov_b32 v20, s61
    v_mov_b32 v21, 0
    s_mov_b64 exec, 1
    buffer_store_dword v20, v21, s[44:47], s20 offen sc1
    s_mov_b64 exec, -1
    L{name}_V_nodone:"""
            UWR = (VD + "\n    " + UWR) if opts.get("vdone_early", True) else (UWR + VD)
    else: UWR = f"s_waitcnt vmcnt(2)\n    ds_write_b128 v48, v[44:47] offset:{UD}"
    k(f"""
    v_bfe_u32 v52, v1, 2, 2
    v_mul_u32_u24 v52, {CS}, v52
    v_and_b32 v53, 3, v1
    v_lshl_add_u32 v52, v53, 3, v52
    v_lshlrev_b32 v53, 4, v5
    v_sub_u32 v52, v52, v53
    s_lshl_b32 s27, s17, 9
    s_add_u32 s27, s27, {KB + 128 - 64 - 8}
    v_add_u32 v12, s27, v52                    ; A base
    v_mul_u32_u24 v53, 160, v4
    v_lshl_add_u32 v53, v5, 4, v53
    s_mul_i32 s27, s17, {4*160}
    s_sub_u32 s27, {UD - 3*160}, s27
    v_add_u32 v13, s27, v53                    ; B base
    {UWR}
    s_waitcnt lgkmcnt(0)
    s_barrier
    """)
    ACC = 16; BSET = [48, 64]; A1, A2 = 80, 104; RNG = 6
    def loadsB(si):
        L = []
        for na in range(2):
            for kk in range(2):
                r = BSET[si & 1] + 4*(2*na + kk)
                L.append(f"ds_read_b128 v[{r}:{r+3}], v13 offset:{(16*na + 3 - si)*160 + 64*kk}")
        return L
    def loadsA(tas):
        L = []
        for ta in tas:
            for rng in range(2):
                base = (A1 if rng == 0 else A2) + 4*(ta % RNG)
                for i in range(2):
                    L.append(f"ds_read_b64_tr_b16 v[{base+2*i}:{base+2*i+1}], v12 offset:{32*ta + 8*(1-i) + (2048 if rng else 0)}")
        return L
    k("v_mov_b32 v14, v62\nv_mov_b32 v15, v63")
    L0 = loadsB(0) + loadsA(range(0, 6))
    for n, l in enumerate(L0):
        k(l)
        if n in (11, 19): k("s_waitcnt lgkmcnt(4)")
    first = {}
    def mfmas(si, kk, mbs):
        out = []
        Bb = BSET[si & 1]
        for mb in mbs:
            ta = 4*si + 2 + mb - 2*kk
            for rng, na, bsel in ((0, 0, 0), (0, 1, 1), (1, 1, 0)):
                acc = ACC + 8*mb + 4*na
                A = (A1 if rng == 0 else A2) + 4*(ta % RNG)
                B = Bb + 4*(2*bsel + kk)
                C = f"v[{acc}:{acc+3}]" if (mb, na) in first else "0"
                first[(mb, na)] = 1
                out.append(f"v_mfma_f32_16x16x32_f16 v[{acc}:{acc+3}], v[{A}:{A+3}], v[{B}:{B+3}], {C}")
        return out
    for si in range(4):
        k("s_waitcnt lgkmcnt(0)")
        for m in mfmas(si, 1, range(4)): k(m)
        if si < 3:
            for l in loadsB(si + 1) + loadsA([4*si + 6, 4*si + 7]): k(l)
        for m in mfmas(si, 0, range(2)): k(m)
        mm = mfmas(si, 0, range(2, 4))
        if si < 3:
            k("s_waitcnt lgkmcnt(6)")
            for l in loadsA([4*si + 8, 4*si + 9]): k(l)
        for m in mm: k(m)
    k(f"""
    s_barrier
    v_lshlrev_b32 v12, 4, v1
    s_mul_i32 s27, s17, {6*1024}
    v_add_u32 v12, s27, v12
    """)
    for mb in range(4):
        k(f"s_cmp_eq_u32 s17, {mb}\ns_cbranch_scc1 L{name}_skw{mb}")
        k(f"s_sub_u32 s28, {mb + 3}, s17\ns_and_b32 s28, s28, 3\ns_lshl_b32 s28, s28, 11\nv_add_u32 v13, s28, v12")
        for na in range(2):
            acc = ACC + 8*mb + 4*na
            k(f"ds_write_b128 v13, v[{acc}:{acc+3}] offset:{RED + na*1024}")
        k.label(f"L{name}_skw{mb}")
    for mb in range(4):
        k(f"s_cmp_lg_u32 s17, {mb}\ns_cbranch_scc1 L{name}_mv{mb}")
        for i in range(8): k(f"v_mov_b32 v{48+i}, v{ACC+8*mb+i}")
        k.label(f"L{name}_mv{mb}")
    k("s_waitcnt lgkmcnt(0)\ns_barrier")
    XRD = ""
    if opts.get("mergeux", True) and not opts.get("tags"):
        XRD = f"v_add_u32 v12, s23, v6\n    ds_read_b64 v[8:9], v12 offset:{XL}\n    ds_read_b64 v[10:11], v12 offset:{XL + 2048}"
    k("v_lshlrev_b32 v12, 4, v1")
    for t in range(3):
        k(f"""
        s_sub_u32 s28, s17, {1+t}
        s_and_b32 s28, s28, 3
        s_mul_i32 s28, s28, {6*1024}
        s_add_u32 s28, s28, {t*2048}
        v_add_u32 v13, s28, v12
        ds_read_b128 v[{56+8*t}:{56+8*t+3}], v13 offset:{RED}
        ds_read_b128 v[{60+8*t}:{60+8*t+3}], v13 offset:{RED+1024}
        """)
    k(f"""
    v_mul_u32_u24 v13, 160, v4
    v_lshl_add_u32 v13, v5, 3, v13
    v_add_u32 v13, s23, v13
    ds_read_b64 v[80:81], v13 offset:{UD}
    ds_read_b64 v[82:83], v13 offset:{UD + 16*160}
    {XRD}
    s_waitcnt vmcnt(0) lgkmcnt(0)
    """)
    for t in range(3):
        for i in range(8): k(f"v_add_f32 v{48+i}, v{48+i}, v{56+8*t+i}")
    for na in range(2):
        Y = 48 + 4*na
        for p in range(2):
            y0, y1 = Y + 2*p, Y + 2*p + 1
            ur = 80 + 2*na + p; xr = 8 + 2*na + p
            k(f"""
            v_mul_f32 v{y0}, v{y0}, v15
            v_mul_f32 v{y1}, v{y1}, v15
            v_cvt_pk_bf16_f32 v84, v{y0}, v{y1}
            v_cvt_f32_f16 v85, v{ur}
            v_cvt_f32_f16_sdwa v86, v{ur} dst_sel:DWORD dst_unused:UNUSED_PAD src0_sel:WORD_1
            v_mul_f32 v85, v85, v14
            v_mul_f32 v86, v86, v14
            v_cvt_pk_bf16_f32 v85, v85, v86
            v_lshlrev_b32 v86, 16, v84
            v_and_b32 v84, 0xffff0000, v84
            v_lshlrev_b32 v87, 16, v85
            v_and_b32 v85, 0xffff0000, v85
            v_add_f32 v86, v86, v87
            v_add_f32 v84, v84, v85
            v_cvt_pk_bf16_f32 v84, v86, v84
            v_lshlrev_b32 v86, 16, v84
            v_and_b32 v84, 0xffff0000, v84
            v_lshlrev_b32 v87, 16, v{xr}
            v_and_b32 v85, 0xffff0000, v{xr}
            v_add_f32 v86, v86, v87
            v_add_f32 v84, v84, v85
            v_cvt_pk_bf16_f32 v{88 + 2*na + p}, v86, v84
            """)
    if opts.get("hcoal", True) and opts.get("mergeux", True) and not opts.get("tags"):
        k(f"""
        ds_write_b64 v12, v[88:89] offset:{XL}
        ds_write_b64 v12, v[90:91] offset:{XL + 2048}
        v_lshlrev_b32 v13, 4, v0
        s_lshl_b32 s25, s16, 12
        s_add_u32 s25, s25, {WS_HT}
        s_waitcnt lgkmcnt(0)
        s_barrier
        ds_read_b128 v[88:91], v13 offset:{XL}
        s_waitcnt lgkmcnt(0)
        buffer_store_dwordx4 v[88:91], v13, s[44:47], s25 offen
        """)
    else:
        k(f"""
        s_add_u32 s25, s24, {WS_HT}
        buffer_store_dwordx2 v[88:89], v6, s[44:47], s25 offen
        buffer_store_dwordx2 v[90:91], v6, s[44:47], s25 offen offset:2048
        """)

def np_of(opts): return 128 if (opts or {}).get("p16") else 256
def nb_of(opts): return 288 if (opts or {}).get("bsplit") else 144
def gen_ka(name="ka_kernel", opts=None):
    opts = opts or {}
    NB = nb_of(opts); NP = np_of(opts)
    k = K(name)
    if opts.get("selfpf", True):
        k(f"""
        s_getpc_b64 s[4:5]
        L{name}_pc0:
        v_lshlrev_b32 v1, 7, v0
        v_min_u32 v1, {opts.get("selfpf_bytes", 14336) - 128}, v1
        global_load_dword v127, v1, s[4:5]
        """)
    k(f"""
    s_cmp_ge_u32 s2, {NP+NV+NB}
    s_cbranch_scc1 L{name}_end
    s_cmp_ge_u32 s2, {NP+NV}
    s_cbranch_scc1 L{name}_B
    s_cmp_ge_u32 s2, {NP}
    s_cbranch_scc1 L{name}_V
    """)
    (role_P16 if opts.get("p16") else role_P)(k, name, opts)
    k.label(f"L{name}_B")
    role_B(k, name, opts)
    k.label(f"L{name}_V")
    role_V(k, name, opts)
    k.label(f"L{name}_end")
    k("s_endpgm")
    return k
if __name__ == "__main__":
    from asmlib import build_file
    k = gen_ka()
    build_file("mb/ka.s", [(k, 128, 80, 128)], [("ka_kernel", NP+NV+NB, 256, KA_LDS)])
```

```python
import sys
from asmlib import build_file
from gen_ka import gen_ka, NV, KA_LDS, nb_of, np_of
from gen_k3b import gen_k3b, LDS_BYTES
from gen_k4 import gen_k4
from instr import instrument
HEADER = """; sequential_preLN -> S4D causal conv -> preLN -> GEGLU FFN for gfx950 (MI355X).  Emitted by a hand-written generator.
;
"""
K4LDS = 98304
def build(fn, instr=False, k3opts=None, kaopts=None, k4flag='', hflag='', k4smpf=0):
    ka = gen_ka(opts=kaopts); k3 = gen_k3b(opts=k3opts); k4 = gen_k4(v2=True, nine=True, noh=(k3opts or {}).get('resid', True), smpf=k4smpf)
    k3.lines = [l + ' sc1' if ('buffer_store_dwordx4' in l and 's[88:91]' not in l) else l for l in k3.lines]
    if k4flag: k4.lines = [l + k4flag if 'buffer_store_dwordx4' in l else l for l in k4.lines]
    if hflag: ka.lines = [l + hflag if ('buffer_store_dwordx2' in l) else l for l in ka.lines]
    sg = 80
    if instr:
        for i, k in enumerate((ka, k3, k4)): instrument(k, i)
        sg = 102
    ks = [(ka, 128, sg, 128), (k3, 512, 102, 256), (k4, 104, 102 if instr else 48, 104)]
    launches = [("ka_kernel", np_of(kaopts)+NV+nb_of(kaopts), 256, KA_LDS), ("k3_kernel", 256, 256, LDS_BYTES), ("k4_kernel", 256, 576, K4LDS)]
    if k3opts and k3opts.get("fuse"):
        ks = ks[:2]; launches = launches[:2]
    build_file(fn, ks, launches, header=HEADER)
if __name__ == "__main__":
    KO = {"bwait": True, "codepf": 7, "bone": 1, "bsleep": 24, "vsleep": 8}
    K3O = {"midbar": 2}
    build("mb/all2.s", kaopts=KO, k3opts=K3O); build("mb/all2_i.s", instr=True, kaopts=KO, k3opts=K3O)
    if len(sys.argv) > 1: build("sequential_preLN__ssm_conv_s4d__geglu_ffn__prompt.s", kaopts=KO, k3opts=K3O)
```
